```python
import torch

def _softmax(x, axis=-1):
    return torch.softmax(x, dim=axis)
def _gelu(x):
    return torch.nn.functional.gelu(x, approximate="tanh")
def _silu(x):
    return torch.nn.functional.silu(x)
def _sigmoid(x):
    return torch.sigmoid(x)
def _layernorm(x, axis=-1, eps=1e-5):
    m = x.mean(dim=axis, keepdim=True)
    v = x.var(dim=axis, keepdim=True, unbiased=False)
    return (x - m) / torch.sqrt(v + eps)
def _scatter_add(tgt, idx, src, axis=0):
    return tgt.clone().index_add_(axis, idx, src)
def _segment_sum(src, seg, n):
    out = torch.zeros((n,) + src.shape[1:], dtype=src.dtype)
    return out.index_add_(0, seg, src)
def _pad(x, pw):
    flat = tuple(v for pair in reversed(pw) for v in pair)
    return torch.nn.functional.pad(x, flat)

kernel_name = 'standalone__gqa_softmax__near_ridge'

def setup_inputs():

    _w = (lambda a: (lambda t: t.to(torch.bfloat16) if t.is_floating_point() else t)(torch.as_tensor(a)))
    B, Hq, Hkv, Sq, Sk, D = 8, 32, 32, 256, 1024, 128
    return {
        "q": _w((lambda *s: torch.randn(*s, dtype=torch.bfloat16) * 0.8)(B, Hq, Sq, D)),
        "k": _w((lambda *s: torch.randn(*s, dtype=torch.bfloat16) * 0.8)(B, Hkv, Sk, D)),
        "v": _w((lambda *s: torch.randn(*s, dtype=torch.bfloat16) * 0.05)(B, Hkv, Sk, D)),
    }

def reference(q, k, v):
    B, Hq, Sq, D = q.shape
    Hkv = k.shape[1]
    rep = Hq // Hkv
    k = (lambda x, n, axis: torch.repeat_interleave(x, n, dim=axis))(k, rep, axis=1)
    v = (lambda x, n, axis: torch.repeat_interleave(x, n, dim=axis))(v, rep, axis=1)
    scale = D ** -0.5
    scores = torch.einsum("bhqd,bhkd->bhqk", q, k) * scale
    p = _softmax(scores, axis=-1)
    return torch.einsum("bhqk,bhkd->bhqd", p, v)
```

```python
import sys, struct, argparse, re

NAME = "standalone__gqa_softmax__near_ridge"
SLOT = 16640
BLK = 1040
LDS_BYTES = 9 * SLOT

def f2u(x):
    return struct.unpack("<I", struct.pack("<f", x))[0]

class Cfg:
    loop = 0
    stamps = 0
    dma_cost = 24
    ld_pol = ""
    st_pol = ""
    thresh = 2.0 ** 24
    dma_gaps = (17, 21, 25, 29)
    nocompute = 0
    nodma = 0

class I:
    __slots__ = ("t", "c", "k")
    def __init__(self, t, c=4, k="x"):
        self.t = t; self.c = c; self.k = k

def O(b, D): return 128 + 64 * b + 16 * D
def S(par, b): return 64 + 32 * par + 16 * b
def Qa(b, s): return 32 * b + 4 * s
def Ka(par, s): return 64 + 32 * par + 4 * s
def Va(par, u, D): return 128 + 32 * par + 16 * u + 4 * D
vLane = 1
vKrd = (2, 3)
vVrd = (4, 5)
vDma = (6, 7, 8, 9)
vMc = (10, 11)
vL = (12, 13)
vAcc = (14, 15)
vQrd = 16
vOw = 17
vOr = 18
vOst = 19
vT = (20, 21, 22, 23, 24, 25, 26, 27)
vStage = 32
sW = 3
sSrdQ, sSrdK, sSrdV, sSrdO = 8, 12, 16, 20
sC, sThr, sWoff, sOff, sCnt = 24, 25, 26, 27, 28
sRet = 30
sK16 = (None, 32, 33, 34)
sTmp = 36
sStamp = 56

def vr(a, n): return "v[%d:%d]" % (a, a + n - 1)
def ar(a, n): return "a[%d:%d]" % (a, a + n - 1)
def srd(a): return "s[%d:%d]" % (a, a + 3)

def kslot(i): return 2 * (i % 4)
def vslot(i): return 2 * (i % 4) + 1
def win(slot):
    return (0, slot * SLOT) if slot < 4 else (1, (slot - 4) * SLOT)

def mfma_qk(u, b, s):
    par = u & 1
    d = vr(S(par, b), 16)
    return I("v_mfma_f32_32x32x16_bf16 %s, %s, %s, %s" % (d, ar(Ka(par, s), 4), ar(Qa(b, s), 4), "0" if s == 0 else d), 8, "mfma")

def mfma_pv(u, b, ks, D):
    par = u & 1
    d = vr(O(b, D), 16)
    return I("v_mfma_f32_32x32x16_bf16 %s, %s, %s, %s" % (d, ar(Va(par, ks, D), 4), vr(S(par, b) + 8 * ks, 4), d), 8, "mfma")

def k_reads(u):
    i, kb, par = u // 2, u & 1, u & 1
    w_, base = win(kslot(i))
    return [I("ds_read_b128 %s, v%d offset:%d" % (ar(Ka(par, s), 4), vKrd[w_], base + 512 * kb + 32 * s), 4, "ds") for s in range(8)]

def v_reads(u):
    i, kb, par = u // 2, u & 1, u & 1
    w_, base = win(vslot(i))
    out = []
    for ks in range(2):
        for D in range(4):
            for e in range(2):
                out.append(I("ds_read_b64_tr_b16 %s, v%d offset:%d" % (ar(Va(par, ks, D) + 2 * e, 2), vVrd[w_],
                            base + 8320 * e + 256 * (2 * kb + ks) + 16 * D), 4, "ds"))
    return out

def dma(cfg, srdreg, slot, soff):
    out = []
    for j in range(4):
        g = []
        if j == 0:
            g.append(I("s_add_u32 m0, s%d, %d" % (sWoff, slot * SLOT), 4, "salu"))
            g.append(I("s_nop 0", 0, "nop"))
        g.append(I("buffer_load_dwordx4 v%d, %s, %s offen offset:%d%s lds" % (vDma[j], srd(srdreg), soff, BLK * j, cfg.ld_pol), cfg.dma_cost, "dma"))
        out.append(g)
    return out

def sm_body(par, b):
    s = S(par, b); acc = vAcc[b]
    def fma(e): return I("v_fma_f32 v%d, v%d, s%d, -v%d" % (s + e, s + e, sC, vMc[b]), 4, "valu")
    def ex(e): return I("v_exp_f32 v%d, v%d" % (s + e, s + e), 8, "trans")
    def add(e):
        if e == 0: return None
        if e == 1: return I("v_add_f32 v%d, v%d, v%d" % (acc, s, s + 1), 4, "valu")
        return I("v_add_f32 v%d, v%d, v%d" % (acc, acc, s + e), 4, "valu")
    def cvt(k):
        d = s + k if k < 4 else s + 4 + k
        return I("v_cvt_pk_bf16_f32 v%d, v%d, v%d" % (d, s + 2 * k, s + 2 * k + 1), 4, "valu")
    out = []
    for j in range(10):
        for h in range(2):
            if j < 8: out.append(fma(2 * j + h))
            if 1 <= j <= 8: out.append(ex(2 * (j - 1) + h))
            if j >= 2:
                a = add(2 * (j - 2) + h)
                if a: out.append(a)
        if j >= 2: out.append(cvt(j - 2))
    return out

def max_chain(par, b, dst, t):
    s = S(par, b)
    out = [I("v_max3_f32 v%d, v%d, v%d, v%d" % (dst, s, s + 1, s + 2), 4, "valu")]
    for e in range(3, 15, 2):
        out.append(I("v_max3_f32 v%d, v%d, v%d, v%d" % (dst, dst, s + e, s + e + 1), 4, "valu"))
    out.append(I("v_max_f32 v%d, v%d, v%d" % (dst, dst, s + 15), 4, "valu"))
    out.append(I("v_mov_b32 v%d, v%d" % (t, dst), 4, "valu"))
    out.append(I("s_nop 1", 8, "nop"))
    out.append(I("v_permlane32_swap_b32 v%d, v%d" % (dst, t), 4, "valu"))
    out.append(I("s_nop 0", 4, "nop"))
    out.append(I("v_max_f32 v%d, v%d, v%d" % (dst, dst, t), 4, "valu"))
    return out

def sm_stream(cfg, u, b, tag):
    par = u & 1
    out = []
    if u == 0:
        out += max_chain(par, b, vT[0], vT[1])
        out.append(I("v_mul_f32 v%d, s%d, v%d" % (vMc[b], sC, vT[0]), 4, "valu"))
        out += sm_body(par, b)
        out.append(I("v_mov_b32 v%d, v%d" % (vL[b], vAcc[b]), 4, "valu"))
        return out
    out += sm_body(par, b)
    out.append(I("v_cmp_nge_f32 vcc, s%d, v%d" % (sThr, vAcc[b]), 4, "valu"))
    out.append(I("s_cbranch_vccnz L_stub_%s\nL_ret_%s:" % (tag, tag), 4, "br"))
    out.append(I("v_add_f32 v%d, v%d, v%d" % (vL[b], vL[b], vAcc[b]), 4, "valu"))
    return out

def rare_routine(par, b):
    L = ["L_rare_%d_%d:" % (par, b), "s_nop 3"]
    for s in range(8):
        L.append(mfma_qk(par, b, s).t)
    L.append("s_nop 15")
    L += [x.t for x in max_chain(par, b, vT[0], vT[1])]
    L.append("v_mul_f32 v%d, s%d, v%d" % (vT[0], sC, vT[0]))
    L.append("v_max_f32 v%d, v%d, v%d" % (vT[0], vT[0], vMc[b]))
    L.append("v_sub_f32 v%d, v%d, v%d" % (vT[1], vMc[b], vT[0]))
    L.append("v_exp_f32 v%d, v%d" % (vT[1], vT[1]))
    L.append("v_mov_b32 v%d, v%d" % (vMc[b], vT[0]))
    L.append("v_mul_f32 v%d, v%d, v%d" % (vL[b], vL[b], vT[1]))
    for r in range(64):
        L.append("v_mul_f32 v%d, v%d, v%d" % (O(b, 0) + r, O(b, 0) + r, vT[1]))
    L += [x.t for x in sm_body(par, b)]
    L.append("s_nop 3")
    L.append("s_setpc_b64 s[%d:%d]" % (sRet, sRet + 1))
    return L

class Timeline:
    def __init__(self):
        self.m = []
        self.pre = []
        self.fix = []
        self.sm = []
    def add(self, ins):
        self.m.append(ins); self.pre.append([]); self.fix.append([]); self.sm.append([])
        return len(self.m) - 1
    def cost(self, g):
        c = sum(x.c for x in self.fix[g]) + sum(x.c for x in self.sm[g])
        if g + 1 < len(self.m): c += sum(x.c for x in self.pre[g + 1])
        return c
    def pour(self, stream, a, b):
        base = [self.cost(g) for g in range(a, b)]
        for L in range(4, 4000):
            place = []; g = 0; cur = base[0]; ok = True
            for x in stream:
                while cur + x.c > L:
                    g += 1
                    if g >= b - a: ok = False; break
                    cur = base[g]
                if not ok: break
                place.append(g); cur += x.c
            if ok: break
        for x, g in zip(stream, place):
            self.sm[a + g].append(x)
        return L
    def gap_text(self, g):
        out = []
        fx = list(self.fix[g]); sm = list(self.sm[g])
        first = [x for x in fx if x.k in ("wait", "bar", "stamp")]
        mid = [x for x in fx if x.k in ("ds",)]
        last = [x for x in fx if x.k not in ("wait", "bar", "ds", "stamp")]
        out += first
        while mid or sm:
            if sm: out.append(sm.pop(0))
            if mid: out.append(mid.pop(0))
        out += last
        return out

def stamp(cfg, idx):
    if not cfg.stamps or idx >= cfg.stamps: return []
    r = sStamp + 2 * idx
    if r + 1 > 101: return []
    op = "s_memrealtime" if idx < 2 else "s_memtime"
    return [I("%s s[%d:%d]" % (op, r, r + 1), 4, "stamp")]

def build(cfg):
    L = []
    A = L.append
    A("; @launch grid=(256,1,1) block=(256,1,1) lds=%d" % LDS_BYTES)
    A('.amdgcn_target "amdgcn-amd-amdhsa--gfx950"')
    A(".text")
    A(".globl %s_kernel" % NAME)
    A(".p2align 8")
    A(".type %s_kernel,@function" % NAME)
    A("%s_kernel:" % NAME)
    A("s_cmp_ge_u32 s2, 256")
    A("s_cbranch_scc1 L_end")
    A("s_load_dwordx4 s[4:7], s[0:1], 0")
    A("s_load_dwordx4 s[40:43], s[0:1], 16")
    for x in stamp(cfg, 0): A(x.t)
    for x in stamp(cfg, 2): A(x.t)
    if cfg.stamps: A("s_load_dwordx2 s[44:45], s[0:1], 40")
    A("v_lshrrev_b32 v%d, 6, v0" % vT[0])
    A("v_and_b32 v%d, 63, v0" % vLane)
    A("v_readfirstlane_b32 s%d, v%d" % (sW, vT[0]))
    A("v_lshlrev_b32 v%d, 4, v0" % vDma[0])
    for j in range(1, 4):
        A("v_add_u32 v%d, %d, v%d" % (vDma[j], 3056 * j, vDma[0]))
    A("s_mul_i32 s%d, s%d, %d" % (sWoff, sW, 4 * BLK))
    A("s_lshl_b32 s%d, s2, 16" % sTmp)
    A("s_lshl_b32 s%d, s2, 18" % (sTmp + 1))
    A("s_mov_b32 s%d, 65536" % (sSrdQ + 2)); A("s_mov_b32 s%d, 0x20000" % (sSrdQ + 3))
    A("s_mov_b32 s%d, 262144" % (sSrdK + 2)); A("s_mov_b32 s%d, 0x20000" % (sSrdK + 3))
    A("s_mov_b32 s%d, 262144" % (sSrdV + 2)); A("s_mov_b32 s%d, 0x20000" % (sSrdV + 3))
    A("s_mov_b32 s%d, 65536" % (sSrdO + 2)); A("s_mov_b32 s%d, 0x20000" % (sSrdO + 3))
    for j in range(1, 4): A("s_mov_b32 s%d, %d" % (sK16[j], 16384 * j))
    A("s_waitcnt lgkmcnt(0)")
    for (sr, p, t) in ((sSrdK, 6, sTmp + 1), (sSrdQ, 4, sTmp), (sSrdV, 40, sTmp + 1), (sSrdO, 42, sTmp)):
        A("s_add_u32 s%d, s%d, s%d" % (sr, p, t))
        A("s_addc_u32 s%d, s%d, 0" % (sr + 1, p + 1))
        A("s_and_b32 s%d, s%d, 0xffff" % (sr + 1, sr + 1))
    def emit_dma(srdreg, slot, soff):
        if cfg.nodma: return
        for g in dma(cfg, srdreg, slot, soff):
            for x in g: A(x.t)
    emit_dma(sSrdK, kslot(0), "0")
    A("s_mul_i32 s%d, s%d, %d" % (sTmp + 2, sW, SLOT))
    for jj in range(4):
        A("s_add_u32 m0, s%d, %d" % (sTmp + 2, 5 * SLOT + 4 * BLK * jj))
        A("s_nop 0")
        for j in range(4):
            A("buffer_load_dwordx4 v%d, %s, %s offen offset:%d%s lds" % (vDma[j], srd(sSrdQ), "0" if jj == 0 else "s%d" % sK16[jj], BLK * j, cfg.ld_pol))
    emit_dma(sSrdV, vslot(0), "0")
    emit_dma(sSrdK, kslot(1), "s%d" % sK16[1])
    emit_dma(sSrdV, vslot(1), "s%d" % sK16[1])
    emit_dma(sSrdK, kslot(2), "s%d" % sK16[2])
    t0, t1, t2, t3 = vT[0], vT[1], vT[2], vT[3]
    A("v_and_b32 v%d, 15, v%d" % (t0, vLane))
    A("v_mul_u32_u24 v%d, %d, v%d" % (t0, BLK, t0))
    A("v_bfe_u32 v%d, v%d, 4, 1" % (t1, vLane))
    A("v_lshl_add_u32 v%d, v%d, 8, v%d" % (t0, t1, t0))
    A("v_lshrrev_b32 v%d, 5, v%d" % (t2, vLane))
    A("v_lshl_add_u32 v%d, v%d, 4, v%d" % (vKrd[0], t2, t0))
    A("v_add_u32 v%d, %d, v%d" % (vKrd[1], 4 * SLOT, vKrd[0]))
    A("v_add_u32 v%d, s%d, v%d" % (vQrd, sTmp + 2, vKrd[0]))
    A("v_add_u32 v%d, %d, v%d" % (vQrd, 5 * SLOT, vQrd))
    A("v_lshl_add_u32 v%d, v%d, 7, v%d" % (vOw, t2, t0))
    A("v_add_u32 v%d, s%d, v%d" % (vOw, sTmp + 2, vOw))
    A("v_bfe_u32 v%d, v%d, 2, 2" % (t0, vLane))
    A("v_lshl_add_u32 v%d, v%d, 2, v%d" % (t0, t2, t0))
    A("v_mul_u32_u24 v%d, %d, v%d" % (t0, BLK, t0))
    A("v_lshl_add_u32 v%d, v%d, 6, v%d" % (t0, t1, t0))
    A("v_and_b32 v%d, 1, v%d" % (t3, vLane))
    A("v_lshl_add_u32 v%d, v%d, 7, v%d" % (t0, t3, t0))
    A("v_bfe_u32 v%d, v%d, 1, 1" % (t3, vLane))
    A("v_lshl_add_u32 v%d, v%d, 3, v%d" % (vVrd[0], t3, t0))
    A("v_add_u32 v%d, %d, v%d" % (vVrd[1], 4 * SLOT, vVrd[0]))
    A("v_and_b32 v%d, 31, v%d" % (t0, vLane))
    A("v_lshlrev_b32 v%d, 4, v%d" % (t0, t0))
    A("v_mul_u32_u24 v%d, %d, v%d" % (t1, BLK, t2))
    A("v_add3_u32 v%d, v%d, v%d, s%d" % (vOr, t0, t1, sTmp + 2))
    A("s_lshl_b32 s%d, s%d, 10" % (sTmp + 3, sW))
    A("v_lshl_add_u32 v%d, v%d, 12, v%d" % (vOst, t2, t0))
    A("v_add_u32 v%d, s%d, v%d" % (vOst, sTmp + 3, vOst))
    A("s_mov_b32 s%d, 0x%08x" % (sC, f2u(1.4426950408889634 * 128 ** -0.5)))
    A("s_mov_b32 s%d, 0x%08x" % (sThr, f2u(cfg.thresh)))
    A("s_mov_b32 s%d, %d" % (sOff, 3 * 16384))
    for r in range(128):
        A("v_mov_b32 v%d, 0" % (128 + r))
    A("s_waitcnt vmcnt(16)")
    for x in stamp(cfg, 3): A(x.t)
    for b in range(2):
        for s in range(8):
            A("ds_read_b128 %s, v%d offset:%d" % (ar(Qa(b, s), 4), vQrd, 512 * b + 32 * s))
    A("s_waitcnt lgkmcnt(0)")
    A("s_barrier")
    for x in k_reads(0): A(x.t)
    emit_dma(sSrdV, vslot(2), "s%d" % sK16[2])
    emit_dma(sSrdK, kslot(3), "s%d" % sK16[3])

    T = Timeline()
    tile_start = {}
    g0 = None
    for b in range(2):
        for s in range(8):
            g = T.add(mfma_qk(0, b, s))
            if g0 is None: g0 = g
    T.pre[g0].append(I("s_waitcnt lgkmcnt(0)", 4, "wait"))
    for j, x in enumerate(k_reads(1)):
        T.fix[g0 + j].append(x)
    pstart = {}
    for u in range(32):
        p = len(T.m); pstart[u] = p
        if u < 31:
            for b in range(2):
                for s in range(8): T.add(mfma_qk(u + 1, b, s))
        pv = len(T.m)
        for b in range(2):
            for ks in range(2):
                for D in range(4): T.add(mfma_pv(u, b, ks, D))
        i = u // 2
        if u % 2 == 0: tile_start[i] = p
        if u < 31:
            T.pre[p].append(I("s_waitcnt lgkmcnt(0)", 4, "wait"))
            if u % 2 == 0:
                n = 0
                for (kind, idx) in (("V", i + 1), ("K", i + 2), ("V", i + 2), ("K", i + 3)):
                    if idx < 16: n += 4
                T.fix[p].append(I("s_waitcnt vmcnt(%d)" % n, 4, "wait"))
                T.fix[p].append(I("s_barrier", 4, "bar"))
                if not cfg.loop:
                    T.fix[p] += stamp(cfg, 4 + i)
            vr_ = v_reads(u)
            gaps = [1, 1, 2, 3, 4, 5, 5, 6, 7, 8, 9, 9, 10, 11, 12, 13]
            for x, g in zip(vr_, gaps): T.fix[p + g].append(x)
        T.pre[pv].append(I("s_waitcnt lgkmcnt(0)", 4, "wait"))
        if u + 2 < 32:
            for j, x in enumerate(k_reads(u + 2)): T.fix[pv + 2 * j if j < 7 else pv + 13].append(x)
        elif u == 30:
            for j, x in enumerate(v_reads(31)): T.fix[pv + (j * 13) // 16].append(x)
        if not cfg.nodma:
            if u % 2 == 0 and i + 3 < 16:
                for g, grp in zip(cfg.dma_gaps, dma(cfg, sSrdV, vslot(i + 3), "s%d" % sOff)):
                    T.fix[p + g] += grp
                T.fix[p + cfg.dma_gaps[3] + 1].append(I("s_add_u32 s%d, s%d, 16384" % (sOff, sOff), 4, "salu"))
            if u % 2 == 1 and i + 4 < 16:
                for g, grp in zip(cfg.dma_gaps, dma(cfg, sSrdK, kslot(i + 4), "s%d" % sOff)):
                    T.fix[p + g] += grp
    nm = len(T.m)
    stubs = []
    def tagof(u, b):
        if cfg.loop and 1 <= u <= 24 and not (u == 24 and b == 1) :
            pass
        return "%d_%d" % (u, b)
    levels = []
    st = sm_stream(cfg, 0, 0, None)
    T.fix[g0 + 8].append(I("s_nop 4", 20, "wait"))
    T.fix[g0 + 9].append(I("s_nop 4", 20, "wait"))
    levels.append(T.pour(st, g0 + 10, g0 + 16))
    st = sm_stream(cfg, 0, 1, None)
    T.first1 = st
    for u in range(0, 31):
        p = pstart[u]
        levels.append(T.pour(sm_stream(cfg, u + 1, 0, tagof(u + 1, 0)), p + 10, p + 26)); stubs.append((u + 1, 0))
    for u in range(0, 31):
        p = pstart[u]
        end = p + 42 if u < 30 else p + 32 + 7
        levels.append(T.pour(sm_stream(cfg, u + 1, 1, tagof(u + 1, 1)), p + 26, end)); stubs.append((u + 1, 1))
    ref = []
    for g in range(10): ref.append(len(T.sm[pstart[2] + g]))
    ntail = sum(ref)
    st = T.first1
    body_tail = st[-(ntail - 2):]
    head = st[:len(st) - (ntail - 2)]
    T.fix[g0 + 15].append(I("s_nop 7", 32, "wait"))
    T.sm[g0 + 15] += head
    T.pour(body_tail, pstart[0], pstart[0] + 10)

    def epi_scale(b):
        out = []
        t = vT[2 + 2 * b]; t2 = vT[3 + 2 * b]
        out.append(I("v_mov_b32 v%d, v%d" % (t, vL[b]), 4, "valu"))
        out.append(I("s_nop 1", 8, "nop"))
        out.append(I("v_permlane32_swap_b32 v%d, v%d" % (vL[b], t), 4, "valu"))
        out.append(I("s_nop 0", 4, "nop"))
        out.append(I("v_add_f32 v%d, v%d, v%d" % (t, vL[b], t), 4, "valu"))
        out.append(I("v_rcp_f32 v%d, v%d" % (t, t), 8, "trans"))
        out.append(I("s_nop 0", 4, "nop"))
        return out, t
    def epi_conv(b, inv):
        out = []
        for D in range(4):
            o = O(b, D)
            for r in range(16):
                out.append(I("v_mul_f32 v%d, v%d, v%d" % (o + r, o + r, inv), 4, "valu"))
            for half in range(2):
                for k in range(4):
                    out.append(I("v_cvt_pk_bf16_f32 v%d, v%d, v%d" % (o + 8 * half + k, o + 8 * half + 2 * k, o + 8 * half + 2 * k + 1), 4, "valu"))
                out.append(I("ds_write_b128 v%d, %s offset:%d" % (vOw, vr(o + 8 * half, 4), 512 * b + 64 * half + 16 * D), 4, "dsw"))
        return out
    def epi_store(b):
        out = []
        out.append(I("s_waitcnt lgkmcnt(0)"))
        for x in range(8):
            out.append(I("ds_read_b128 %s, v%d offset:%d" % (vr(vStage + 4 * x, 4), vOr, 2 * BLK * x + 512 * b)))
        for x in range(8):
            if x: out.append(I("s_mov_b32 s%d, %d" % (sTmp, 8192 * x)))
            out.append(I("s_waitcnt lgkmcnt(%d)" % (7 - x)))
            out.append(I("buffer_store_dwordx4 %s, v%d, %s, %s offen offset:%d%s" % (vr(vStage + 4 * x, 4), vOst, srd(sSrdO), "s%d" % sTmp if x else "0", 512 * b, cfg.st_pol)))
        return out
    p31 = pstart[31]
    sc0, inv0 = epi_scale(0)
    T.pour(sc0, p31 + 7, p31 + 10)
    conv0 = epi_conv(0, inv0)
    ncov = 30
    T.pour(conv0[:ncov], p31 + 11, p31 + 16)
    tail = conv0[ncov:]
    sc1, inv1 = epi_scale(1)
    tail = sc1 + tail + epi_store(0) + epi_conv(1, inv1) + epi_store(1)

    def emit_range(a, b):
        out = []
        for g in range(a, b):
            out += [x.t for x in T.pre[g]]
            out.append(T.m[g].t)
            out += [x.t for x in T.gap_text(g)]
        return out
    if not cfg.loop:
        L += emit_range(0, nm)
    else:
        raise SystemExit("loop mode not yet")
    for x in stamp(cfg, 20): A(x.t)
    L += [x.t for x in tail]
    if cfg.stamps:
        A("s_waitcnt vmcnt(0)")
        for x in stamp(cfg, 21): A(x.t)
        for x in stamp(cfg, 1): A(x.t)
        A("s_waitcnt lgkmcnt(0)")
        A("s_lshl_b32 s%d, s2, 2" % sTmp)
        A("s_add_u32 s%d, s%d, s%d" % (sTmp, sTmp, sW))
        A("s_lshl_b32 s%d, s%d, 8" % (sTmp, sTmp))
        A("v_mov_b32 v%d, s%d" % (vT[0], sTmp))
        for k in range(min(cfg.stamps, (102 - sStamp) // 2)):
            A("v_mov_b32 v%d, s%d" % (vT[2], sStamp + 2 * k))
            A("v_mov_b32 v%d, s%d" % (vT[3], sStamp + 2 * k + 1))
            A("global_store_dwordx2 v%d, v[%d:%d], s[44:45] offset:%d" % (vT[0], vT[2], vT[3], 8 * k))
            A("s_nop 1")
    A("L_end:")
    A("s_endpgm")
    for (u, b) in stubs:
        tg = tagof(u, b)
        A("L_stub_%s:" % tg)
        A("s_call_b64 s[%d:%d], L_rare_%d_%d" % (sRet, sRet + 1, u & 1, b))
        A("s_branch L_ret_%s" % tg)
    for par in range(2):
        for b in range(2):
            L += rare_routine(par, b)
    A('.section .rodata,"a"')
    A(".p2align 6")
    A(".amdhsa_kernel %s_kernel" % NAME)
    A("  .amdhsa_next_free_vgpr 512")
    A("  .amdhsa_next_free_sgpr 102")
    A("  .amdhsa_accum_offset 256")
    A("  .amdhsa_group_segment_fixed_size 0")
    A("  .amdhsa_kernarg_size 48")
    A("  .amdhsa_user_sgpr_count 2")
    A("  .amdhsa_user_sgpr_kernarg_segment_ptr 1")
    A("  .amdhsa_system_sgpr_workgroup_id_x 1")
    A(".end_amdhsa_kernel")
    sys.stderr.write("levels: %s\n" % sorted(set(levels)))
    return "\n".join(L) + "\n"

if __name__ == "__main__":
    ap = argparse.ArgumentParser()
    ap.add_argument("-o", default="cdna_kernels/%s.s" % NAME)
    ap.add_argument("opts", nargs="*")
    a = ap.parse_args()
    cfg = Cfg()
    for o in a.opts:
        k, v = o.split("=")
        cur = getattr(cfg, k)
        if isinstance(cur, str): v = (" " + v.replace("+", " ")) if v else ""
        elif isinstance(cur, tuple): v = tuple(int(x) for x in v.split(","))
        elif isinstance(cur, float): v = float(v)
        else: v = int(v)
        setattr(cfg, k, v)
    open(a.o, "w").write(build(cfg))
```

```python
import sys, struct, argparse

NAME = "standalone__gqa_softmax__near_ridge"
SLOT = 16640
BLK = 1040
STAGE = 2 * SLOT
LDS_BYTES = 9 * SLOT

def f2u(x): return struct.unpack("<I", struct.pack("<f", x))[0]

class Cfg:
    stamps = 0
    dma_cost = 8
    ld_pol = " nt"
    st_pol = ""
    thresh = 2.0 ** 60
    vdma = (17, 22, 27, 32)
    kdma = (44, 60, 61, 62)
    cap = 24
    lat = 3
    pf = 0
    nodma = 0
    align = 6
    pad = 0

class I:
    def __init__(self, t, c=4, k="valu", w=None, need=None):
        self.t = t; self.c = c; self.k = k
        self.w = w
        self.need = need

def O(b, D): return 128 + 64 * b + 16 * D
def S(par, b): return 64 + 32 * par + 16 * b
def Qa(b, s): return 32 * b + 4 * s
def Ka(par, s): return 64 + 32 * par + 4 * s
def Va(par, u, D): return 128 + 32 * par + 16 * u + 4 * D
vLane = 1
vK, vKl, vV, vVl = 2, 3, 4, 5
vDma = (6, 7, 8, 9)
vMc = (10, 11)
vL = (12, 13)
vQrd, vOw, vOr, vOst = 16, 17, 18, 19
vT = (20, 21, 22, 23, 24, 25, 26, 27)
vStLo, vStRt = 28, 29
vStage = 32
sW = 3
sSrdQ, sSrdK, sSrdV, sSrdO = 8, 12, 16, 20
sC, sThr, sWoff, sOff, sCur, sNxt = 24, 25, 26, 27, 28, 29
sK16 = (None, 32, 33, 34)
sTmp = 36
sWslot = 46
sIt = 47
sStamp = 56

def vr(a, n): return "v[%d:%d]" % (a, a + n - 1)
def ar(a, n): return "a[%d:%d]" % (a, a + n - 1)
def srd(a): return "s[%d:%d]" % (a, a + 3)

def mfma_qk(u, b, s):
    par = u & 1
    d = vr(S(par, b), 16)
    return I("v_mfma_f32_32x32x16_bf16 %s, %s, %s, %s" % (d, ar(Ka(par, s), 4), ar(Qa(b, s), 4), "0" if s == 0 else d), 8, "mfma",
             need=[("K", u, s)])

def mfma_pv(u, b, ks, D):
    par = u & 1
    d = vr(O(b, D), 16)
    x = I("v_mfma_f32_32x32x16_bf16 %s, %s, %s, %s" % (d, ar(Va(par, ks, D), 4), vr(S(par, b) + 8 * ks, 4), d), 8, "mfma",
          need=[("V", u, ks, D, 0), ("V", u, ks, D, 1)])
    x.pneed = (u, b, ks)
    return x

def k_reads(u, areg=vK, base=0):
    kb = par = u & 1
    return [I("ds_read_b128 %s, v%d offset:%d" % (ar(Ka(par, s), 4), areg, base + 512 * kb + 32 * s), 4, "ds", w=("K", u, s)) for s in range(8)]

def v_reads(u, areg=vV, base=SLOT):
    kb = par = u & 1
    out = []
    for ks in range(2):
        for D in range(4):
            for e in range(2):
                out.append(I("ds_read_b64_tr_b16 %s, v%d offset:%d" % (ar(Va(par, ks, D) + 2 * e, 2), areg,
                            base + 8320 * e + 256 * (2 * kb + ks) + 16 * D), 4, "ds", w=("V", u, ks, D, e)))
    return out

def dma_ins(cfg, srdreg, j, soff, regs=vDma):
    return I("buffer_load_dwordx4 v%d, %s, %s offen offset:%d%s lds" % (regs[j], srd(srdreg), soff, BLK * j, cfg.ld_pol), cfg.dma_cost, "dma")

def sm_ins(kind, u, b, e):
    s = S(u & 1, b)
    if kind == "F": return I("v_fma_f32 v%d, v%d, s%d, -v%d" % (s + e, s + e, sC, vMc[b]), 4)
    if kind == "E": return I("v_exp_f32 v%d, v%d" % (s + e, s + e), 8, "trans")
    if kind == "A": return I("v_add_f32 v%d, v%d, v%d" % (vL[b], vL[b], s + e), 4)
    if kind == "C":
        d = s + e if e < 4 else s + 4 + e
        return I("v_cvt_pk_bf16_f32 v%d, v%d, v%d" % (d, s + 2 * e, s + 2 * e + 1), 4)

def sm_plain(u, b):
    out = []
    for j in range(10):
        for h in range(2):
            if j < 8: out.append(("F", 2 * j + h))
            if 1 <= j <= 8: out.append(("E", 2 * (j - 1) + h))
            if j >= 2: out.append(("A", 2 * (j - 2) + h))
        if j >= 2: out.append(("C", j - 2))
    return out

def max_chain(par, b, dst, t):
    s = S(par, b)
    out = ["v_max3_f32 v%d, v%d, v%d, v%d" % (dst, s, s + 1, s + 2)]
    for e in range(3, 15, 2):
        out.append("v_max3_f32 v%d, v%d, v%d, v%d" % (dst, dst, s + e, s + e + 1))
    out.append("v_max_f32 v%d, v%d, v%d" % (dst, dst, s + 15))
    out.append("v_mov_b32 v%d, v%d" % (t, dst))
    out.append("s_nop 1")
    out.append("v_permlane32_swap_b32 v%d, v%d" % (dst, t))
    out.append("v_max_f32 v%d, v%d, v%d" % (dst, dst, t))
    return out

class Gap:
    def __init__(self, m):
        self.m = m; self.salu = []; self.mem = []; self.valu = []; self.tail = []; self.block = 0
    def fixed_cost(self):
        c = 0
        for i, x in enumerate(self.salu):
            c += x.c - (4 if i == 0 else 0)
        c += sum(x.c for x in self.mem) + sum(x.c for x in self.valu) + sum(x.c for x in self.tail)
        return c
    def text(self):
        return [self.m.t] + [x.t for x in self.salu + self.mem + self.valu + self.tail]

class SM:
    def __init__(self, blocks):
        self.el = [(u, b, e, rel) for (u, b, rel) in blocks for e in range(16)]
        self.n = len(self.el)
        self.p = {"F": 0, "E": 0, "A": 0, "C": 0}
        self.at = {}
    def done(self): return self.p["C"] * 2 >= self.n
    def ready(self, kind, g):
        i = self.p[kind]
        if kind == "F": return i < self.n and self.el[i][3] <= g
        if kind == "E": return i < self.n and self.at.get(("F", i), 1 << 30) < g
        if kind == "A": return i < self.n and self.at.get(("E", i), 1 << 30) < g
        if kind == "C": return 2 * i < self.n and ("A", 2 * i + 1) in self.at
    def take(self, kind, g):
        i = self.p[kind]; self.p[kind] += 1; self.at[(kind, i)] = g
        if kind == "C":
            u, b, e, _ = self.el[2 * i]; x = sm_ins("C", u, b, e // 2); x.tag = (u, b, "C", e // 2)
        else:
            u, b, e, _ = self.el[i]; x = sm_ins(kind, u, b, e); x.tag = (u, b, kind, e)
        return x
    def fill(self, gap, g, cap):
        r = cap - gap.fixed_cost()
        out = []
        while True:
            pick = None
            lagFE = self.p["F"] - self.p["E"]
            order = ["C", "E", "A", "F"] if lagFE >= 2 else ["C", "F", "E", "A"]
            for k in order:
                c = 8 if k == "E" else 4
                if k == "F" and lagFE >= 4: continue
                if c <= r and self.ready(k, g): pick = k; break
            if pick is None: break
            x = self.take(pick, g); out.append(x); r -= x.c
        gap.valu += out

def add_waits(cfg, gaps, start_issued=None):
    issued = []
    covered = -1
    idx = {}
    for g, gp in enumerate(gaps):
        for x in gp.salu:
            if x.k == "wait0": covered = len(issued) - 1
        if g + 1 < len(gaps):
            need = [idx[t] for t in (gaps[g + 1].m.need or []) if t in idx]
            missing = [t for t in (gaps[g + 1].m.need or []) if t not in idx and not (start_issued and t in start_issued)]
            if missing: raise SystemExit("read not issued before use: %s gap %d" % (missing, g + 1))
            if need and max(need) > covered:
                tgt = max(need)
                if issued[tgt][1] > g - cfg.lat: sys.stderr.write("warn: short ds latency at gap %d (issued %d)\n" % (g, issued[tgt][1]))
                for j in range(len(issued)):
                    if issued[j][1] <= g - cfg.lat: tgt = max(tgt, j)
                n = len(issued) - 1 - tgt
                assert n <= 15
                gp.salu.insert(0, I("s_waitcnt lgkmcnt(%d)" % n, 4, "wait"))
                covered = tgt
        for x in gp.mem:
            if x.k == "ds":
                idx[x.w] = len(issued); issued.append((x.w, g))

def tile_gaps(cfg, i, last):
    G = []
    for u in (2 * i, 2 * i + 1):
        if not (last and u == 2 * i + 1):
            for b in range(2):
                for s in range(8): G.append(Gap(mfma_qk(u + 1, b, s)))
        for b in range(2):
            for ks in range(2):
                for D in range(4): G.append(Gap(mfma_pv(u, b, ks, D)))
    G[0].salu.append(I("s_waitcnt vmcnt(%d)" % (0 if last else 16), 4, "wait"))
    G[0].salu.append(I("s_barrier", 12, "bar"))
    if last:
        reads = v_reads(2 * i) + v_reads(2 * i + 1)
        free = list(range(1, 40))
    else:
        reads = v_reads(2 * i) + k_reads(2 * i + 2) + v_reads(2 * i + 1) + k_reads(2 * i + 3)
        dg = set(cfg.vdma) | set(cfg.kdma)
        free = [g for g in range(1, 60) if g not in dg]
    pos = {}
    for x, g in zip(reads, free):
        G[g].mem.append(x); pos[x.w] = g
    if last: return G
    lastV = pos[("V", 2 * i + 1, 1, 3, 1)]
    firstK = pos[("K", 2 * i + 2, 0)]
    G[2].salu.append(I("s_add_u32 s%d, s%d, %d" % (sNxt, sCur, STAGE), 4, "salu"))
    G[3].salu.append(I("s_cmp_eq_u32 s%d, %d" % (sNxt, 4 * STAGE), 4, "salu"))
    G[4].salu.append(I("s_cselect_b32 s%d, 0, s%d" % (sNxt, sNxt), 4, "salu"))
    assert firstK > 6
    G[5].valu.append(I("v_add_u32 v%d, s%d, v%d" % (vK, sNxt, vKl), 4))
    G[lastV + 1].valu.append(I("v_add_u32 v%d, s%d, v%d" % (vV, sNxt, vVl), 4))
    if not cfg.nodma:
        G[cfg.vdma[0] - 1].salu.append(I("s_add_u32 m0, m0, %d" % SLOT, 4, "salu"))
        for j, g in enumerate(cfg.vdma): G[g].mem.append(dma_ins(cfg, sSrdV, j, "s%d" % sOff))
    G[cfg.vdma[3] + 1].salu.append(I("s_add_u32 s%d, s%d, 16384" % (sOff, sOff), 4, "salu"))
    assert cfg.kdma[0] - 1 >= cfg.vdma[3] + 1
    if not cfg.nodma:
        G[cfg.kdma[0] - 1].salu.append(I("s_add_u32 m0, s%d, s%d" % (sCur, sWoff), 4, "salu"))
        for j, g in enumerate(cfg.kdma): G[g].mem.append(dma_ins(cfg, sSrdK, j, "s%d" % sOff))
    gm = max(cfg.kdma[0], lastV + 2)
    G[gm].salu.append(I("s_mov_b32 s%d, s%d" % (sCur, sNxt), 4, "salu"))
    G[61].salu.append(I("s_cmp_lt_u32 s%d, %d" % (sOff, 18 * 16384), 4, "salu"))
    if cfg.stamps:
        G[59].salu.append(I("s_memtime s[50:51]", 4, "salu"))
        G[60].salu.append(I("s_memrealtime s[52:53]", 4, "salu"))
        G[61].valu.append(I("v_cmp_eq_u32 vcc, s%d, v%d" % (sIt, vLane), 4))
        G[62].valu.append(I("v_mov_b32 v30, s50", 4))
        G[62].valu.append(I("v_mov_b32 v31, s52", 4))
        G[62].valu.append(I("v_cndmask_b32 v%d, v%d, v30, vcc" % (vStLo, vStLo), 4))
        G[62].valu.append(I("v_cndmask_b32 v%d, v%d, v31, vcc" % (vStRt, vStRt), 4))
        G[6].salu.append(I("s_add_u32 s%d, s%d, 1" % (sIt, sIt), 4, "salu"))
    G[62].salu.append(I("s_waitcnt lgkmcnt(0)", 4, "wait0"))
    G[63].salu.append(I("s_cbranch_scc1 L_loop", 28, "br"))
    return G

def epi_scale(b):
    t = vT[2 + 2 * b]
    return [I("v_mov_b32 v%d, v%d" % (t, vL[b])), I("s_nop 1", 8, "nop"), I("v_permlane32_swap_b32 v%d, v%d" % (vL[b], t)),
            I("v_add_f32 v%d, v%d, v%d" % (vL[b], vL[b], t)), I("v_rcp_f32 v%d, v%d" % (t, vL[b]), 8, "trans")], t

def epi_conv(b, inv, packed):
    out = []
    if packed: out.append(I("s_nop 0", 4, "nop"))
    for D in range(4):
        o = O(b, D)
        for half in range(2):
            if packed:
                for r in range(0, 8, 2):
                    a = o + 8 * half + r
                    out.append(I("v_pk_mul_f32 %s, %s, %s op_sel_hi:[1,0]" % (vr(a, 2), vr(a, 2), vr(inv, 2))))
            else:
                for r in range(8):
                    a = o + 8 * half + r
                    out.append(I("v_mul_f32 v%d, v%d, v%d" % (a, a, inv)))
            for k in range(4):
                out.append(I("v_cvt_pk_bf16_f32 v%d, v%d, v%d" % (o + 8 * half + k, o + 8 * half + 2 * k, o + 8 * half + 2 * k + 1)))
            out.append(I("ds_write_b128 v%d, %s offset:%d" % (vOw, vr(o + 8 * half, 4), 512 * b + 64 * half + 16 * D), 12, "dsw"))
    return out

def epi_read(b):
    out = [I("s_waitcnt lgkmcnt(0)")]
    for x in range(8):
        out.append(I("ds_read_b128 %s, v%d offset:%d" % (vr(vStage + 32 * b + 4 * x, 4), vOr, 2 * BLK * x + 512 * b)))
    return out

def epi_store(cfg, b, counted):
    out = []
    if not counted: out.append(I("s_waitcnt lgkmcnt(0)"))
    for x in range(8):
        if x: out.append(I("s_mov_b32 s%d, %d" % (sTmp, 8192 * x)))
        if counted: out.append(I("s_waitcnt lgkmcnt(%d)" % (7 - x)))
        out.append(I("buffer_store_dwordx4 %s, v%d, %s, %s offen offset:%d%s" % (vr(vStage + 32 * b + 4 * x, 4), vOst, srd(sSrdO), "s%d" % sTmp if x else "0", 512 * b, cfg.st_pol)))
    return out

def fallback(cfg):
    L = []; A = L.append
    A("L_fallback:")
    A("s_nop 15"); A("s_nop 15")
    A("s_waitcnt vmcnt(0) lgkmcnt(0)")
    fd = (28, 29, 30, 31)
    A("v_lshlrev_b32 v%d, 4, v%d" % (fd[0], vLane))
    for j in range(1, 4): A("v_add_u32 v%d, %d, v%d" % (fd[j], 3056 * j, fd[0]))
    A("s_add_u32 s48, s%d, 4" % sW)
    A("s_cmp_eq_u32 s48, 7")
    A("s_cselect_b32 s48, 8, s48")
    A("s_mul_i32 s48, s48, %d" % SLOT)
    A("v_add_u32 v%d, s48, v%d" % (vK, vKl))
    A("v_add_u32 v%d, s%d, v%d" % (vV, sWslot, vVl))
    for r in range(128): A("v_mov_b32 v%d, 0" % (128 + r))
    for b in range(2):
        A("v_mov_b32 v%d, 0" % vL[b]); A("v_mov_b32 v%d, 0xff7fffff" % vMc[b])
    A("s_mov_b32 s%d, 0" % sOff)
    A("L_fb_loop:")
    for (sr, base) in ((sSrdK, 48), (sSrdV, sWslot)):
        for jj in range(4):
            A("s_add_u32 m0, s%d, %d" % (base, 4 * BLK * jj))
            A("s_add_u32 s49, s%d, %d" % (sOff, 1024 * jj))
            for j in range(4): A(dma_ins(cfg, sr, j, "s49", fd).t)
    A("s_waitcnt vmcnt(0)")
    for u in range(2):
        for x in k_reads(u, vK, 0): A(x.t)
        A("s_waitcnt lgkmcnt(0)")
        for x in v_reads(u, vV, 0): A(x.t)
        for b in range(2):
            for s in range(8): A(mfma_qk(u, b, s).t)
        A("s_nop 15")
        for b in range(2):
            L += max_chain(u, b, vT[0], vT[1])
            A("v_mul_f32 v%d, s%d, v%d" % (vT[0], sC, vT[0]))
            A("v_max_f32 v%d, v%d, v%d" % (vT[0], vT[0], vMc[b]))
            A("v_sub_f32 v%d, v%d, v%d" % (vT[1], vMc[b], vT[0]))
            A("v_exp_f32 v%d, v%d" % (vT[1], vT[1]))
            A("v_mov_b32 v%d, v%d" % (vMc[b], vT[0]))
            A("v_mul_f32 v%d, v%d, v%d" % (vL[b], vL[b], vT[1]))
            for r in range(64): A("v_mul_f32 v%d, v%d, v%d" % (O(b, 0) + r, O(b, 0) + r, vT[1]))
            for (k, e) in sm_plain(u, b): A(sm_ins(k, u, b, e).t)
        A("s_waitcnt lgkmcnt(0)")
        A("s_nop 1")
        for b in range(2):
            for ks in range(2):
                for D in range(4): A(mfma_pv(u, b, ks, D).t)
        A("s_nop 15")
    A("s_add_u32 s%d, s%d, 16384" % (sOff, sOff))
    A("s_cmp_lt_u32 s%d, 262144" % sOff)
    A("s_cbranch_scc1 L_fb_loop")
    for b in range(2):
        sc, inv = epi_scale(b)
        L += [x.t for x in sc + [I("s_nop 0")] + epi_conv(b, inv, False) + epi_read(b) + epi_store(cfg, b, False)]
    A("s_endpgm")
    return L

def stamp(cfg, idx):
    if not cfg.stamps: return []
    r = sStamp + 2 * idx
    return ["%s s[%d:%d]" % ("s_memrealtime" if idx < 2 else "s_memtime", r, r + 1)]

def build(cfg):
    L = []; A = L.append
    A("; @launch grid=(256,1,1) block=(256,1,1) lds=%d" % LDS_BYTES)
    A('.amdgcn_target "amdgcn-amd-amdhsa--gfx950"')
    A(".text"); A(".globl %s_kernel" % NAME); A(".p2align 8"); A(".type %s_kernel,@function" % NAME)
    A("%s_kernel:" % NAME)
    A("s_cmp_ge_u32 s2, 256")
    A("s_cbranch_scc1 L_end")
    A("s_load_dwordx4 s[4:7], s[0:1], 0")
    A("s_load_dwordx4 s[40:43], s[0:1], 16")
    L += stamp(cfg, 0) + stamp(cfg, 2)
    if cfg.stamps: A("s_load_dwordx2 s[44:45], s[0:1], 40")
    A("v_lshrrev_b32 v%d, 6, v0" % vT[0])
    A("v_and_b32 v%d, 63, v0" % vLane)
    A("v_readfirstlane_b32 s%d, v%d" % (sW, vT[0]))
    A("v_lshlrev_b32 v%d, 4, v0" % vDma[0])
    npf = 0
    if cfg.pf:
        A("s_getpc_b64 s[48:49]")
        for j in range(0, cfg.pf, 4):
            if j: A("v_add_u32 v%d, %d, v%d" % (vT[1], 1024 * j, vDma[0]))
            A("global_load_dwordx4 v[%d:%d], v%d, s[48:49]" % (vStage + j, vStage + j + 3, vT[1] if j else vDma[0]))
            npf += 1
    for j in range(1, 4): A("v_add_u32 v%d, %d, v%d" % (vDma[j], 3056 * j, vDma[0]))
    A("s_mul_i32 s%d, s%d, %d" % (sWoff, sW, 4 * BLK))
    A("s_mul_i32 s%d, s%d, %d" % (sWslot, sW, SLOT))
    A("s_lshl_b32 s%d, s2, 16" % sTmp)
    A("s_lshl_b32 s%d, s2, 18" % (sTmp + 1))
    for sr, n in ((sSrdQ, 65536), (sSrdK, 262144), (sSrdV, 262144), (sSrdO, 65536)):
        A("s_mov_b32 s%d, %d" % (sr + 2, n)); A("s_mov_b32 s%d, 0x20000" % (sr + 3))
    for j in range(1, 4): A("s_mov_b32 s%d, %d" % (sK16[j], 16384 * j))
    A("s_waitcnt lgkmcnt(0)")
    for (sr, p, t) in ((sSrdK, 6, sTmp + 1), (sSrdQ, 4, sTmp), (sSrdV, 40, sTmp + 1), (sSrdO, 42, sTmp)):
        A("s_add_u32 s%d, s%d, s%d" % (sr, p, t))
        A("s_addc_u32 s%d, s%d, 0" % (sr + 1, p + 1))
        A("s_and_b32 s%d, s%d, 0xffff" % (sr + 1, sr + 1))
    def emit_dma(srdreg, slot, soff):
        A("s_add_u32 m0, s%d, %d" % (sWoff, slot * SLOT))
        A("s_nop 0")
        for j in range(4): A(dma_ins(cfg, srdreg, j, soff).t)
    emit_dma(sSrdK, 0, "0")
    for jj in range(4):
        A("s_add_u32 m0, s%d, %d" % (sWslot, 5 * SLOT + 4 * BLK * jj))
        A("s_nop 0")
        for j in range(4): A(dma_ins(cfg, sSrdQ, j, "0" if jj == 0 else "s%d" % sK16[jj]).t)
    emit_dma(sSrdV, 1, "0")
    emit_dma(sSrdK, 2, "s%d" % sK16[1])
    emit_dma(sSrdV, 3, "s%d" % sK16[1])
    emit_dma(sSrdK, 4, "s%d" % sK16[2])
    t0, t1, t2, t3 = vT[0], vT[1], vT[2], vT[3]
    A("v_and_b32 v%d, 15, v%d" % (t0, vLane))
    A("v_mul_u32_u24 v%d, %d, v%d" % (t0, BLK, t0))
    A("v_bfe_u32 v%d, v%d, 4, 1" % (t1, vLane))
    A("v_lshl_add_u32 v%d, v%d, 8, v%d" % (t0, t1, t0))
    A("v_lshrrev_b32 v%d, 5, v%d" % (t2, vLane))
    A("v_lshl_add_u32 v%d, v%d, 4, v%d" % (vKl, t2, t0))
    A("v_add_u32 v%d, s%d, v%d" % (vQrd, sWslot, vKl))
    A("v_add_u32 v%d, %d, v%d" % (vQrd, 5 * SLOT, vQrd))
    A("v_lshl_add_u32 v%d, v%d, 7, v%d" % (vOw, t2, t0))
    A("v_add_u32 v%d, s%d, v%d" % (vOw, sWslot, vOw))
    A("v_bfe_u32 v%d, v%d, 2, 2" % (t0, vLane))
    A("v_lshl_add_u32 v%d, v%d, 2, v%d" % (t0, t2, t0))
    A("v_mul_u32_u24 v%d, %d, v%d" % (t0, BLK, t0))
    A("v_lshl_add_u32 v%d, v%d, 6, v%d" % (t0, t1, t0))
    A("v_and_b32 v%d, 1, v%d" % (t3, vLane))
    A("v_lshl_add_u32 v%d, v%d, 7, v%d" % (t0, t3, t0))
    A("v_bfe_u32 v%d, v%d, 1, 1" % (t3, vLane))
    A("v_lshl_add_u32 v%d, v%d, 3, v%d" % (vVl, t3, t0))
    A("v_mov_b32 v%d, v%d" % (vV, vVl))
    A("v_and_b32 v%d, 31, v%d" % (t0, vLane))
    A("v_lshlrev_b32 v%d, 4, v%d" % (t0, t0))
    A("v_mul_u32_u24 v%d, %d, v%d" % (t1, BLK, t2))
    A("v_add3_u32 v%d, v%d, v%d, s%d" % (vOr, t0, t1, sWslot))
    A("s_lshl_b32 s%d, s%d, 10" % (sTmp + 3, sW))
    A("v_lshl_add_u32 v%d, v%d, 12, v%d" % (vOst, t2, t0))
    A("v_add_u32 v%d, s%d, v%d" % (vOst, sTmp + 3, vOst))
    A("s_mov_b32 s%d, 0x%08x" % (sC, f2u(1.4426950408889634 * 128 ** -0.5)))
    A("s_mov_b32 s%d, 0x%08x" % (sThr, f2u(cfg.thresh)))
    A("s_mov_b32 s%d, %d" % (sOff, 3 * 16384))
    A("s_mov_b32 s%d, 0" % sCur)
    A("s_mov_b32 s%d, -1" % sIt)
    A("v_mov_b32 v%d, 0" % vL[0]); A("v_mov_b32 v%d, 0" % vL[1])
    if cfg.stamps: A("v_mov_b32 v%d, 0" % vStLo); A("v_mov_b32 v%d, 0" % vStRt)
    for r in range(128): A("v_mov_b32 v%d, 0" % (128 + r))
    A("s_waitcnt vmcnt(16)")
    L += stamp(cfg, 3)
    for b in range(2):
        for s in range(8):
            A("ds_read_b128 %s, v%d offset:%d" % (ar(Qa(b, s), 4), vQrd, 512 * b + 32 * s))
    A("s_waitcnt lgkmcnt(0)")
    A("s_barrier")
    for x in k_reads(0, vKl, 0): A(x.t)
    emit_dma(sSrdV, 5, "s%d" % sK16[2])
    emit_dma(sSrdK, 6, "s%d" % sK16[3])

    NT = 6
    G = []
    for i in range(NT): G += tile_gaps(cfg, i, False)
    add_waits(cfg, G, start_issued={("K", 1, s) for s in range(8)})
    blocks = []
    for u in range(1, 2 * NT + 1):
        base = 32 * (u - 1)
        blocks += [(u, 0, base + 10), (u, 1, base + 18)]
    sm = SM(blocks)
    for g, gp in enumerate(G): sm.fill(gp, g, cfg.cap)
    ref = 4
    body = G[64 * ref:64 * ref + 64]
    prev = G[64 * (ref - 1):64 * ref]
    assert [x.text() for x in body] == [x.text() for x in prev], "schedule not periodic"
    for g, gp in enumerate(G[:64 * (NT - 1)]):
        if hasattr(gp.m, "pneed"):
            u, b, ks = gp.m.pneed
            if u == 0: continue
            ci = ((u - 1) * 32 + b * 16) // 2 + 4 * ks + 3
            assert sm.at[("C", ci)] < g - 1, "P late"
    costs = [gp.fixed_cost() for gp in body]
    sys.stderr.write("gap costs: %s\n over cap: %d\n" % (costs, sum(max(0, c - 24) for c in costs)))
    u0 = 2 * ref
    pend = [x.tag for gp in body for x in gp.valu if hasattr(x, "tag") and x.tag[0] == u0]
    assert not [1 for gp in body for x in gp.valu if hasattr(x, "tag") and x.tag[0] < u0]
    pendset = {(b, k, e) for (_, b, k, e) in pend}

    A("s_waitcnt lgkmcnt(0)")
    kr1 = k_reads(1, vKl, 0)
    for s in range(8):
        A(mfma_qk(0, 0, s).t); A(kr1[s].t)
    pro0 = max_chain(0, 0, vT[0], vT[1]) + ["v_mul_f32 v%d, s%d, v%d" % (vMc[0], sC, vT[0])]
    pro0 += [sm_ins(k, 0, 0, e).t for (k, e) in sm_plain(0, 0) if (0, k, e) not in pendset]
    for s in range(8):
        A(mfma_qk(0, 1, s).t)
        if s < 2: A("s_nop 4")
        else:
            n = 6 if s < 7 else len(pro0)
            L += pro0[:n]; pro0 = pro0[n:]
    L += max_chain(0, 1, vT[0], vT[1]) + ["v_mul_f32 v%d, s%d, v%d" % (vMc[1], sC, vT[0])]
    p1 = [(k, e) for (k, e) in sm_plain(0, 1) if (1, k, e) not in pendset]
    last = None
    for (k, e) in p1:
        if last and last[0] == "E" and ((k == "A" and e == last[1]) or (k == "C" and last[1] // 2 == e)): A("s_nop 0")
        A(sm_ins(k, 0, 1, e).t); last = (k, e)
    A("s_waitcnt lgkmcnt(0)")
    L += stamp(cfg, 4)
    if cfg.stamps: A("s_waitcnt lgkmcnt(0)")
    if cfg.align:
        A(".p2align %d" % cfg.align)
    for _ in range(cfg.pad): A("s_nop 0")
    A("L_loop:")
    for gp in body: L += gp.text()

    U = 30
    GL = tile_gaps(cfg, 15, True)
    add_waits(cfg, GL, start_issued={("K", 31, s) for s in range(8)})
    sml = SM([(U, 0, -100), (U, 1, -100), (U + 1, 0, 10), (U + 1, 1, 18)])
    done = {"F": 0, "E": 0, "A": 0, "C": 0}
    for k in "FEA":
        n = 0
        while n < 32 and (n // 16, k, n % 16) not in pendset: sml.at[(k, n)] = -1; n += 1
        sml.p[k] = n
    n = 0
    while n < 16 and (n // 8, "C", n % 8) not in pendset: sml.at[("C", n)] = -1; n += 1
    sml.p["C"] = n
    sc0, inv0 = epi_scale(0); sc1, inv1 = epi_scale(1)
    chk = [I("v_cmp_nge_f32 vcc, s%d, v%d" % (sThr, vL[0])), I("v_cmp_nge_f32 s[48:49], s%d, v%d" % (sThr, vL[1])),
           I("s_or_b64 vcc, vcc, s[48:49]", 4, "salu"), I("s_cbranch_vccnz L_fallback", 24, "br")]
    extra = sc0 + sc1 + chk + epi_conv(0, inv0, False)
    nfirst = len(sc0 + sc1 + chk)
    k = 0
    for g, gp in enumerate(GL):
        if not sml.done():
            sml.fill(gp, g, cfg.cap)
        if sml.done() and sml.at[("C", 31)] < g:
            r = cfg.cap - gp.fixed_cost()
            while extra and extra[0].c <= r and (k < nfirst or g >= 42):
                x = extra.pop(0); gp.valu.append(x); r -= x.c; k += 1
    assert sml.done()
    for g, gp in enumerate(GL):
        if hasattr(gp.m, "pneed"):
            u, b, ks = gp.m.pneed
            ci = ((u - U) * 32 + b * 16) // 2 + 4 * ks + 3
            assert sml.at[("C", ci)] < g - 1, "P late in tail %d" % g
    sys.stderr.write("tail: SM done at gap %d, epilogue instrs left %d\n" % (sml.at[("C", 31)], len(extra)))
    for gp in GL: L += gp.text()
    L += stamp(cfg, 5)
    tail = extra + epi_read(0)
    c1 = epi_conv(1, inv1, True)
    st0 = epi_store(cfg, 0, False)
    tail += c1[:10] + st0 + c1[10:] + epi_read(1) + epi_store(cfg, 1, True)
    L += [x.t for x in tail]
    if cfg.stamps:
        A("s_waitcnt vmcnt(0)")
        L += stamp(cfg, 6) + stamp(cfg, 1)
        A("s_waitcnt lgkmcnt(0)")
        A("s_lshl_b32 s%d, s2, 2" % sTmp)
        A("s_add_u32 s%d, s%d, s%d" % (sTmp, sTmp, sW))
        A("s_lshl_b32 s%d, s%d, 8" % (sTmp, sTmp))
        A("v_mov_b32 v%d, s%d" % (vT[0], sTmp))
        for kk in range(7):
            A("v_mov_b32 v%d, s%d" % (vT[2], sStamp + 2 * kk))
            A("v_mov_b32 v%d, s%d" % (vT[3], sStamp + 2 * kk + 1))
            A("global_store_dwordx2 v%d, v[%d:%d], s[44:45] offset:%d" % (vT[0], vT[2], vT[3], 8 * kk))
            A("s_nop 1")
        A("v_lshl_add_u32 v%d, v%d, 3, v%d" % (vT[0], vLane, vT[0]))
        A("v_cmp_gt_u32 vcc, 16, v%d" % vLane)
        A("s_and_saveexec_b64 s[48:49], vcc")
        A("global_store_dwordx2 v%d, v[%d:%d], s[44:45] offset:64" % (vT[0], vStLo, vStRt))
    A("L_end:")
    A("s_endpgm")
    L += fallback(cfg)
    A('.section .rodata,"a"'); A(".p2align 6")
    A(".amdhsa_kernel %s_kernel" % NAME)
    A("  .amdhsa_next_free_vgpr 512"); A("  .amdhsa_next_free_sgpr 102"); A("  .amdhsa_accum_offset 256")
    A("  .amdhsa_group_segment_fixed_size 0"); A("  .amdhsa_kernarg_size 48"); A("  .amdhsa_user_sgpr_count 2")
    A("  .amdhsa_user_sgpr_kernarg_segment_ptr 1"); A("  .amdhsa_system_sgpr_workgroup_id_x 1")
    A(".end_amdhsa_kernel")
    return "\n".join(L) + "\n"

if __name__ == "__main__":
    ap = argparse.ArgumentParser()
    ap.add_argument("-o", default="cdna_kernels/%s.s" % NAME)
    ap.add_argument("opts", nargs="*")
    a = ap.parse_args()
    cfg = Cfg()
    for o in a.opts:
        k, v = o.split("=")
        cur = getattr(cfg, k)
        if isinstance(cur, str): v = (" " + v.replace("+", " ")) if v else ""
        elif isinstance(cur, tuple): v = tuple(int(x) for x in v.split(","))
        elif isinstance(cur, float): v = float(v)
        else: v = int(v)
        setattr(cfg, k, v)
    open(a.o, "w").write(build(cfg))
```

```python
import sys, struct, argparse

NAME = "standalone__gqa_softmax__near_ridge"
SLOT = 16640
BLK = 1040
STAGE = 2 * SLOT
LDS_BYTES = 9 * SLOT

def f2u(x): return struct.unpack("<I", struct.pack("<f", x))[0]

class Cfg:
    stamps = 0
    dma_cost = 8
    ld_pol = " nt"
    st_pol = ""
    thresh = 2.0 ** 60
    vdma = (17, 22, 27, 32)
    kdma = (44, 60, 61, 62)
    cap = 24
    lat = 3
    pf = 0
    nodma = 0
    align = 6
    dbg = 0
    pad = 0

class I:
    def __init__(self, t, c=4, k="valu", w=None, need=None):
        self.t = t; self.c = c; self.k = k
        self.w = w
        self.need = need

def O(b, D): return 128 + 64 * b + 16 * D
def S(par, b): return 64 + 32 * par + 16 * b
def Qa(b, s): return 32 * b + 4 * s
def Ka(par, s): return 64 + 32 * par + 4 * s
def Va(par, u, D): return 128 + 32 * par + 16 * u + 4 * D
vLane = 1
vK, vKl, vV, vVl = 2, 3, 4, 5
vDma = (6, 7, 8, 9)
vMc = (10, 11)
vL = (12, 13)
vQrd, vOw, vOr, vOst = 16, 17, 18, 19
vT = (20, 21, 22, 23, 24, 25, 26, 27)
vStLo, vStRt = 28, 29
vStage = 32
sW = 3
sSrdQ, sSrdK, sSrdV, sSrdO = 8, 12, 16, 20
sC, sThr, sWoff, sOff, sCur, sNxt = 24, 25, 26, 27, 28, 29
sK16 = (None, 32, 33, 34)
sTmp = 36
sWslot = 46
sIt = 47
sStamp = 56

def vr(a, n): return "v[%d:%d]" % (a, a + n - 1)
def ar(a, n): return "a[%d:%d]" % (a, a + n - 1)
def srd(a): return "s[%d:%d]" % (a, a + 3)

def mfma_qk(u, b, s):
    par = u & 1
    d = vr(S(par, b), 16)
    return I("v_mfma_f32_32x32x16_bf16 %s, %s, %s, %s" % (d, ar(Ka(par, s), 4), ar(Qa(b, s), 4), "0" if s == 0 else d), 8, "mfma",
             need=[("K", u, s)])

def mfma_pv(u, b, ks, D):
    par = u & 1
    d = vr(O(b, D), 16)
    x = I("v_mfma_f32_32x32x16_bf16 %s, %s, %s, %s" % (d, ar(Va(par, ks, D), 4), vr(S(par, b) + 8 * ks, 4), d), 8, "mfma",
          need=[("V", u, ks, D, 0), ("V", u, ks, D, 1)])
    x.pneed = (u, b, ks)
    return x

def k_reads(u, areg=vK, base=0):
    kb = par = u & 1
    return [I("ds_read_b128 %s, v%d offset:%d" % (ar(Ka(par, s), 4), areg, base + 512 * kb + 32 * s), 4, "ds", w=("K", u, s)) for s in range(8)]

def v_reads(u, areg=vV, base=SLOT):
    kb = par = u & 1
    out = []
    for ks in range(2):
        for D in range(4):
            for e in range(2):
                out.append(I("ds_read_b64_tr_b16 %s, v%d offset:%d" % (ar(Va(par, ks, D) + 2 * e, 2), areg,
                            base + 8320 * e + 256 * (2 * kb + ks) + 16 * D), 4, "ds", w=("V", u, ks, D, e)))
    return out

def dma_ins(cfg, srdreg, j, soff, regs=vDma):
    return I("buffer_load_dwordx4 v%d, %s, %s offen offset:%d%s lds" % (regs[j], srd(srdreg), soff, BLK * j, cfg.ld_pol), cfg.dma_cost, "dma")

def sm_ins(kind, u, b, e):
    s = S(u & 1, b)
    if kind == "F": return I("v_fma_f32 v%d, v%d, s%d, -v%d" % (s + e, s + e, sC, vMc[b]), 4)
    if kind == "E": return I("v_exp_f32 v%d, v%d" % (s + e, s + e), 8, "trans")
    if kind == "A": return I("v_add_f32 v%d, v%d, v%d" % (vL[b], vL[b], s + e), 4)
    if kind == "C":
        d = s + e if e < 4 else s + 4 + e
        return I("v_cvt_pk_bf16_f32 v%d, v%d, v%d" % (d, s + 2 * e, s + 2 * e + 1), 4)

def sm_plain(u, b):
    out = []
    for j in range(10):
        for h in range(2):
            if j < 8: out.append(("F", 2 * j + h))
            if 1 <= j <= 8: out.append(("E", 2 * (j - 1) + h))
            if j >= 2: out.append(("A", 2 * (j - 2) + h))
        if j >= 2: out.append(("C", j - 2))
    return out

def max_chain(par, b, dst, t):
    s = S(par, b)
    out = ["v_max3_f32 v%d, v%d, v%d, v%d" % (dst, s, s + 1, s + 2)]
    for e in range(3, 15, 2):
        out.append("v_max3_f32 v%d, v%d, v%d, v%d" % (dst, dst, s + e, s + e + 1))
    out.append("v_max_f32 v%d, v%d, v%d" % (dst, dst, s + 15))
    out.append("v_mov_b32 v%d, v%d" % (t, dst))
    out.append("s_nop 1")
    out.append("v_permlane32_swap_b32 v%d, v%d" % (dst, t))
    out.append("v_max_f32 v%d, v%d, v%d" % (dst, dst, t))
    return out

class Gap:
    def __init__(self, m):
        self.m = m; self.salu = []; self.mem = []; self.valu = []; self.tail = []; self.block = 0
    def fixed_cost(self):
        c = 0
        for i, x in enumerate(self.salu):
            c += x.c - (4 if i == 0 else 0)
        c += sum(x.c for x in self.mem) + sum(x.c for x in self.valu) + sum(x.c for x in self.tail)
        return c
    def text(self):
        return [self.m.t] + [x.t for x in self.salu + self.mem + self.valu + self.tail]

class SM:
    def __init__(self, blocks):
        self.el = [(u, b, e, rel) for (u, b, rel) in blocks for e in range(16)]
        self.n = len(self.el)
        self.p = {"F": 0, "E": 0, "A": 0, "C": 0}
        self.at = {}
    def done(self): return self.p["C"] * 2 >= self.n
    def ready(self, kind, g):
        i = self.p[kind]
        if kind == "F": return i < self.n and self.el[i][3] <= g
        if kind == "E": return i < self.n and self.at.get(("F", i), 1 << 30) < g
        if kind == "A": return i < self.n and self.at.get(("E", i), 1 << 30) < g
        if kind == "C": return 2 * i < self.n and ("A", 2 * i + 1) in self.at
    def take(self, kind, g):
        i = self.p[kind]; self.p[kind] += 1; self.at[(kind, i)] = g
        if kind == "C":
            u, b, e, _ = self.el[2 * i]; x = sm_ins("C", u, b, e // 2); x.tag = (u, b, "C", e // 2)
        else:
            u, b, e, _ = self.el[i]; x = sm_ins(kind, u, b, e); x.tag = (u, b, kind, e)
        return x
    def fill(self, gap, g, cap):
        r = cap - gap.fixed_cost()
        out = []
        while True:
            pick = None
            lagFE = self.p["F"] - self.p["E"]
            order = ["C", "E", "A", "F"] if lagFE >= 2 else ["C", "F", "E", "A"]
            for k in order:
                c = 8 if k == "E" else 4
                if k == "F" and lagFE >= 4: continue
                if c <= r and self.ready(k, g): pick = k; break
            if pick is None: break
            x = self.take(pick, g); out.append(x); r -= x.c
        gap.valu += out

def add_waits(cfg, gaps, start_issued=None):
    issued = []
    covered = -1
    idx = {}
    for g, gp in enumerate(gaps):
        for x in gp.salu:
            if x.k == "wait0": covered = len(issued) - 1
        if g + 1 < len(gaps):
            need = [idx[t] for t in (gaps[g + 1].m.need or []) if t in idx]
            missing = [t for t in (gaps[g + 1].m.need or []) if t not in idx and not (start_issued and t in start_issued)]
            if missing: raise SystemExit("read not issued before use: %s gap %d" % (missing, g + 1))
            if need and max(need) > covered:
                tgt = max(need)
                if issued[tgt][1] > g - cfg.lat: sys.stderr.write("warn: short ds latency at gap %d (issued %d)\n" % (g, issued[tgt][1]))
                for j in range(len(issued)):
                    if issued[j][1] <= g - cfg.lat: tgt = max(tgt, j)
                n = len(issued) - 1 - tgt
                assert n <= 15
                gp.salu.insert(0, I("s_waitcnt lgkmcnt(%d)" % n, 4, "wait"))
                covered = tgt
        for x in gp.mem:
            if x.k == "ds":
                idx[x.w] = len(issued); issued.append((x.w, g))

def tile_gaps(cfg, i, last):
    G = []
    for u in (2 * i, 2 * i + 1):
        if not (last and u == 2 * i + 1):
            for b in range(2):
                for s in range(8): G.append(Gap(mfma_qk(u + 1, b, s)))
        for b in range(2):
            for ks in range(2):
                for D in range(4): G.append(Gap(mfma_pv(u, b, ks, D)))
    G[0].salu.append(I("s_waitcnt vmcnt(%d)" % (0 if last else 16), 4, "wait"))
    G[0].salu.append(I("s_barrier", 12, "bar"))
    if last:
        reads = v_reads(2 * i) + v_reads(2 * i + 1)
        free = list(range(1, 40))
    else:
        reads = v_reads(2 * i) + k_reads(2 * i + 2) + v_reads(2 * i + 1) + k_reads(2 * i + 3)
        dg = set(cfg.vdma) | set(cfg.kdma)
        free = [g for g in range(1, 60) if g not in dg]
    pos = {}
    for x, g in zip(reads, free):
        G[g].mem.append(x); pos[x.w] = g
    if last: return G
    lastV = pos[("V", 2 * i + 1, 1, 3, 1)]
    firstK = pos[("K", 2 * i + 2, 0)]
    G[2].salu.append(I("s_add_u32 s%d, s%d, %d" % (sNxt, sCur, STAGE), 4, "salu"))
    G[3].salu.append(I("s_cmp_eq_u32 s%d, %d" % (sNxt, 4 * STAGE), 4, "salu"))
    G[4].salu.append(I("s_cselect_b32 s%d, 0, s%d" % (sNxt, sNxt), 4, "salu"))
    assert firstK > 6
    G[5].valu.append(I("v_add_u32 v%d, s%d, v%d" % (vK, sNxt, vKl), 4))
    G[lastV + 1].valu.append(I("v_add_u32 v%d, s%d, v%d" % (vV, sNxt, vVl), 4))
    if not cfg.nodma:
        G[cfg.vdma[0] - 1].salu.append(I("s_add_u32 m0, m0, %d" % SLOT, 4, "salu"))
        for j, g in enumerate(cfg.vdma): G[g].mem.append(dma_ins(cfg, sSrdV, j, "s%d" % sOff))
    G[cfg.vdma[3] + 1].salu.append(I("s_add_u32 s%d, s%d, 16384" % (sOff, sOff), 4, "salu"))
    assert cfg.kdma[0] - 1 >= cfg.vdma[3] + 1
    if not cfg.nodma:
        G[cfg.kdma[0] - 1].salu.append(I("s_add_u32 m0, s%d, s%d" % (sCur, sWoff), 4, "salu"))
        for j, g in enumerate(cfg.kdma): G[g].mem.append(dma_ins(cfg, sSrdK, j, "s%d" % sOff))
    gm = max(cfg.kdma[0], lastV + 2)
    G[gm].salu.append(I("s_mov_b32 s%d, s%d" % (sCur, sNxt), 4, "salu"))
    G[61].salu.append(I("s_cmp_lt_u32 s%d, %d" % (sOff, 18 * 16384), 4, "salu"))
    if cfg.stamps:
        G[59].salu.append(I("s_memtime s[50:51]", 4, "salu"))
        G[60].salu.append(I("s_memrealtime s[52:53]", 4, "salu"))
        G[61].valu.append(I("v_cmp_eq_u32 vcc, s%d, v%d" % (sIt, vLane), 4))
        G[62].valu.append(I("v_mov_b32 v30, s50", 4))
        G[62].valu.append(I("v_mov_b32 v31, s52", 4))
        G[62].valu.append(I("v_cndmask_b32 v%d, v%d, v30, vcc" % (vStLo, vStLo), 4))
        G[62].valu.append(I("v_cndmask_b32 v%d, v%d, v31, vcc" % (vStRt, vStRt), 4))
        G[6].salu.append(I("s_add_u32 s%d, s%d, 1" % (sIt, sIt), 4, "salu"))
    G[62].salu.append(I("s_waitcnt lgkmcnt(0)", 4, "wait0"))
    G[63].salu.append(I("s_cbranch_scc1 L_loop", 28, "br"))
    return G

def epi_scale(b):
    t = vT[2 + 2 * b]
    return [I("v_mov_b32 v%d, v%d" % (t, vL[b])), I("s_nop 1", 8, "nop"), I("v_permlane32_swap_b32 v%d, v%d" % (vL[b], t)),
            I("v_add_f32 v%d, v%d, v%d" % (vL[b], vL[b], t)), I("v_rcp_f32 v%d, v%d" % (t, vL[b]), 8, "trans")], t

def epi_conv(b, inv, packed):
    out = []
    if packed: out.append(I("s_nop 0", 4, "nop"))
    for D in range(4):
        o = O(b, D)
        for half in range(2):
            if packed:
                for r in range(0, 8, 2):
                    a = o + 8 * half + r
                    out.append(I("v_pk_mul_f32 %s, %s, %s op_sel_hi:[1,0]" % (vr(a, 2), vr(a, 2), vr(inv, 2))))
            else:
                for r in range(8):
                    a = o + 8 * half + r
                    out.append(I("v_mul_f32 v%d, v%d, v%d" % (a, a, inv)))
            for k in range(4):
                out.append(I("v_cvt_pk_bf16_f32 v%d, v%d, v%d" % (o + 8 * half + k, o + 8 * half + 2 * k, o + 8 * half + 2 * k + 1)))
            out.append(I("ds_write_b128 v%d, %s offset:%d" % (vOw, vr(o + 8 * half, 4), 512 * b + 64 * half + 16 * D), 12, "dsw"))
    return out

def epi_read(b):
    out = [I("s_waitcnt lgkmcnt(0)")]
    for x in range(8):
        out.append(I("ds_read_b128 %s, v%d offset:%d" % (vr(vStage + 32 * b + 4 * x, 4), vOr, 2 * BLK * x + 512 * b)))
    return out

def epi_store(cfg, b, counted):
    out = []
    if not counted: out.append(I("s_waitcnt lgkmcnt(0)"))
    for x in range(8):
        if x: out.append(I("s_mov_b32 s%d, %d" % (sTmp, 8192 * x)))
        if counted: out.append(I("s_waitcnt lgkmcnt(%d)" % (7 - x)))
        out.append(I("buffer_store_dwordx4 %s, v%d, %s, %s offen offset:%d%s" % (vr(vStage + 32 * b + 4 * x, 4), vOst, srd(sSrdO), "s%d" % sTmp if x else "0", 512 * b, cfg.st_pol)))
    return out

def fallback(cfg):
    L = []; A = L.append
    A("L_fallback:")
    A("s_nop 15"); A("s_nop 15")
    A("s_waitcnt vmcnt(0) lgkmcnt(0)")
    fd = (28, 29, 30, 31)
    A("v_lshlrev_b32 v%d, 4, v%d" % (fd[0], vLane))
    for j in range(1, 4): A("v_add_u32 v%d, %d, v%d" % (fd[j], 3056 * j, fd[0]))
    A("s_add_u32 s48, s%d, 4" % sW)
    A("s_cmp_eq_u32 s48, 7")
    A("s_cselect_b32 s48, 8, s48")
    A("s_mul_i32 s48, s48, %d" % SLOT)
    A("v_add_u32 v%d, s48, v%d" % (vK, vKl))
    A("v_add_u32 v%d, s%d, v%d" % (vV, sWslot, vVl))
    for r in range(128): A("v_mov_b32 v%d, 0" % (128 + r))
    for b in range(2):
        A("v_mov_b32 v%d, 0" % vL[b]); A("v_mov_b32 v%d, 0xff7fffff" % vMc[b])
    A("s_mov_b32 s%d, 0" % sOff)
    A("L_fb_loop:")
    for (sr, base) in ((sSrdK, 48), (sSrdV, sWslot)):
        for jj in range(4):
            A("s_add_u32 m0, s%d, %d" % (base, 4 * BLK * jj))
            A("s_add_u32 s49, s%d, %d" % (sOff, 1024 * jj))
            for j in range(4): A(dma_ins(cfg, sr, j, "s49", fd).t)
    A("s_waitcnt vmcnt(0)")
    for u in range(2):
        for x in k_reads(u, vK, 0): A(x.t)
        A("s_waitcnt lgkmcnt(0)")
        for x in v_reads(u, vV, 0): A(x.t)
        for b in range(2):
            for s in range(8): A(mfma_qk(u, b, s).t)
        A("s_nop 15")
        for b in range(2):
            L += max_chain(u, b, vT[0], vT[1])
            A("v_mul_f32 v%d, s%d, v%d" % (vT[0], sC, vT[0]))
            A("v_max_f32 v%d, v%d, v%d" % (vT[0], vT[0], vMc[b]))
            A("v_sub_f32 v%d, v%d, v%d" % (vT[1], vMc[b], vT[0]))
            A("v_exp_f32 v%d, v%d" % (vT[1], vT[1]))
            A("v_mov_b32 v%d, v%d" % (vMc[b], vT[0]))
            A("v_mul_f32 v%d, v%d, v%d" % (vL[b], vL[b], vT[1]))
            for r in range(64): A("v_mul_f32 v%d, v%d, v%d" % (O(b, 0) + r, O(b, 0) + r, vT[1]))
            for (k, e) in sm_plain(u, b): A(sm_ins(k, u, b, e).t)
        A("s_waitcnt lgkmcnt(0)")
        A("s_nop 1")
        for b in range(2):
            for ks in range(2):
                for D in range(4): A(mfma_pv(u, b, ks, D).t)
        A("s_nop 15")
    A("s_add_u32 s%d, s%d, 16384" % (sOff, sOff))
    A("s_cmp_lt_u32 s%d, 262144" % sOff)
    A("s_cbranch_scc1 L_fb_loop")
    for b in range(2):
        sc, inv = epi_scale(b)
        L += [x.t for x in sc + [I("s_nop 0")] + epi_conv(b, inv, False) + epi_read(b) + epi_store(cfg, b, False)]
    A("s_endpgm")
    return L

def stamp(cfg, idx):
    if not cfg.stamps: return []
    r = sStamp + 2 * idx
    return ["%s s[%d:%d]" % ("s_memrealtime" if idx < 2 else "s_memtime", r, r + 1)]

def build(cfg):
    L = []; A = L.append
    A("; @launch grid=(256,1,1) block=(256,1,1) lds=%d" % LDS_BYTES)
    A('.amdgcn_target "amdgcn-amd-amdhsa--gfx950"')
    A(".text"); A(".globl %s_kernel" % NAME); A(".p2align 8"); A(".type %s_kernel,@function" % NAME)
    A("%s_kernel:" % NAME)
    A("s_cmp_ge_u32 s2, 256")
    A("s_cbranch_scc1 L_end")
    A("s_load_dwordx4 s[4:7], s[0:1], 0")
    A("s_load_dwordx4 s[40:43], s[0:1], 16")
    L += stamp(cfg, 0) + stamp(cfg, 2)
    if cfg.stamps: A("s_load_dwordx2 s[44:45], s[0:1], %d" % (32 if cfg.dbg else 40))
    A("v_lshrrev_b32 v%d, 6, v0" % vT[0])
    A("v_and_b32 v%d, 63, v0" % vLane)
    A("v_readfirstlane_b32 s%d, v%d" % (sW, vT[0]))
    A("v_lshlrev_b32 v%d, 4, v0" % vDma[0])
    npf = 0
    if cfg.pf:
        A("s_getpc_b64 s[48:49]")
        for j in range(0, cfg.pf, 4):
            if j: A("v_add_u32 v%d, %d, v%d" % (vT[1], 1024 * j, vDma[0]))
            A("global_load_dwordx4 v[%d:%d], v%d, s[48:49]" % (vStage + j, vStage + j + 3, vT[1] if j else vDma[0]))
            npf += 1
    for j in range(1, 4): A("v_add_u32 v%d, %d, v%d" % (vDma[j], 3056 * j, vDma[0]))
    A("s_mul_i32 s%d, s%d, %d" % (sWoff, sW, 4 * BLK))
    A("s_mul_i32 s%d, s%d, %d" % (sWslot, sW, SLOT))
    A("s_lshl_b32 s%d, s2, 16" % sTmp)
    A("s_lshl_b32 s%d, s2, 18" % (sTmp + 1))
    for sr, n in ((sSrdQ, 65536), (sSrdK, 262144), (sSrdV, 262144), (sSrdO, 65536)):
        A("s_mov_b32 s%d, %d" % (sr + 2, n)); A("s_mov_b32 s%d, 0x20000" % (sr + 3))
    for j in range(1, 4): A("s_mov_b32 s%d, %d" % (sK16[j], 16384 * j))
    A("s_waitcnt lgkmcnt(0)")
    for (sr, p, t) in ((sSrdK, 6, sTmp + 1), (sSrdQ, 4, sTmp), (sSrdV, 40, sTmp + 1), (sSrdO, 42, sTmp)):
        A("s_add_u32 s%d, s%d, s%d" % (sr, p, t))
        A("s_addc_u32 s%d, s%d, 0" % (sr + 1, p + 1))
        A("s_and_b32 s%d, s%d, 0xffff" % (sr + 1, sr + 1))
    def emit_dma(srdreg, slot, soff):
        A("s_add_u32 m0, s%d, %d" % (sWoff, slot * SLOT))
        A("s_nop 0")
        for j in range(4): A(dma_ins(cfg, srdreg, j, soff).t)
    emit_dma(sSrdK, 0, "0")
    for jj in range(4):
        A("s_add_u32 m0, s%d, %d" % (sWslot, 5 * SLOT + 4 * BLK * jj))
        A("s_nop 0")
        for j in range(4): A(dma_ins(cfg, sSrdQ, j, "0" if jj == 0 else "s%d" % sK16[jj]).t)
    emit_dma(sSrdV, 1, "0")
    emit_dma(sSrdK, 2, "s%d" % sK16[1])
    emit_dma(sSrdV, 3, "s%d" % sK16[1])
    emit_dma(sSrdK, 4, "s%d" % sK16[2])
    t0, t1, t2, t3 = vT[0], vT[1], vT[2], vT[3]
    A("v_and_b32 v%d, 15, v%d" % (t0, vLane))
    A("v_mul_u32_u24 v%d, %d, v%d" % (t0, BLK, t0))
    A("v_bfe_u32 v%d, v%d, 4, 1" % (t1, vLane))
    A("v_lshl_add_u32 v%d, v%d, 8, v%d" % (t0, t1, t0))
    A("v_lshrrev_b32 v%d, 5, v%d" % (t2, vLane))
    A("v_lshl_add_u32 v%d, v%d, 4, v%d" % (vKl, t2, t0))
    A("v_add_u32 v%d, s%d, v%d" % (vQrd, sWslot, vKl))
    A("v_add_u32 v%d, %d, v%d" % (vQrd, 5 * SLOT, vQrd))
    A("v_lshl_add_u32 v%d, v%d, 7, v%d" % (vOw, t2, t0))
    A("v_add_u32 v%d, s%d, v%d" % (vOw, sWslot, vOw))
    A("v_bfe_u32 v%d, v%d, 2, 2" % (t0, vLane))
    A("v_lshl_add_u32 v%d, v%d, 2, v%d" % (t0, t2, t0))
    A("v_mul_u32_u24 v%d, %d, v%d" % (t0, BLK, t0))
    A("v_lshl_add_u32 v%d, v%d, 6, v%d" % (t0, t1, t0))
    A("v_and_b32 v%d, 1, v%d" % (t3, vLane))
    A("v_lshl_add_u32 v%d, v%d, 7, v%d" % (t0, t3, t0))
    A("v_bfe_u32 v%d, v%d, 1, 1" % (t3, vLane))
    A("v_lshl_add_u32 v%d, v%d, 3, v%d" % (vVl, t3, t0))
    A("v_mov_b32 v%d, v%d" % (vV, vVl))
    A("v_and_b32 v%d, 31, v%d" % (t0, vLane))
    A("v_lshlrev_b32 v%d, 4, v%d" % (t0, t0))
    A("v_mul_u32_u24 v%d, %d, v%d" % (t1, BLK, t2))
    A("v_add3_u32 v%d, v%d, v%d, s%d" % (vOr, t0, t1, sWslot))
    A("s_lshl_b32 s%d, s%d, 10" % (sTmp + 3, sW))
    A("v_lshl_add_u32 v%d, v%d, 12, v%d" % (vOst, t2, t0))
    A("v_add_u32 v%d, s%d, v%d" % (vOst, sTmp + 3, vOst))
    A("s_mov_b32 s%d, 0x%08x" % (sC, f2u(1.4426950408889634 * 128 ** -0.5)))
    A("s_mov_b32 s%d, 0x%08x" % (sThr, f2u(cfg.thresh)))
    A("s_mov_b32 s%d, %d" % (sOff, 3 * 16384))
    A("s_mov_b32 s%d, 0" % sCur)
    A("s_mov_b32 s%d, -1" % sIt)
    A("v_mov_b32 v%d, 0" % vL[0]); A("v_mov_b32 v%d, 0" % vL[1])
    if cfg.stamps: A("v_mov_b32 v%d, 0" % vStLo); A("v_mov_b32 v%d, 0" % vStRt)
    for r in range(128): A("v_mov_b32 v%d, 0" % (128 + r))
    A("s_waitcnt vmcnt(16)")
    L += stamp(cfg, 3)
    for b in range(2):
        for s in range(8):
            A("ds_read_b128 %s, v%d offset:%d" % (ar(Qa(b, s), 4), vQrd, 512 * b + 32 * s))
    A("s_waitcnt lgkmcnt(0)")
    A("s_barrier")
    for x in k_reads(0, vKl, 0): A(x.t)
    emit_dma(sSrdV, 5, "s%d" % sK16[2])
    emit_dma(sSrdK, 6, "s%d" % sK16[3])

    NT = 6
    G = []
    for i in range(NT): G += tile_gaps(cfg, i, False)
    add_waits(cfg, G, start_issued={("K", 1, s) for s in range(8)})
    blocks = []
    for u in range(1, 2 * NT + 1):
        base = 32 * (u - 1)
        blocks += [(u, 0, base + 10), (u, 1, base + 18)]
    sm = SM(blocks)
    for g, gp in enumerate(G): sm.fill(gp, g, cfg.cap)
    ref = 4
    body = G[64 * ref:64 * ref + 64]
    prev = G[64 * (ref - 1):64 * ref]
    assert [x.text() for x in body] == [x.text() for x in prev], "schedule not periodic"
    for g, gp in enumerate(G[:64 * (NT - 1)]):
        if hasattr(gp.m, "pneed"):
            u, b, ks = gp.m.pneed
            if u == 0: continue
            ci = ((u - 1) * 32 + b * 16) // 2 + 4 * ks + 3
            assert sm.at[("C", ci)] < g - 1, "P late"
    costs = [gp.fixed_cost() for gp in body]
    sys.stderr.write("gap costs: %s\n over cap: %d\n" % (costs, sum(max(0, c - 24) for c in costs)))
    u0 = 2 * ref
    pend = [x.tag for gp in body for x in gp.valu if hasattr(x, "tag") and x.tag[0] == u0]
    assert not [1 for gp in body for x in gp.valu if hasattr(x, "tag") and x.tag[0] < u0]
    pendset = {(b, k, e) for (_, b, k, e) in pend}

    A("s_waitcnt lgkmcnt(0)")
    kr1 = k_reads(1, vKl, 0)
    for s in range(8):
        A(mfma_qk(0, 0, s).t); A(kr1[s].t)
    pro0 = max_chain(0, 0, vT[0], vT[1]) + ["v_mul_f32 v%d, s%d, v%d" % (vMc[0], sC, vT[0])]
    pro0 += [sm_ins(k, 0, 0, e).t for (k, e) in sm_plain(0, 0) if (0, k, e) not in pendset]
    for s in range(8):
        A(mfma_qk(0, 1, s).t)
        if s < 2: A("s_nop 4")
        else:
            n = 6 if s < 7 else len(pro0)
            L += pro0[:n]; pro0 = pro0[n:]
    L += max_chain(0, 1, vT[0], vT[1]) + ["v_mul_f32 v%d, s%d, v%d" % (vMc[1], sC, vT[0])]
    p1 = [(k, e) for (k, e) in sm_plain(0, 1) if (1, k, e) not in pendset]
    last = None
    for (k, e) in p1:
        if last and last[0] == "E" and ((k == "A" and e == last[1]) or (k == "C" and last[1] // 2 == e)): A("s_nop 0")
        A(sm_ins(k, 0, 1, e).t); last = (k, e)
    A("s_waitcnt lgkmcnt(0)")
    L += stamp(cfg, 4)
    if cfg.stamps: A("s_waitcnt lgkmcnt(0)")
    if cfg.align:
        A(".p2align %d" % cfg.align)
    for _ in range(cfg.pad): A("s_nop 0")
    A("L_loop:")
    for gp in body: L += gp.text()

    U = 30
    GL = tile_gaps(cfg, 15, True)
    add_waits(cfg, GL, start_issued={("K", 31, s) for s in range(8)})
    sml = SM([(U, 0, -100), (U, 1, -100), (U + 1, 0, 10), (U + 1, 1, 18)])
    done = {"F": 0, "E": 0, "A": 0, "C": 0}
    for k in "FEA":
        n = 0
        while n < 32 and (n // 16, k, n % 16) not in pendset: sml.at[(k, n)] = -1; n += 1
        sml.p[k] = n
    n = 0
    while n < 16 and (n // 8, "C", n % 8) not in pendset: sml.at[("C", n)] = -1; n += 1
    sml.p["C"] = n
    sc0, inv0 = epi_scale(0); sc1, inv1 = epi_scale(1)
    chk = [I("v_cmp_nge_f32 vcc, s%d, v%d" % (sThr, vL[0])), I("v_cmp_nge_f32 s[48:49], s%d, v%d" % (sThr, vL[1])),
           I("s_or_b64 vcc, vcc, s[48:49]", 4, "salu"), I("s_cbranch_vccnz L_fallback", 24, "br")]
    extra = sc0 + sc1 + chk + epi_conv(0, inv0, False)
    nfirst = len(sc0 + sc1 + chk)
    k = 0
    for g, gp in enumerate(GL):
        if not sml.done():
            sml.fill(gp, g, cfg.cap)
        if sml.done() and sml.at[("C", 31)] < g:
            r = cfg.cap - gp.fixed_cost()
            while extra and extra[0].c <= r and (k < nfirst or g >= 42):
                x = extra.pop(0); gp.valu.append(x); r -= x.c; k += 1
    assert sml.done()
    for g, gp in enumerate(GL):
        if hasattr(gp.m, "pneed"):
            u, b, ks = gp.m.pneed
            ci = ((u - U) * 32 + b * 16) // 2 + 4 * ks + 3
            assert sml.at[("C", ci)] < g - 1, "P late in tail %d" % g
    sys.stderr.write("tail: SM done at gap %d, epilogue instrs left %d\n" % (sml.at[("C", 31)], len(extra)))
    for gp in GL: L += gp.text()
    L += stamp(cfg, 5)
    tail = extra + epi_read(0)
    c1 = epi_conv(1, inv1, True)
    st0 = epi_store(cfg, 0, False)
    tail += c1[:10] + st0 + c1[10:] + epi_read(1) + epi_store(cfg, 1, True)
    L += [x.t for x in tail]
    if cfg.stamps:
        A("s_waitcnt vmcnt(0)")
        L += stamp(cfg, 6) + stamp(cfg, 1)
        A("s_waitcnt lgkmcnt(0)")
    if cfg.dbg:
        A("v_mov_b32 v%d, 0" % vT[0])
        A("v_cmp_eq_u32 vcc, 0, v%d" % vLane)
        A("s_and_saveexec_b64 s[48:49], vcc")
        A("v_mov_b32 v%d, s%d" % (vT[2], sStamp + 2))
        A("global_atomic_umax v%d, v%d, s[44:45] offset:0" % (vT[0], vT[2]))
        A("s_not_b32 s%d, s%d" % (sTmp, sStamp))
        A("v_mov_b32 v%d, s%d" % (vT[3], sTmp))
        A("global_atomic_umax v%d, v%d, s[44:45] offset:4" % (vT[0], vT[3]))
        for kk in range(4):
            A("s_sub_u32 s%d, s%d, s%d" % (sTmp, sStamp + 2 * (kk + 3), sStamp + 2 * (kk + 2)))
            A("v_mov_b32 v%d, s%d" % (vT[4 + kk], sTmp))
            A("global_atomic_umax v%d, v%d, s[44:45] offset:%d" % (vT[0], vT[4 + kk], 8 + 4 * kk))
            A("global_atomic_add v%d, v%d, s[44:45] offset:%d" % (vT[0], vT[4 + kk], 24 + 4 * kk))
        A("s_sub_u32 s%d, s%d, s%d" % (sTmp, sStamp + 2, sStamp))
        A("v_mov_b32 v%d, s%d" % (vT[1], sTmp))
        A("global_atomic_add v%d, v%d, s[44:45] offset:40" % (vT[0], vT[1]))
        A("v_mov_b32 v%d, s%d" % (vT[2], sStamp))
        A("global_atomic_umax v%d, v%d, s[44:45] offset:44" % (vT[0], vT[2]))
    elif cfg.stamps:
        A("s_lshl_b32 s%d, s2, 2" % sTmp)
        A("s_add_u32 s%d, s%d, s%d" % (sTmp, sTmp, sW))
        A("s_lshl_b32 s%d, s%d, 8" % (sTmp, sTmp))
        A("v_mov_b32 v%d, s%d" % (vT[0], sTmp))
        for kk in range(7):
            A("v_mov_b32 v%d, s%d" % (vT[2], sStamp + 2 * kk))
            A("v_mov_b32 v%d, s%d" % (vT[3], sStamp + 2 * kk + 1))
            A("global_store_dwordx2 v%d, v[%d:%d], s[44:45] offset:%d" % (vT[0], vT[2], vT[3], 8 * kk))
            A("s_nop 1")
        A("v_lshl_add_u32 v%d, v%d, 3, v%d" % (vT[0], vLane, vT[0]))
        A("v_cmp_gt_u32 vcc, 16, v%d" % vLane)
        A("s_and_saveexec_b64 s[48:49], vcc")
        A("global_store_dwordx2 v%d, v[%d:%d], s[44:45] offset:64" % (vT[0], vStLo, vStRt))
    A("L_end:")
    A("s_endpgm")
    L += fallback(cfg)
    A('.section .rodata,"a"'); A(".p2align 6")
    A(".amdhsa_kernel %s_kernel" % NAME)
    A("  .amdhsa_next_free_vgpr 512"); A("  .amdhsa_next_free_sgpr 102"); A("  .amdhsa_accum_offset 256")
    A("  .amdhsa_group_segment_fixed_size 0"); A("  .amdhsa_kernarg_size 48"); A("  .amdhsa_user_sgpr_count 2")
    A("  .amdhsa_user_sgpr_kernarg_segment_ptr 1"); A("  .amdhsa_system_sgpr_workgroup_id_x 1")
    A(".end_amdhsa_kernel")
    return "\n".join(L) + "\n"

if __name__ == "__main__":
    ap = argparse.ArgumentParser()
    ap.add_argument("-o", default="cdna_kernels/%s.s" % NAME)
    ap.add_argument("opts", nargs="*")
    a = ap.parse_args()
    cfg = Cfg()
    for o in a.opts:
        k, v = o.split("=")
        cur = getattr(cfg, k)
        if isinstance(cur, str): v = (" " + v.replace("+", " ")) if v else ""
        elif isinstance(cur, tuple): v = tuple(int(x) for x in v.split(","))
        elif isinstance(cur, float): v = float(v)
        else: v = int(v)
        setattr(cfg, k, v)
    open(a.o, "w").write(build(cfg))
```

```python
import sys, struct, argparse

NAME = "standalone__gqa_softmax__near_ridge"
SLOT = 16640
BLK = 1040
STAGE = 2 * SLOT
LDS_BYTES = 9 * SLOT

def f2u(x): return struct.unpack("<I", struct.pack("<f", x))[0]

class Cfg:
    stamps = 0
    dma_cost = 8
    ld_pol = " nt"
    st_pol = ""
    thresh = 2.0 ** 60
    vdma = (17, 22, 27, 32)
    kdma = (44, 60, 61, 62)
    cap = 24
    lat = 3
    pf = 0
    nodma = 0
    align = 6
    dbg = 0
    pad = 0

class I:
    def __init__(self, t, c=4, k="valu", w=None, need=None):
        self.t = t; self.c = c; self.k = k
        self.w = w
        self.need = need

def O(b, D): return 128 + 64 * b + 16 * D
def S(par, b): return 64 + 32 * par + 16 * b
def Qa(b, s): return 32 * b + 4 * s
def Ka(par, s): return 64 + 32 * par + 4 * s
def Va(par, u, D): return 128 + 32 * par + 16 * u + 4 * D
vLane = 1
vK, vKl, vV, vVl = 2, 3, 4, 5
vDma = (6, 7, 8, 9)
vMc = (10, 11)
vL = (12, 13)
vQrd, vOw, vOr, vOst = 16, 17, 18, 19
vT = (20, 21, 22, 23, 24, 25, 26, 27)
vStLo, vStRt = 28, 29
vStage = 32
sW = 3
sSrdQ, sSrdK, sSrdV, sSrdO = 8, 12, 16, 20
sC, sThr, sWoff, sOff, sCur, sNxt = 24, 25, 26, 27, 28, 29
sK16 = (None, 32, 33, 34)
sTmp = 36
sWslot = 46
sIt = 47
sStamp = 56

def vr(a, n): return "v[%d:%d]" % (a, a + n - 1)
def ar(a, n): return "a[%d:%d]" % (a, a + n - 1)
def srd(a): return "s[%d:%d]" % (a, a + 3)

def mfma_qk(u, b, s):
    par = u & 1
    d = vr(S(par, b), 16)
    return I("v_mfma_f32_32x32x16_bf16 %s, %s, %s, %s" % (d, ar(Ka(par, s), 4), ar(Qa(b, s), 4), "0" if s == 0 else d), 8, "mfma",
             need=[("K", u, s)])

def mfma_pv(u, b, ks, D):
    par = u & 1
    d = vr(O(b, D), 16)
    x = I("v_mfma_f32_32x32x16_bf16 %s, %s, %s, %s" % (d, ar(Va(par, ks, D), 4), vr(S(par, b) + 8 * ks, 4), d), 8, "mfma",
          need=[("V", u, ks, D, 0), ("V", u, ks, D, 1)])
    x.pneed = (u, b, ks)
    return x

def k_reads(u, areg=vK, base=0):
    kb = par = u & 1
    return [I("ds_read_b128 %s, v%d offset:%d" % (ar(Ka(par, s), 4), areg, base + 512 * kb + 32 * s), 4, "ds", w=("K", u, s)) for s in range(8)]

def v_reads(u, areg=vV, base=SLOT):
    kb = par = u & 1
    out = []
    for ks in range(2):
        for D in range(4):
            for e in range(2):
                out.append(I("ds_read_b64_tr_b16 %s, v%d offset:%d" % (ar(Va(par, ks, D) + 2 * e, 2), areg,
                            base + 8320 * e + 256 * (2 * kb + ks) + 16 * D), 4, "ds", w=("V", u, ks, D, e)))
    return out

def dma_ins(cfg, srdreg, j, soff, regs=vDma):
    return I("buffer_load_dwordx4 v%d, %s, %s offen offset:%d%s lds" % (regs[j], srd(srdreg), soff, BLK * j, cfg.ld_pol), cfg.dma_cost, "dma")

def sm_ins(kind, u, b, e):
    s = S(u & 1, b)
    if kind == "F": return I("v_fma_f32 v%d, v%d, s%d, -v%d" % (s + e, s + e, sC, vMc[b]), 4)
    if kind == "E": return I("v_exp_f32 v%d, v%d" % (s + e, s + e), 8, "trans")
    if kind == "A": return I("v_add_f32 v%d, v%d, v%d" % (vL[b], vL[b], s + e), 4)
    if kind == "C":
        d = s + e if e < 4 else s + 4 + e
        return I("v_cvt_pk_bf16_f32 v%d, v%d, v%d" % (d, s + 2 * e, s + 2 * e + 1), 4)

def sm_plain(u, b):
    out = []
    for j in range(10):
        for h in range(2):
            if j < 8: out.append(("F", 2 * j + h))
            if 1 <= j <= 8: out.append(("E", 2 * (j - 1) + h))
            if j >= 2: out.append(("A", 2 * (j - 2) + h))
        if j >= 2: out.append(("C", j - 2))
    return out

def max_chain(par, b, dst, t):
    s = S(par, b)
    out = ["v_max3_f32 v%d, v%d, v%d, v%d" % (dst, s, s + 1, s + 2)]
    for e in range(3, 15, 2):
        out.append("v_max3_f32 v%d, v%d, v%d, v%d" % (dst, dst, s + e, s + e + 1))
    out.append("v_max_f32 v%d, v%d, v%d" % (dst, dst, s + 15))
    out.append("v_mov_b32 v%d, v%d" % (t, dst))
    out.append("s_nop 1")
    out.append("v_permlane32_swap_b32 v%d, v%d" % (dst, t))
    out.append("v_max_f32 v%d, v%d, v%d" % (dst, dst, t))
    return out

class Gap:
    def __init__(self, m):
        self.m = m; self.salu = []; self.mem = []; self.valu = []; self.tail = []; self.block = 0
    def fixed_cost(self):
        c = 0
        for i, x in enumerate(self.salu):
            c += x.c - (4 if i == 0 else 0)
        c += sum(x.c for x in self.mem) + sum(x.c for x in self.valu) + sum(x.c for x in self.tail)
        return c
    def text(self):
        return [self.m.t] + [x.t for x in self.salu + self.mem + self.valu + self.tail]

class SM:
    def __init__(self, blocks):
        self.el = [(u, b, e, rel) for (u, b, rel) in blocks for e in range(16)]
        self.n = len(self.el)
        self.p = {"F": 0, "E": 0, "A": 0, "C": 0}
        self.at = {}
    def done(self): return self.p["C"] * 2 >= self.n
    def ready(self, kind, g):
        i = self.p[kind]
        if kind == "F": return i < self.n and self.el[i][3] <= g
        if kind == "E": return i < self.n and self.at.get(("F", i), 1 << 30) < g
        if kind == "A": return i < self.n and self.at.get(("E", i), 1 << 30) < g
        if kind == "C": return 2 * i < self.n and ("A", 2 * i + 1) in self.at
    def take(self, kind, g):
        i = self.p[kind]; self.p[kind] += 1; self.at[(kind, i)] = g
        if kind == "C":
            u, b, e, _ = self.el[2 * i]; x = sm_ins("C", u, b, e // 2); x.tag = (u, b, "C", e // 2)
        else:
            u, b, e, _ = self.el[i]; x = sm_ins(kind, u, b, e); x.tag = (u, b, kind, e)
        return x
    def fill(self, gap, g, cap):
        r = cap - gap.fixed_cost()
        out = []
        while True:
            pick = None
            lagFE = self.p["F"] - self.p["E"]
            order = ["C", "E", "A", "F"] if lagFE >= 2 else ["C", "F", "E", "A"]
            for k in order:
                c = 8 if k == "E" else 4
                if k == "F" and lagFE >= 4: continue
                if c <= r and self.ready(k, g): pick = k; break
            if pick is None: break
            x = self.take(pick, g); out.append(x); r -= x.c
        gap.valu += out

def add_waits(cfg, gaps, start_issued=None):
    issued = []
    covered = -1
    idx = {}
    for g, gp in enumerate(gaps):
        for x in gp.salu:
            if x.k == "wait0": covered = len(issued) - 1
        if g + 1 < len(gaps):
            need = [idx[t] for t in (gaps[g + 1].m.need or []) if t in idx]
            missing = [t for t in (gaps[g + 1].m.need or []) if t not in idx and not (start_issued and t in start_issued)]
            if missing: raise SystemExit("read not issued before use: %s gap %d" % (missing, g + 1))
            if need and max(need) > covered:
                tgt = max(need)
                if issued[tgt][1] > g - cfg.lat: sys.stderr.write("warn: short ds latency at gap %d (issued %d)\n" % (g, issued[tgt][1]))
                for j in range(len(issued)):
                    if issued[j][1] <= g - cfg.lat: tgt = max(tgt, j)
                n = len(issued) - 1 - tgt
                assert n <= 15
                gp.salu.insert(0, I("s_waitcnt lgkmcnt(%d)" % n, 4, "wait"))
                covered = tgt
        for x in gp.mem:
            if x.k == "ds":
                idx[x.w] = len(issued); issued.append((x.w, g))

def tile_gaps(cfg, i, last):
    G = []
    for u in (2 * i, 2 * i + 1):
        if not (last and u == 2 * i + 1):
            for b in range(2):
                for s in range(8): G.append(Gap(mfma_qk(u + 1, b, s)))
        for b in range(2):
            for ks in range(2):
                for D in range(4): G.append(Gap(mfma_pv(u, b, ks, D)))
    G[0].salu.append(I("s_waitcnt vmcnt(%d)" % (0 if last else 16), 4, "wait"))
    G[0].salu.append(I("s_barrier", 12, "bar"))
    if last:
        reads = v_reads(2 * i) + v_reads(2 * i + 1)
        free = list(range(1, 40))
    else:
        reads = v_reads(2 * i) + k_reads(2 * i + 2) + v_reads(2 * i + 1) + k_reads(2 * i + 3)
        dg = set(cfg.vdma) | set(cfg.kdma)
        free = [g for g in range(1, 60) if g not in dg]
    pos = {}
    for x, g in zip(reads, free):
        G[g].mem.append(x); pos[x.w] = g
    if last: return G
    lastV = pos[("V", 2 * i + 1, 1, 3, 1)]
    firstK = pos[("K", 2 * i + 2, 0)]
    G[2].salu.append(I("s_add_u32 s%d, s%d, %d" % (sNxt, sCur, STAGE), 4, "salu"))
    G[3].salu.append(I("s_cmp_eq_u32 s%d, %d" % (sNxt, 4 * STAGE), 4, "salu"))
    G[4].salu.append(I("s_cselect_b32 s%d, 0, s%d" % (sNxt, sNxt), 4, "salu"))
    assert firstK > 6
    G[5].valu.append(I("v_add_u32 v%d, s%d, v%d" % (vK, sNxt, vKl), 4))
    G[lastV + 1].valu.append(I("v_add_u32 v%d, s%d, v%d" % (vV, sNxt, vVl), 4))
    if not cfg.nodma:
        G[cfg.vdma[0] - 1].salu.append(I("s_add_u32 m0, m0, %d" % SLOT, 4, "salu"))
        for j, g in enumerate(cfg.vdma): G[g].mem.append(dma_ins(cfg, sSrdV, j, "s%d" % sOff))
    G[cfg.vdma[3] + 1].salu.append(I("s_add_u32 s%d, s%d, 16384" % (sOff, sOff), 4, "salu"))
    assert cfg.kdma[0] - 1 >= cfg.vdma[3] + 1
    if not cfg.nodma:
        G[cfg.kdma[0] - 1].salu.append(I("s_add_u32 m0, s%d, s%d" % (sCur, sWoff), 4, "salu"))
        for j, g in enumerate(cfg.kdma): G[g].mem.append(dma_ins(cfg, sSrdK, j, "s%d" % sOff))
    gm = max(cfg.kdma[0], lastV + 2)
    G[gm].salu.append(I("s_mov_b32 s%d, s%d" % (sCur, sNxt), 4, "salu"))
    G[61].salu.append(I("s_cmp_lt_u32 s%d, %d" % (sOff, 18 * 16384), 4, "salu"))
    if cfg.stamps:
        G[59].salu.append(I("s_memtime s[50:51]", 4, "salu"))
        G[60].salu.append(I("s_memrealtime s[52:53]", 4, "salu"))
        G[61].valu.append(I("v_cmp_eq_u32 vcc, s%d, v%d" % (sIt, vLane), 4))
        G[62].valu.append(I("v_mov_b32 v30, s50", 4))
        G[62].valu.append(I("v_mov_b32 v31, s52", 4))
        G[62].valu.append(I("v_cndmask_b32 v%d, v%d, v30, vcc" % (vStLo, vStLo), 4))
        G[62].valu.append(I("v_cndmask_b32 v%d, v%d, v31, vcc" % (vStRt, vStRt), 4))
        G[6].salu.append(I("s_add_u32 s%d, s%d, 1" % (sIt, sIt), 4, "salu"))
    G[62].salu.append(I("s_waitcnt lgkmcnt(0)", 4, "wait0"))
    G[63].salu.append(I("s_cbranch_scc1 L_loop", 28, "br"))
    return G

def epi_scale(b):
    t = vT[2 + 2 * b]
    return [I("v_mov_b32 v%d, v%d" % (t, vL[b])), I("s_nop 1", 8, "nop"), I("v_permlane32_swap_b32 v%d, v%d" % (vL[b], t)),
            I("v_add_f32 v%d, v%d, v%d" % (vL[b], vL[b], t)), I("v_rcp_f32 v%d, v%d" % (t, vL[b]), 8, "trans")], t

def epi_conv(b, inv, packed):
    out = []
    if packed: out.append(I("s_nop 0", 4, "nop"))
    for D in range(4):
        o = O(b, D)
        for half in range(2):
            if packed:
                for r in range(0, 8, 2):
                    a = o + 8 * half + r
                    out.append(I("v_pk_mul_f32 %s, %s, %s op_sel_hi:[1,0]" % (vr(a, 2), vr(a, 2), vr(inv, 2))))
            else:
                for r in range(8):
                    a = o + 8 * half + r
                    out.append(I("v_mul_f32 v%d, v%d, v%d" % (a, a, inv)))
            for k in range(4):
                out.append(I("v_cvt_pk_bf16_f32 v%d, v%d, v%d" % (o + 8 * half + k, o + 8 * half + 2 * k, o + 8 * half + 2 * k + 1)))
            out.append(I("ds_write_b128 v%d, %s offset:%d" % (vOw, vr(o + 8 * half, 4), 512 * b + 64 * half + 16 * D), 12, "dsw"))
    return out

def epi_read(b):
    out = [I("s_waitcnt lgkmcnt(0)")]
    for x in range(8):
        out.append(I("ds_read_b128 %s, v%d offset:%d" % (vr(vStage + 32 * b + 4 * x, 4), vOr, 2 * BLK * x + 512 * b)))
    return out

def epi_store(cfg, b, counted):
    out = []
    if not counted: out.append(I("s_waitcnt lgkmcnt(0)"))
    for x in range(8):
        if x: out.append(I("s_mov_b32 s%d, %d" % (sTmp, 8192 * x)))
        if counted: out.append(I("s_waitcnt lgkmcnt(%d)" % (7 - x)))
        out.append(I("buffer_store_dwordx4 %s, v%d, %s, %s offen offset:%d%s" % (vr(vStage + 32 * b + 4 * x, 4), vOst, srd(sSrdO), "s%d" % sTmp if x else "0", 512 * b, cfg.st_pol)))
    return out

def fallback(cfg):
    L = []; A = L.append
    A("L_fallback:")
    A("s_nop 15"); A("s_nop 15")
    A("s_waitcnt vmcnt(0) lgkmcnt(0)")
    fd = (28, 29, 30, 31)
    A("v_lshlrev_b32 v%d, 4, v%d" % (fd[0], vLane))
    for j in range(1, 4): A("v_add_u32 v%d, %d, v%d" % (fd[j], 3056 * j, fd[0]))
    A("s_add_u32 s48, s%d, 4" % sW)
    A("s_cmp_eq_u32 s48, 7")
    A("s_cselect_b32 s48, 8, s48")
    A("s_mul_i32 s48, s48, %d" % SLOT)
    A("v_add_u32 v%d, s48, v%d" % (vK, vKl))
    A("v_add_u32 v%d, s%d, v%d" % (vV, sWslot, vVl))
    for r in range(128): A("v_mov_b32 v%d, 0" % (128 + r))
    for b in range(2):
        A("v_mov_b32 v%d, 0" % vL[b]); A("v_mov_b32 v%d, 0xff7fffff" % vMc[b])
    A("s_mov_b32 s%d, 0" % sOff)
    A("L_fb_loop:")
    for (sr, base) in ((sSrdK, 48), (sSrdV, sWslot)):
        for jj in range(4):
            A("s_add_u32 m0, s%d, %d" % (base, 4 * BLK * jj))
            A("s_add_u32 s49, s%d, %d" % (sOff, 1024 * jj))
            for j in range(4): A(dma_ins(cfg, sr, j, "s49", fd).t)
    A("s_waitcnt vmcnt(0)")
    for u in range(2):
        for x in k_reads(u, vK, 0): A(x.t)
        A("s_waitcnt lgkmcnt(0)")
        for x in v_reads(u, vV, 0): A(x.t)
        for b in range(2):
            for s in range(8): A(mfma_qk(u, b, s).t)
        A("s_nop 15")
        for b in range(2):
            L += max_chain(u, b, vT[0], vT[1])
            A("v_mul_f32 v%d, s%d, v%d" % (vT[0], sC, vT[0]))
            A("v_max_f32 v%d, v%d, v%d" % (vT[0], vT[0], vMc[b]))
            A("v_sub_f32 v%d, v%d, v%d" % (vT[1], vMc[b], vT[0]))
            A("v_exp_f32 v%d, v%d" % (vT[1], vT[1]))
            A("v_mov_b32 v%d, v%d" % (vMc[b], vT[0]))
            A("v_mul_f32 v%d, v%d, v%d" % (vL[b], vL[b], vT[1]))
            for r in range(64): A("v_mul_f32 v%d, v%d, v%d" % (O(b, 0) + r, O(b, 0) + r, vT[1]))
            for (k, e) in sm_plain(u, b): A(sm_ins(k, u, b, e).t)
        A("s_waitcnt lgkmcnt(0)")
        A("s_nop 1")
        for b in range(2):
            for ks in range(2):
                for D in range(4): A(mfma_pv(u, b, ks, D).t)
        A("s_nop 15")
    A("s_add_u32 s%d, s%d, 16384" % (sOff, sOff))
    A("s_cmp_lt_u32 s%d, 262144" % sOff)
    A("s_cbranch_scc1 L_fb_loop")
    for b in range(2):
        sc, inv = epi_scale(b)
        L += [x.t for x in sc + [I("s_nop 0")] + epi_conv(b, inv, False) + epi_read(b) + epi_store(cfg, b, False)]
    A("s_endpgm")
    return L

def stamp(cfg, idx):
    if not cfg.stamps: return []
    r = sStamp + 2 * idx
    return ["%s s[%d:%d]" % ("s_memrealtime" if idx < 2 else "s_memtime", r, r + 1)]

def build(cfg):
    L = []; A = L.append
    A("; @launch grid=(256,1,1) block=(256,1,1) lds=%d" % LDS_BYTES)
    A('.amdgcn_target "amdgcn-amd-amdhsa--gfx950"')
    A(".text"); A(".globl %s_kernel" % NAME); A(".p2align 8"); A(".type %s_kernel,@function" % NAME)
    A("%s_kernel:" % NAME)
    A("s_cmp_ge_u32 s2, 256")
    A("s_cbranch_scc1 L_end")
    A("s_load_dwordx4 s[4:7], s[0:1], 0")
    A("s_load_dwordx4 s[40:43], s[0:1], 16")
    L += stamp(cfg, 0) + stamp(cfg, 2)
    if cfg.stamps: A("s_load_dwordx2 s[44:45], s[0:1], %d" % (32 if cfg.dbg else 40))
    A("v_lshrrev_b32 v%d, 6, v0" % vT[0])
    A("v_and_b32 v%d, 63, v0" % vLane)
    A("v_readfirstlane_b32 s%d, v%d" % (sW, vT[0]))
    A("v_lshlrev_b32 v%d, 4, v0" % vDma[0])
    npf = 0
    if cfg.pf:
        A("s_getpc_b64 s[48:49]")
        for j in range(0, cfg.pf, 4):
            if j: A("v_add_u32 v%d, %d, v%d" % (vT[1], 1024 * j, vDma[0]))
            A("global_load_dwordx4 v[%d:%d], v%d, s[48:49]" % (vStage + j, vStage + j + 3, vT[1] if j else vDma[0]))
            npf += 1
    for j in range(1, 4): A("v_add_u32 v%d, %d, v%d" % (vDma[j], 3056 * j, vDma[0]))
    A("s_mul_i32 s%d, s%d, %d" % (sWoff, sW, 4 * BLK))
    A("s_mul_i32 s%d, s%d, %d" % (sWslot, sW, SLOT))
    A("s_lshl_b32 s%d, s2, 16" % sTmp)
    A("s_lshl_b32 s%d, s2, 18" % (sTmp + 1))
    for sr, n in ((sSrdQ, 65536), (sSrdK, 262144), (sSrdV, 262144), (sSrdO, 65536)):
        A("s_mov_b32 s%d, %d" % (sr + 2, n)); A("s_mov_b32 s%d, 0x20000" % (sr + 3))
    for j in range(1, 4): A("s_mov_b32 s%d, %d" % (sK16[j], 16384 * j))
    A("s_waitcnt lgkmcnt(0)")
    for (sr, p, t) in ((sSrdK, 6, sTmp + 1), (sSrdQ, 4, sTmp), (sSrdV, 40, sTmp + 1), (sSrdO, 42, sTmp)):
        A("s_add_u32 s%d, s%d, s%d" % (sr, p, t))
        A("s_addc_u32 s%d, s%d, 0" % (sr + 1, p + 1))
        A("s_and_b32 s%d, s%d, 0xffff" % (sr + 1, sr + 1))
    def emit_dma(srdreg, slot, soff):
        A("s_add_u32 m0, s%d, %d" % (sWoff, slot * SLOT))
        A("s_nop 0")
        for j in range(4): A(dma_ins(cfg, srdreg, j, soff).t)
    emit_dma(sSrdK, 0, "0")
    for jj in range(4):
        A("s_add_u32 m0, s%d, %d" % (sWslot, 5 * SLOT + 4 * BLK * jj))
        A("s_nop 0")
        for j in range(4): A(dma_ins(cfg, sSrdQ, j, "0" if jj == 0 else "s%d" % sK16[jj]).t)
    emit_dma(sSrdV, 1, "0")
    emit_dma(sSrdK, 2, "s%d" % sK16[1])
    emit_dma(sSrdV, 3, "s%d" % sK16[1])
    emit_dma(sSrdK, 4, "s%d" % sK16[2])
    t0, t1, t2, t3 = vT[0], vT[1], vT[2], vT[3]
    A("v_and_b32 v%d, 15, v%d" % (t0, vLane))
    A("v_mul_u32_u24 v%d, %d, v%d" % (t0, BLK, t0))
    A("v_bfe_u32 v%d, v%d, 4, 1" % (t1, vLane))
    A("v_lshl_add_u32 v%d, v%d, 8, v%d" % (t0, t1, t0))
    A("v_lshrrev_b32 v%d, 5, v%d" % (t2, vLane))
    A("v_lshl_add_u32 v%d, v%d, 4, v%d" % (vKl, t2, t0))
    A("v_add_u32 v%d, s%d, v%d" % (vQrd, sWslot, vKl))
    A("v_add_u32 v%d, %d, v%d" % (vQrd, 5 * SLOT, vQrd))
    A("v_lshl_add_u32 v%d, v%d, 7, v%d" % (vOw, t2, t0))
    A("v_add_u32 v%d, s%d, v%d" % (vOw, sWslot, vOw))
    A("v_bfe_u32 v%d, v%d, 2, 2" % (t0, vLane))
    A("v_lshl_add_u32 v%d, v%d, 2, v%d" % (t0, t2, t0))
    A("v_mul_u32_u24 v%d, %d, v%d" % (t0, BLK, t0))
    A("v_lshl_add_u32 v%d, v%d, 6, v%d" % (t0, t1, t0))
    A("v_and_b32 v%d, 1, v%d" % (t3, vLane))
    A("v_lshl_add_u32 v%d, v%d, 7, v%d" % (t0, t3, t0))
    A("v_bfe_u32 v%d, v%d, 1, 1" % (t3, vLane))
    A("v_lshl_add_u32 v%d, v%d, 3, v%d" % (vVl, t3, t0))
    A("v_mov_b32 v%d, v%d" % (vV, vVl))
    A("v_and_b32 v%d, 31, v%d" % (t0, vLane))
    A("v_lshlrev_b32 v%d, 4, v%d" % (t0, t0))
    A("v_mul_u32_u24 v%d, %d, v%d" % (t1, BLK, t2))
    A("v_add3_u32 v%d, v%d, v%d, s%d" % (vOr, t0, t1, sWslot))
    A("s_lshl_b32 s%d, s%d, 10" % (sTmp + 3, sW))
    A("v_lshl_add_u32 v%d, v%d, 12, v%d" % (vOst, t2, t0))
    A("v_add_u32 v%d, s%d, v%d" % (vOst, sTmp + 3, vOst))
    A("s_mov_b32 s%d, 0x%08x" % (sC, f2u(1.4426950408889634 * 128 ** -0.5)))
    A("s_mov_b32 s%d, 0x%08x" % (sThr, f2u(cfg.thresh)))
    A("s_mov_b32 s%d, %d" % (sOff, 3 * 16384))
    A("s_mov_b32 s%d, 0" % sCur)
    A("s_mov_b32 s%d, -1" % sIt)
    A("v_mov_b32 v%d, 0" % vL[0]); A("v_mov_b32 v%d, 0" % vL[1])
    if cfg.stamps: A("v_mov_b32 v%d, 0" % vStLo); A("v_mov_b32 v%d, 0" % vStRt)
    for r in range(128): A("v_mov_b32 v%d, 0" % (128 + r))
    A("s_waitcnt vmcnt(16)")
    L += stamp(cfg, 3)
    for b in range(2):
        for s in range(8):
            A("ds_read_b128 %s, v%d offset:%d" % (ar(Qa(b, s), 4), vQrd, 512 * b + 32 * s))
    A("s_waitcnt lgkmcnt(0)")
    A("s_barrier")
    for x in k_reads(0, vKl, 0): A(x.t)
    emit_dma(sSrdV, 5, "s%d" % sK16[2])
    emit_dma(sSrdK, 6, "s%d" % sK16[3])

    NT = 6
    G = []
    for i in range(NT): G += tile_gaps(cfg, i, False)
    add_waits(cfg, G, start_issued={("K", 1, s) for s in range(8)})
    blocks = []
    for u in range(1, 2 * NT + 1):
        base = 32 * (u - 1)
        blocks += [(u, 0, base + 10), (u, 1, base + 18)]
    sm = SM(blocks)
    for g, gp in enumerate(G): sm.fill(gp, g, cfg.cap)
    ref = 4
    body = G[64 * ref:64 * ref + 64]
    prev = G[64 * (ref - 1):64 * ref]
    assert [x.text() for x in body] == [x.text() for x in prev], "schedule not periodic"
    for g, gp in enumerate(G[:64 * (NT - 1)]):
        if hasattr(gp.m, "pneed"):
            u, b, ks = gp.m.pneed
            if u == 0: continue
            ci = ((u - 1) * 32 + b * 16) // 2 + 4 * ks + 3
            assert sm.at[("C", ci)] < g - 1, "P late"
    costs = [gp.fixed_cost() for gp in body]
    sys.stderr.write("gap costs: %s\n over cap: %d\n" % (costs, sum(max(0, c - 24) for c in costs)))
    u0 = 2 * ref
    pend = [x.tag for gp in body for x in gp.valu if hasattr(x, "tag") and x.tag[0] == u0]
    assert not [1 for gp in body for x in gp.valu if hasattr(x, "tag") and x.tag[0] < u0]
    pendset = {(b, k, e) for (_, b, k, e) in pend}

    A("s_waitcnt lgkmcnt(0)")
    kr1 = k_reads(1, vKl, 0)
    for s in range(8):
        A(mfma_qk(0, 0, s).t); A(kr1[s].t)
    pro0 = max_chain(0, 0, vT[0], vT[1]) + ["v_mul_f32 v%d, s%d, v%d" % (vMc[0], sC, vT[0])]
    pro0 += [sm_ins(k, 0, 0, e).t for (k, e) in sm_plain(0, 0) if (0, k, e) not in pendset]
    for s in range(8):
        A(mfma_qk(0, 1, s).t)
        if s < 2: A("s_nop 4")
        else:
            n = 6 if s < 7 else len(pro0)
            L += pro0[:n]; pro0 = pro0[n:]
    L += max_chain(0, 1, vT[0], vT[1]) + ["v_mul_f32 v%d, s%d, v%d" % (vMc[1], sC, vT[0])]
    p1 = [(k, e) for (k, e) in sm_plain(0, 1) if (1, k, e) not in pendset]
    last = None
    for (k, e) in p1:
        if last and last[0] == "E" and ((k == "A" and e == last[1]) or (k == "C" and last[1] // 2 == e)): A("s_nop 0")
        A(sm_ins(k, 0, 1, e).t); last = (k, e)
    A("s_waitcnt lgkmcnt(0)")
    L += stamp(cfg, 4)
    if cfg.stamps: A("s_waitcnt lgkmcnt(0)")
    if cfg.align:
        A(".p2align %d" % cfg.align)
    for _ in range(cfg.pad): A("s_nop 0")
    A("L_loop:")
    for gp in body: L += gp.text()

    U = 30
    GL = tile_gaps(cfg, 15, True)
    add_waits(cfg, GL, start_issued={("K", 31, s) for s in range(8)})
    sml = SM([(U, 0, -100), (U, 1, -100), (U + 1, 0, 10), (U + 1, 1, 18)])
    done = {"F": 0, "E": 0, "A": 0, "C": 0}
    for k in "FEA":
        n = 0
        while n < 32 and (n // 16, k, n % 16) not in pendset: sml.at[(k, n)] = -1; n += 1
        sml.p[k] = n
    n = 0
    while n < 16 and (n // 8, "C", n % 8) not in pendset: sml.at[("C", n)] = -1; n += 1
    sml.p["C"] = n
    sc0, inv0 = epi_scale(0); sc1, inv1 = epi_scale(1)
    chk = [I("v_cmp_nge_f32 vcc, s%d, v%d" % (sThr, vL[0])), I("v_cmp_nge_f32 s[48:49], s%d, v%d" % (sThr, vL[1])),
           I("s_or_b64 vcc, vcc, s[48:49]", 4, "salu"), I("s_cbranch_vccnz L_fallback", 24, "br")]
    extra = sc0 + sc1 + chk + epi_conv(0, inv0, False)
    nfirst = len(sc0 + sc1 + chk)
    k = 0
    for g, gp in enumerate(GL):
        if not sml.done():
            sml.fill(gp, g, cfg.cap)
        if sml.done() and sml.at[("C", 31)] < g:
            r = cfg.cap - gp.fixed_cost()
            while extra and extra[0].c <= r and (k < nfirst or g >= 42):
                x = extra.pop(0); gp.valu.append(x); r -= x.c; k += 1
    assert sml.done()
    for g, gp in enumerate(GL):
        if hasattr(gp.m, "pneed"):
            u, b, ks = gp.m.pneed
            ci = ((u - U) * 32 + b * 16) // 2 + 4 * ks + 3
            assert sml.at[("C", ci)] < g - 1, "P late in tail %d" % g
    sys.stderr.write("tail: SM done at gap %d, epilogue instrs left %d\n" % (sml.at[("C", 31)], len(extra)))
    for gp in GL: L += gp.text()
    L += stamp(cfg, 5)
    tail = extra + epi_read(0)
    c1 = epi_conv(1, inv1, True)
    st0 = epi_store(cfg, 0, False)
    tail += c1[:10] + st0 + c1[10:] + epi_read(1) + epi_store(cfg, 1, True)
    L += [x.t for x in tail]
    if cfg.stamps:
        A("s_waitcnt vmcnt(0)")
        L += stamp(cfg, 6) + stamp(cfg, 1)
        A("s_waitcnt lgkmcnt(0)")
    if cfg.dbg:
        A("s_and_b32 s%d, s2, 0xf8" % sTmp)
        A("s_cmp_lg_u32 s%d, %d" % (sTmp, cfg.dbg & 0xf8))
        A("s_cbranch_scc1 L_end")
        A("s_cmp_lg_u32 s%d, 0" % sW)
        A("s_cbranch_scc1 L_end")
        A("s_and_b32 s%d, s2, 7" % sTmp)
        A("s_lshl_b32 s%d, s%d, 3" % (sTmp, sTmp))
        A("v_mov_b32 v%d, s%d" % (vT[0], sTmp))
        A("v_mov_b32 v%d, s%d" % (vT[2], sStamp))
        A("v_mov_b32 v%d, s%d" % (vT[3], sStamp + 2))
        A("global_store_dwordx2 v%d, v[%d:%d], s[44:45]" % (vT[0], vT[2], vT[3]))
    elif cfg.stamps:
        A("s_lshl_b32 s%d, s2, 2" % sTmp)
        A("s_add_u32 s%d, s%d, s%d" % (sTmp, sTmp, sW))
        A("s_lshl_b32 s%d, s%d, 8" % (sTmp, sTmp))
        A("v_mov_b32 v%d, s%d" % (vT[0], sTmp))
        for kk in range(7):
            A("v_mov_b32 v%d, s%d" % (vT[2], sStamp + 2 * kk))
            A("v_mov_b32 v%d, s%d" % (vT[3], sStamp + 2 * kk + 1))
            A("global_store_dwordx2 v%d, v[%d:%d], s[44:45] offset:%d" % (vT[0], vT[2], vT[3], 8 * kk))
            A("s_nop 1")
        A("v_lshl_add_u32 v%d, v%d, 3, v%d" % (vT[0], vLane, vT[0]))
        A("v_cmp_gt_u32 vcc, 16, v%d" % vLane)
        A("s_and_saveexec_b64 s[48:49], vcc")
        A("global_store_dwordx2 v%d, v[%d:%d], s[44:45] offset:64" % (vT[0], vStLo, vStRt))
    A("L_end:")
    A("s_endpgm")
    L += fallback(cfg)
    A('.section .rodata,"a"'); A(".p2align 6")
    A(".amdhsa_kernel %s_kernel" % NAME)
    A("  .amdhsa_next_free_vgpr 512"); A("  .amdhsa_next_free_sgpr 102"); A("  .amdhsa_accum_offset 256")
    A("  .amdhsa_group_segment_fixed_size 0"); A("  .amdhsa_kernarg_size 48"); A("  .amdhsa_user_sgpr_count 2")
    A("  .amdhsa_user_sgpr_kernarg_segment_ptr 1"); A("  .amdhsa_system_sgpr_workgroup_id_x 1")
    A(".end_amdhsa_kernel")
    return "\n".join(L) + "\n"

if __name__ == "__main__":
    ap = argparse.ArgumentParser()
    ap.add_argument("-o", default="cdna_kernels/%s.s" % NAME)
    ap.add_argument("opts", nargs="*")
    a = ap.parse_args()
    cfg = Cfg()
    for o in a.opts:
        k, v = o.split("=")
        cur = getattr(cfg, k)
        if isinstance(cur, str): v = (" " + v.replace("+", " ")) if v else ""
        elif isinstance(cur, tuple): v = tuple(int(x) for x in v.split(","))
        elif isinstance(cur, float): v = float(v)
        else: v = int(v)
        setattr(cfg, k, v)
    open(a.o, "w").write(build(cfg))
```

```python
import sys, struct, argparse

NAME = "standalone__gqa_softmax__near_ridge"
SLOT = 16640
BLK = 1040
STAGE = 2 * SLOT
LDS_BYTES = 9 * SLOT
OPITCH = 272
OREG = 64 * OPITCH

def f2u(x): return struct.unpack("<I", struct.pack("<f", x))[0]

class Cfg:
    stamps = 0
    ld_pol = " nt"
    st_pol = " sc0 sc1"
    thresh = 2.0 ** 60
    kdma = (21, 25, 29, 33)
    vdma = (69, 73, 77, 81)
    lat = 5
    pf = 0
    align = 6
    pad = 0
    pre = 0
    phi = 7
    alag = 3
    xnop = 0
    dist = 3
    win = 9
    late = (8, 24, 40)

class I:
    def __init__(self, t, c=4, k="valu", w=None, need=None):
        self.t = t; self.c = c; self.k = k; self.w = w; self.need = need

def O(b, D): return 128 + 32 * b + 4 * D
def S(b): return 64 + 8 * b
def N(b): return 96 + 4 * b
def Qa(b, s): return 16 * b + 4 * s
def Ka(par, kb2, s): return 64 + 32 * par + 16 * kb2 + 4 * s
def Va(par, D): return 128 + 32 * par + 4 * D
vLane = 1
vK, vKl, vV, vVl = 2, 3, 4, 5
vDma = (6, 7, 8, 9)
vL = (10, 11, 12, 13)
vQrd, vOw, vOr = 14, 15, 16
vInv = (18, 20, 22, 24)
vT = (26, 27, 28, 29)
vStLo, vStRt = 30, 31
vStage = 32
vQd = (112, 113, 114, 115)
vX = (116, 117)
sW = 3
sSrdQ, sSrdK, sSrdV, sSrdO = 8, 12, 16, 20
sC, sThr, sWoff, sOff, sCur, sPrev = 24, 26, 27, 28, 29, 30
sK16 = (None, 32, 33, 34)
sTmp = 36
sWslot = 46
sIt = 47
sOreg = 31
sPrev2 = 35
sStamp = 56
PRE = [0]

def vr(a, n): return "v[%d:%d]" % (a, a + n - 1)
def ar(a, n): return "a[%d:%d]" % (a, a + n - 1)
def srd(a): return "s[%d:%d]" % (a, a + 3)

def mfma_qk(u, b, kb2, s, zero=False):
    par = u & 1
    d = vr(S(b) + 4 * kb2, 4)
    c = d if s else ("0" if (zero or not PRE[0]) else vr(N(b), 4))
    return I("v_mfma_f32_16x16x32_bf16 %s, %s, %s, %s" % (d, ar(Ka(par, kb2, s), 4), ar(Qa(b, s), 4), c), 8, "mfma", need=[("K", u, kb2, s)])

def mfma_pv(u, b, D, zero=False):
    par = u & 1
    d = vr(O(b, D), 4)
    x = I("v_mfma_f32_16x16x32_bf16 %s, %s, %s, %s" % (d, ar(Va(par, D), 4), vr(S(b), 4), "0" if zero else d), 8, "mfma",
          need=[("V", u, D, 0), ("V", u, D, 1)])
    x.pneed = (u, b)
    return x

def k_reads(u, areg=vK, base=0):
    kb = par = u & 1
    return [I("ds_read_b128 %s, v%d offset:%d" % (ar(Ka(par, kb2, s), 4), areg, base + 256 * (2 * kb + kb2) + 16 * s), 4, "ds", w=("K", u, kb2, s))
            for kb2 in range(2) for s in range(4)]

def v_reads(u, areg=vV, base=SLOT):
    kb = par = u & 1
    return [I("ds_read_b64_tr_b16 %s, v%d offset:%d" % (ar(Va(par, D) + 2 * e, 2), areg, base + 256 * (2 * kb + e) + 16 * D), 4, "ds", w=("V", u, D, e))
            for D in range(8) for e in range(2)]

def dma_ins(cfg, srdreg, j, soff, regs=vDma):
    return I("buffer_load_dwordx4 v%d, %s, %s offen offset:%d%s lds" % (regs[j], srd(srdreg), soff, BLK * j, cfg.ld_pol), 8, "dma")

def sm_ins(kind, b, e, explicit=False):
    s = S(b)
    if kind == "F":
        if PRE[0]:
            if not explicit: return None
            return I("v_add_f32 v%d, v%d, v%d" % (s + e, s + e, N(b)), 4)
        return I("v_fma_f32 v%d, v%d, s%d, v%d" % (s + e, s + e, sC, N(b)), 4)
    if kind == "E": return I("v_exp_f32 v%d, v%d" % (s + e, s + e), 8, "trans")
    if kind == "A": return I("v_add_f32 v%d, v%d, v%d" % (vL[b], vL[b], s + e), 4)
    if kind == "C": return I("v_cvt_pk_bf16_f32 v%d, v%d, v%d" % (s + e, s + 2 * e, s + 2 * e + 1), 4)

def sm_plain(b):
    out = []
    for j in range(6):
        for h in range(2):
            if j < 4: out.append(sm_ins("F", b, 2 * j + h, True))
            if 1 <= j <= 4: out.append(sm_ins("E", b, 2 * (j - 1) + h))
            if j >= 2: out.append(sm_ins("A", b, 2 * (j - 2) + h))
        if j >= 2: out.append(sm_ins("C", b, j - 2))
    return [x.t for x in out]

def xlane(op, r, t):
    return ["v_mov_b32 v%d, v%d" % (t, r), "s_nop 1", "v_permlane32_swap_b32 v%d, v%d" % (r, t), "%s v%d, v%d, v%d" % (op, r, r, t),
            "v_mov_b32 v%d, v%d" % (t, r), "s_nop 1", "v_permlane16_swap_b32 v%d, v%d" % (r, t), "%s v%d, v%d, v%d" % (op, r, r, t)]

def max_chain(b, dst, t):
    s = S(b)
    out = ["v_max3_f32 v%d, v%d, v%d, v%d" % (dst, s, s + 1, s + 2), "v_max3_f32 v%d, v%d, v%d, v%d" % (dst, dst, s + 3, s + 4),
           "v_max3_f32 v%d, v%d, v%d, v%d" % (dst, dst, s + 5, s + 6), "v_max_f32 v%d, v%d, v%d" % (dst, dst, s + 7)]
    return out + xlane("v_max_f32", dst, t)

class Gap:
    def __init__(self, m):
        self.m = m; self.salu = []; self.mem = []; self.valu = []
    def cost(self):
        c = 0
        for i, x in enumerate(self.salu): c += x.c - (4 if i == 0 else 0)
        return c + sum(x.c for x in self.mem) + sum(x.c for x in self.valu)
    def text(self): return [self.m.t] + [x.t for x in self.salu + self.mem + self.valu]

def add_waits(cfg, gaps, have):
    issued = []; covered = -1; idx = {}
    for g, gp in enumerate(gaps):
        for x in gp.salu:
            if x.k == "wait0": covered = len(issued) - 1
        if g + 1 < len(gaps):
            nd = gaps[g + 1].m.need or []
            missing = [t for t in nd if t not in idx and t not in have]
            if missing: raise SystemExit("read not issued before use: %s gap %d" % (missing, g + 1))
            need = [idx[t] for t in nd if t in idx]
            if need and max(need) > covered:
                tgt = max(need)
                if issued[tgt][1] > g - cfg.lat: sys.stderr.write("warn: short ds latency at gap %d (issued %d)\n" % (g, issued[tgt][1]))
                for j in range(len(issued)):
                    if issued[j][1] <= g - cfg.lat: tgt = max(tgt, j)
                n = len(issued) - 1 - tgt
                assert n <= 15
                gp.salu.insert(0, I("s_waitcnt lgkmcnt(%d)" % n, 4, "wait"))
                covered = tgt
        for x in gp.mem:
            if x.k == "ds": idx[x.w] = len(issued); issued.append((x.w, g))

def group(kind, u, b, zero=False):
    if kind == "QK": return [Gap(mfma_qk(u, b, kb2, s)) for kb2 in range(2) for s in range(4)]
    return [Gap(mfma_pv(u, b, D, zero)) for D in range(8)]

def epi_inv(b):
    return xlane("v_add_f32", vL[b], vInv[b]) + ["v_rcp_f32 v%d, v%d" % (vInv[b], vL[b])]

def epi_conv(b, packed):
    out = []
    for D in range(8):
        o = O(b, D)
        if packed:
            for r in (0, 2): out.append(I("v_pk_mul_f32 %s, %s, %s op_sel_hi:[1,0]" % (vr(o + r, 2), vr(o + r, 2), vr(vInv[b], 2))))
        else:
            for r in range(4): out.append(I("v_mul_f32 v%d, v%d, v%d" % (o + r, o + r, vInv[b])))
        for k in range(2): out.append(I("v_cvt_pk_bf16_f32 v%d, v%d, v%d" % (o + k, o + 2 * k, o + 2 * k + 1)))
    return out

def epi_write(b):
    return [I("ds_write_b64 v%d, %s offset:%d" % (vOw, vr(O(b, D), 2), 16 * OPITCH * b + 16 * D), 4, "dsw") for D in range(8)]

def epi_read(b):
    return [I("ds_read_b128 %s, v%d offset:%d" % (vr(vStage + 16 * (b & 1) + 4 * j, 4), vOr, OPITCH * (16 * b + 4 * j)), 4, "dsr") for j in range(4)]

def epi_store(cfg, b):
    return [I("buffer_store_dwordx4 %s, v%d, %s, %s offen offset:%d%s" % (vr(vStage + 16 * (b & 1) + 4 * j, 4), vDma[j], srd(sSrdO),
              "s%d" % sK16[b] if b else "0", BLK * j, cfg.st_pol), 4, "st") for j in range(4)]

def fallback(cfg):
    L = []; A = L.append
    A("L_fallback:")
    A("s_waitcnt vmcnt(0) lgkmcnt(0)")
    fd = vQd
    A("v_lshlrev_b32 v%d, 4, v%d" % (fd[0], vLane))
    for j in range(1, 4): A("v_add_u32 v%d, %d, v%d" % (fd[j], 3056 * j, fd[0]))
    A("s_add_u32 s48, s%d, %d" % (sWslot, 5 * SLOT))
    A("v_add_u32 v%d, s48, v%d" % (vK, vKl))
    A("v_add_u32 v%d, s%d, v%d" % (vV, sOreg, vVl))
    for r in range(128): A("v_mov_b32 v%d, 0" % (128 + r))
    for b in range(4):
        A("v_mov_b32 v%d, 0" % vL[b]); A("v_mov_b32 v%d, 0x7f7fffff" % N(b))
    A("s_mov_b32 s%d, 0" % sOff)
    A("L_fb_loop:")
    for (sr, base) in ((sSrdK, 48), (sSrdV, sOreg)):
        for jj in range(4):
            A("s_add_u32 m0, s%d, %d" % (base, 4 * BLK * jj))
            A("s_add_u32 s49, s%d, %d" % (sOff, 1024 * jj))
            for j in range(4): A(dma_ins(cfg, sr, j, "s49", fd).t)
    A("s_waitcnt vmcnt(0)")
    for u in range(2):
        for x in k_reads(u, vK, 0): A(x.t)
        A("s_waitcnt lgkmcnt(0)")
        for x in v_reads(u, vV, 0): A(x.t)
        for b in range(4):
            for kb2 in range(2):
                for s in range(4): A(mfma_qk(u, b, kb2, s, True).t)
        A("s_nop 15")
        for b in range(4):
            L += max_chain(b, vT[0], vT[1])
            if PRE[0]: A("v_sub_f32 v%d, 0, v%d" % (vT[0], vT[0]))
            else: A("v_mul_f32 v%d, s%d, -v%d" % (vT[0], sC, vT[0]))
            A("v_min_f32 v%d, v%d, v%d" % (vT[0], vT[0], N(b)))
            A("v_sub_f32 v%d, v%d, v%d" % (vT[1], vT[0], N(b)))
            A("v_exp_f32 v%d, v%d" % (vT[1], vT[1]))
            A("v_mov_b32 v%d, v%d" % (N(b), vT[0]))
            A("v_mul_f32 v%d, v%d, v%d" % (vL[b], vL[b], vT[1]))
            for r in range(32): A("v_mul_f32 v%d, v%d, v%d" % (O(b, 0) + r, O(b, 0) + r, vT[1]))
            L += sm_plain(b)
        A("s_waitcnt lgkmcnt(0)")
        A("s_nop 1")
        for b in range(4):
            for D in range(8): A(mfma_pv(u, b, D).t)
        A("s_nop 15")
    A("s_add_u32 s%d, s%d, 16384" % (sOff, sOff))
    A("s_cmp_lt_u32 s%d, 262144" % sOff)
    A("s_cbranch_scc1 L_fb_loop")
    for b in range(4):
        L += epi_inv(b) + ["s_nop 0"] + [x.t for x in epi_conv(b, False) + epi_write(b)]
        A("s_waitcnt lgkmcnt(0)")
        L += [x.t for x in epi_read(b)]
        A("s_waitcnt lgkmcnt(0)")
        L += [x.t for x in epi_store(cfg, b)]
        A("s_waitcnt vmcnt(0)")
    A("s_endpgm")
    return L

def stamp(cfg, idx):
    if not cfg.stamps: return []
    r = sStamp + 2 * idx
    return ["%s s[%d:%d]" % ("s_memrealtime" if idx < 2 else "s_memtime", r, r + 1)]

def body_fixed(cfg, G, i):
    G[0].salu.append(I("s_waitcnt vmcnt(%d)" % (8 * (cfg.dist - 1)), 4, "wait"))
    G[0].salu.append(I("s_barrier", 12, "bar"))
    reads = k_reads(2 * i) + v_reads(2 * i) + k_reads(2 * i + 1) + v_reads(2 * i + 1)
    dg = set(cfg.vdma) | set(cfg.kdma)
    par = (cfg.phi + cfg.alag + 1) & 1
    free = [g for g in range(1, 122) if g not in dg and (g & 1) == par]
    if cfg.pre:
        light = [g for g in free if not G[g].hasC]
        heavy = [g for g in free if G[g].hasC]
        nh = len(reads) - len(light)
        step = len(heavy) / float(max(nh, 1))
        free = sorted(light + [heavy[int(j * step)] for j in range(nh)])
    assert len(free) >= len(reads)
    pos = {}
    for x, g in zip(reads, free): G[g].mem.append(x); pos[x.w] = g
    lastK = pos[("K", 2 * i + 1, 1, 3)]; lastV = pos[("V", 2 * i + 1, 7, 1)]
    G[cfg.kdma[0] - 1].salu.append(I("s_add_u32 m0, s%d, s%d" % (sPrev if cfg.dist == 3 else sPrev2, sWoff), 4, "salu"))
    for j, g in enumerate(cfg.kdma): G[g].mem.append(dma_ins(cfg, sSrdK, j, "s%d" % sOff))
    assert cfg.vdma[0] - 1 > cfg.kdma[3]
    G[cfg.vdma[0] - 1].salu.append(I("s_add_u32 m0, m0, %d" % SLOT, 4, "salu"))
    for j, g in enumerate(cfg.vdma): G[g].mem.append(dma_ins(cfg, sSrdV, j, "s%d" % sOff))
    a = cfg.vdma[3] + 1
    G[a].salu.append(I("s_add_u32 s%d, s%d, 16384" % (sOff, sOff), 4, "salu"))
    if cfg.dist == 2: G[a - 2].salu.append(I("s_mov_b32 s%d, s%d" % (sPrev2, sPrev), 4, "salu"))
    G[a + 1].salu.append(I("s_mov_b32 s%d, s%d" % (sPrev, sCur), 4, "salu"))
    G[a + 2].salu.append(I("s_add_u32 s%d, s%d, %d" % (sCur, sCur, STAGE), 4, "salu"))
    G[a + 3].salu.append(I("s_cmp_eq_u32 s%d, %d" % (sCur, 4 * STAGE), 4, "salu"))
    G[a + 4].salu.append(I("s_cselect_b32 s%d, 0, s%d" % (sCur, sCur), 4, "salu"))
    G[max(a + 5, lastK + 1)].valu.append(I("v_add_u32 v%d, s%d, v%d" % (vK, sCur, vKl)))
    G[max(a + 5, lastV + 1)].valu.append(I("v_add_u32 v%d, s%d, v%d" % (vV, sCur, vVl)))
    G[125].salu.append(I("s_cmp_lt_u32 s%d, %d" % (sOff, (16 + cfg.dist) * 16384), 4, "salu"))
    if cfg.stamps:
        G[122].salu.append(I("s_memtime s[50:51]", 4, "salu"))
        G[123].salu.append(I("s_memrealtime s[52:53]", 4, "salu"))
        G[124].valu.append(I("v_cmp_eq_u32 vcc, s%d, v%d" % (sIt, vLane)))
        G[126].valu.append(I("v_mov_b32 v%d, s50" % vX[0])); G[126].valu.append(I("v_mov_b32 v%d, s52" % vX[1]))
        G[126].valu.append(I("v_cndmask_b32 v%d, v%d, v%d, vcc" % (vStLo, vStLo, vX[0])))
        G[126].valu.append(I("v_cndmask_b32 v%d, v%d, v%d, vcc" % (vStRt, vStRt, vX[1])))
        G[6].salu.append(I("s_add_u32 s%d, s%d, 1" % (sIt, sIt), 4, "salu"))
    G[126].salu.append(I("s_waitcnt lgkmcnt(0)", 4, "wait0"))

def build(cfg):
    PRE[0] = cfg.pre
    L = []; A = L.append
    A("; @launch grid=(256,1,1) block=(256,1,1) lds=%d" % LDS_BYTES)
    A('.amdgcn_target "amdgcn-amd-amdhsa--gfx950"')
    A(".text"); A(".globl %s_kernel" % NAME); A(".p2align 8"); A(".type %s_kernel,@function" % NAME)
    A("%s_kernel:" % NAME)
    A("s_cmp_ge_u32 s2, 256")
    A("s_cbranch_scc1 L_end")
    A("s_load_dwordx4 s[4:7], s[0:1], 0")
    A("s_load_dwordx4 s[40:43], s[0:1], 16")
    L += stamp(cfg, 0) + stamp(cfg, 2)
    if cfg.stamps: A("s_load_dwordx2 s[44:45], s[0:1], 40")
    t0, t1, t2, t3 = vT
    A("v_lshrrev_b32 v%d, 6, v0" % t0)
    A("v_and_b32 v%d, 63, v0" % vLane)
    A("v_readfirstlane_b32 s%d, v%d" % (sW, t0))
    A("v_lshlrev_b32 v%d, 4, v0" % vDma[0])
    if cfg.pf:
        A("s_getpc_b64 s[48:49]")
        for j in range(0, cfg.pf, 4):
            if j: A("v_add_u32 v%d, %d, v%d" % (t1, 1024 * j, vDma[0]))
            A("global_load_dwordx4 v[%d:%d], v%d, s[48:49]" % (vStage + j, vStage + j + 3, t1 if j else vDma[0]))
    for j in range(1, 4): A("v_add_u32 v%d, %d, v%d" % (vDma[j], 3056 * j, vDma[0]))
    A("v_lshlrev_b32 v%d, 2, v0" % t0)
    A("v_and_b32 v%d, 0xc0, v%d" % (t0, t0))
    A("v_xor_b32 v%d, v%d, v%d" % (vQd[0], t0, vDma[0]))
    for j in range(1, 4): A("v_add_u32 v%d, %d, v%d" % (vQd[j], 3056 * j, vQd[0]))
    A("s_mul_i32 s%d, s%d, %d" % (sWoff, sW, 4 * BLK))
    A("s_mul_i32 s%d, s%d, %d" % (sWslot, sW, SLOT))
    A("s_mul_i32 s%d, s%d, %d" % (sOreg, sW, OREG))
    A("s_lshl_b32 s%d, s2, 16" % sTmp)
    A("s_lshl_b32 s%d, s2, 18" % (sTmp + 1))
    for sr, n in ((sSrdQ, 65536), (sSrdK, 262144), (sSrdV, 262144), (sSrdO, 65536)):
        A("s_mov_b32 s%d, %d" % (sr + 2, n)); A("s_mov_b32 s%d, 0x20000" % (sr + 3))
    for j in range(1, 4): A("s_mov_b32 s%d, %d" % (sK16[j], 16384 * j))
    A("s_waitcnt lgkmcnt(0)")
    def mk(sr, p, t):
        A("s_add_u32 s%d, s%d, s%d" % (sr, p, t))
        A("s_addc_u32 s%d, s%d, 0" % (sr + 1, p + 1))
        A("s_and_b32 s%d, s%d, 0xffff" % (sr + 1, sr + 1))
    def emit_dma(srdreg, slot, soff):
        A("s_add_u32 m0, s%d, %d" % (sWoff, slot * SLOT))
        A("s_nop 0")
        for j in range(4): A(dma_ins(cfg, srdreg, j, soff).t)
    def grp(name):
        so = lambda j: "0" if j == 0 else "s%d" % sK16[j]
        j = int(name[1])
        if name[0] == "Q":
            return ["s_add_u32 m0, s%d, %d" % (sWslot, 5 * SLOT + 4 * BLK * j), "s_nop 0"] + [dma_ins(cfg, sSrdQ, x, so(j), vQd).t for x in range(4)]
        sr, slot = (sSrdK, 2 * j) if name[0] == "K" else (sSrdV, 2 * j + 1)
        return ["s_add_u32 m0, s%d, %d" % (sWoff, slot * SLOT), "s_nop 0"] + [dma_ins(cfg, sr, x, so(j)).t for x in range(4)]
    order = ["K0", "Q0", "Q1", "Q2", "Q3", "V0", "K1", "V1", "K2", "V2"] + (["K3", "V3"] if cfg.dist == 3 else [])
    nearly = 9
    st = {"n": 0}
    def top_up(done):
        while st["n"] < min(nearly, done + cfg.win):
            L.extend(grp(order[st["n"]])); st["n"] += 1
    def wait_for(name, extra=""):
        k = order.index(name)
        A("s_waitcnt vmcnt(%d)%s" % (4 * (st["n"] - k - 1), extra))
        return k + 1
    mk(sSrdK, 6, sTmp + 1)
    L.extend(grp("K0")); st["n"] = 1
    mk(sSrdQ, 4, sTmp)
    mk(sSrdV, 40, sTmp + 1)
    top_up(0)
    mk(sSrdO, 42, sTmp)
    A("v_bfe_u32 v%d, v%d, 2, 2" % (t0, vLane))
    A("v_lshrrev_b32 v%d, 1, v%d" % (t1, t0))
    A("v_xor_b32 v%d, v%d, v%d" % (t1, t0, t1))
    A("v_and_b32 v%d, 3, v%d" % (t2, vLane))
    A("v_lshrrev_b32 v%d, 4, v%d" % (t3, vLane))
    A("v_and_b32 v%d, 1, v%d" % (vX[0], t3))
    A("v_lshrrev_b32 v%d, 1, v%d" % (vX[1], t3))
    A("v_lshl_add_u32 v%d, v%d, 1, v%d" % (vX[0], vX[0], vX[1]))
    A("v_lshl_add_u32 v%d, v%d, 2, v%d" % (vKl, t1, t2))
    A("v_mul_u32_u24 v%d, %d, v%d" % (vKl, BLK, vKl))
    A("v_lshl_add_u32 v%d, v%d, 6, v%d" % (vKl, vX[0], vKl))
    A("v_mul_u32_u24 v%d, %d, v%d" % (vQrd, BLK, t2))
    A("v_lshl_add_u32 v%d, v%d, 8, v%d" % (vQrd, t1, vQrd))
    A("v_xor_b32 v%d, v%d, v%d" % (vX[0], vX[0], t1))
    A("v_lshl_add_u32 v%d, v%d, 6, v%d" % (vQrd, vX[0], vQrd))
    A("v_add_u32 v%d, s%d, v%d" % (vQrd, sWslot, vQrd))
    A("v_add_u32 v%d, %d, v%d" % (vQrd, 5 * SLOT, vQrd))
    A("v_lshl_add_u32 v%d, v%d, 2, v%d" % (vOw, t2, t1))
    A("v_mul_u32_u24 v%d, %d, v%d" % (vOw, OPITCH, vOw))
    A("v_lshl_add_u32 v%d, v%d, 7, v%d" % (vOw, vX[1], vOw))
    A("v_and_b32 v%d, 1, v%d" % (vX[0], t3))
    A("v_lshl_add_u32 v%d, v%d, 3, v%d" % (vOw, vX[0], vOw))
    A("v_add_u32 v%d, s%d, v%d" % (vOw, sOreg, vOw))
    A("v_mul_u32_u24 v%d, %d, v%d" % (vOr, OPITCH, t3))
    A("v_and_b32 v%d, 15, v%d" % (vX[0], vLane))
    A("v_lshl_add_u32 v%d, v%d, 4, v%d" % (vOr, vX[0], vOr))
    A("v_add_u32 v%d, s%d, v%d" % (vOr, sOreg, vOr))
    A("v_xor_b32 v%d, v%d, v%d" % (vX[1], t3, vX[1]))
    A("v_lshl_add_u32 v%d, v%d, 2, v%d" % (vVl, vX[1], t0))
    A("v_mul_u32_u24 v%d, %d, v%d" % (vVl, BLK, vVl))
    A("v_lshrrev_b32 v%d, 1, v%d" % (vX[0], t2))
    A("v_lshl_add_u32 v%d, v%d, 7, v%d" % (vVl, vX[0], vVl))
    A("v_and_b32 v%d, 1, v%d" % (vX[0], t2))
    A("v_lshl_add_u32 v%d, v%d, 3, v%d" % (vVl, vX[0], vVl))
    A("v_add_u32 v%d, %d, v%d" % (vK, STAGE, vKl))
    A("v_add_u32 v%d, %d, v%d" % (vV, STAGE, vVl))
    cbits = f2u(1.4426950408889634 * 128 ** -0.5)
    A("s_mov_b32 s%d, 0x%08x" % (sC, cbits)); A("s_mov_b32 s%d, 0x%08x" % (sC + 1, cbits))
    A("s_mov_b32 s%d, 0x%08x" % (sThr, f2u(cfg.thresh)))
    A("s_mov_b32 s%d, %d" % (sOff, (1 + cfg.dist) * 16384))
    A("s_mov_b32 s%d, %d" % (sPrev2, 3 * STAGE))
    A("s_mov_b32 s%d, %d" % (sCur, STAGE)); A("s_mov_b32 s%d, 0" % sPrev)
    A("s_mov_b32 s%d, -1" % sIt)
    for b in range(4): A("v_mov_b32 v%d, 0" % vL[b])
    if cfg.stamps: A("v_mov_b32 v%d, 0" % vStLo); A("v_mov_b32 v%d, 0" % vStRt)

    def q_read(b):
        if cfg.pre: return ["ds_read_b128 %s, v%d offset:%d" % (vr(128 + 4 * s, 4), vQrd, 4 * BLK * b + 16 * s) for s in range(4)]
        return ["ds_read_b128 %s, v%d offset:%d" % (ar(Qa(b, s), 4), vQrd, 4 * BLK * b + 16 * s) for s in range(4)]
    def q_scale(b):
        out = []
        for r in range(16):
            out.append("v_lshlrev_b32 v%d, 16, v%d" % (144 + 2 * r, 128 + r))
            out.append("v_and_b32 v%d, 0xffff0000, v%d" % (145 + 2 * r, 128 + r))
        for r in range(16): out.append("v_pk_mul_f32 %s, %s, s[%d:%d]" % (vr(144 + 2 * r, 2), vr(144 + 2 * r, 2), sC, sC + 1))
        for r in range(16): out.append("v_cvt_pk_bf16_f32 v%d, v%d, v%d" % (128 + r, 144 + 2 * r, 145 + 2 * r))
        for r in range(16): out.append("v_accvgpr_write_b32 a%d, v%d" % (Qa(b, 0) + r, 128 + r))
        out.append("s_nop 1")
        return out
    def first_sm(b):
        out = max_chain(b, t0, t1)
        if cfg.pre:
            for r in range(4): out.append("v_sub_f32 v%d, 0, v%d" % (N(b) + r, t0))
        else: out.append("v_mul_f32 v%d, s%d, -v%d" % (N(b), sC, t0))
        return out + sm_plain(b)
    if st["n"] < nearly: top_up(wait_for("K0"))
    d = wait_for("Q0")
    L += stamp(cfg, 3)
    L += q_read(0)
    A("s_barrier")
    L += [x.t for x in k_reads(0, vKl, 0)]
    top_up(d)
    for b in range(4):
        if b:
            d = wait_for("Q%d" % b)
            L += q_read(b)
            top_up(d)
            L += first_sm(b - 1)
        if cfg.pre:
            A("s_waitcnt lgkmcnt(%d)" % (8 if (b == 0 and not cfg.stamps) else 0))
            L += q_scale(b)
        A("s_waitcnt lgkmcnt(0)")
        k1 = k_reads(1, vKl, 0) if b == 0 else []
        for j, gp in enumerate([mfma_qk(0, b, kb2, s, True) for kb2 in range(2) for s in range(4)]):
            A(gp.t)
            if k1: A(k1[j].t)
        A("s_nop 7")
    L += first_sm(3)
    d = wait_for("V0", " lgkmcnt(0)")
    A("s_barrier")
    L += [x.t for x in v_reads(0, vVl, SLOT)]
    nearly = len(order)
    top_up(d)
    rest = order[st["n"]:]

    G = []
    qk_at = {}
    def add(kind, u, b, zero=False):
        if kind == "QK": qk_at[(u, b)] = len(G)
        G.extend(group(kind, u, b, zero))
    add("PV", 0, 0, True); add("PV", 0, 1, True); add("QK", 1, 0); add("PV", 0, 2, True); add("QK", 1, 1); add("PV", 0, 3, True); add("QK", 1, 2)
    bstart = {}
    for i in range(1, 16):
        bstart[i] = len(G)
        for u in (2 * i - 1, 2 * i):
            add("PV", u, 0); add("QK", u, 3); add("PV", u, 1); add("QK", u + 1, 0); add("PV", u, 2); add("QK", u + 1, 1); add("PV", u, 3); add("QK", u + 1, 2)
    tstart = len(G)
    add("PV", 31, 0); add("QK", 31, 3); add("PV", 31, 1); add("PV", 31, 2); add("PV", 31, 3)
    for gp in G: gp.hasC = False
    cdone = {}
    tailsm = []
    for u in range(1, 32):
        for b in range(4):
            g0 = qk_at[(u, b)] + cfg.phi
            for e in range(8):
                for kind, g in (("F", g0 + 2 * e), ("E", g0 + 2 * e + 1), ("A", g0 + 2 * e + 1 + cfg.alag)):
                    x = sm_ins(kind, b, e)
                    if x is None: continue
                    x.key = (g, u, b, kind, e)
                    if g >= tstart: tailsm.append(x)
                    else: G[g].valu.append(x)
                if e & 1:
                    g = g0 + 2 * e + 1 + cfg.alag
                    x = sm_ins("C", b, e // 2); x.key = (g, u, b, "C", e // 2)
                    if g >= tstart: tailsm.append(x)
                    else: G[g].valu.append(x); G[g].hasC = True
                    cdone[(u, b)] = g
    rank = {"F": 0, "A": 1, "C": 2, "E": 3}
    for gp in G: gp.valu.sort(key=lambda x: rank[x.key[3]])
    for i in range(1, 16): body_fixed(cfg, G[bstart[i]:bstart[i] + 128], i)
    for j, x in enumerate(v_reads(1, vVl, SLOT)): G[3 + 2 * j].mem.append(x)
    G[bstart[1] - 2].salu.append(I("s_waitcnt lgkmcnt(0)", 4, "wait0"))
    assert len(rest) <= len(cfg.late)
    for name, g in zip(rest, cfg.late[len(cfg.late) - len(rest):]):
        t = grp(name)
        G[g - 1].salu.append(I(t[0], 4, "salu"))
        for j in range(4): G[g + 2 * j].mem.append(I(t[2 + j], 8, "dma"))
    G[tstart].salu.append(I("s_waitcnt vmcnt(0)", 4, "wait"))
    G[tstart].salu.append(I("s_barrier", 12, "bar"))
    tailsm.sort(key=lambda x: (x.key[0], rank[x.key[3]]))
    placed = {}
    rel3 = qk_at[(31, 3)]
    g = tstart
    level = 16
    for x in tailsm:
        _, u, b, kind, e = x.key
        lo = g
        first = "E" if cfg.pre else "F"
        if b == 3 and kind == first: lo = max(lo, rel3 + (3 if e < 4 else 7) + 3)
        if kind == "E" and (b, "F", e) in placed: lo = max(lo, placed[(b, "F", e)] + 1)
        if kind == "A" and (b, "E", e) in placed: lo = max(lo, placed[(b, "E", e)] + 1)
        g = lo
        while G[g].cost() + x.c > level: g += 1
        G[g].valu.append(x); placed[(b, kind, e)] = g
        if kind == "C": cdone[(u, b)] = g
    smend = g
    for g, gp in enumerate(G):
        if hasattr(gp.m, "pneed") and gp.m.pneed[0] > 0:
            assert cdone[gp.m.pneed] < g - 1, "P late %s at %d" % (gp.m.pneed, g)
    have = {("K", 1, kb2, s) for kb2 in range(2) for s in range(4)} | {("V", 0, D, e) for D in range(8) for e in range(2)}
    lastuse = {}
    for g, gp in enumerate(G):
        for t in gp.m.need: lastuse[t] = g
    for g, gp in enumerate(G):
        for x in gp.mem:
            if x.k == "ds":
                old = (x.w[0], x.w[1] - 2) + x.w[2:]
                assert lastuse.get(old, -1) <= g, "fragment overwritten early %s" % (x.w,)
    add_waits(cfg, G, have)
    ep0 = [I(t, 8 if t.startswith("s_nop") or t.startswith("v_rcp") else 4) for t in epi_inv(0) + epi_inv(1)] + epi_conv(0, False)
    for g in range(tstart + 11, len(G)):
        while ep0 and G[g].cost() < 8: G[g].valu.append(ep0.pop(0))
    b1 = [x.text() for x in G[bstart[1]:bstart[1] + 128]]
    for i in range(2, 16):
        assert [x.text() for x in G[bstart[i]:bstart[i] + 128]] == b1, "not periodic at %d" % i
    costs = [gp.cost() for gp in G[bstart[2]:bstart[2] + 128]]
    sys.stderr.write("gap costs: %s\n est cycles/tile %d\n" % ("".join("%x" % min(15, c // 4) for c in costs), sum(8 + max(8, c) for c in costs) + 20))
    A("s_waitcnt lgkmcnt(0)")
    for gp in G[:bstart[1] - 1]: L += gp.text()
    lastp = G[bstart[1] - 1]; lastb = G[bstart[1] + 127]
    assert [x.t for x in lastp.valu] == [x.t for x in lastb.valu] and not lastb.mem and not lastb.salu and not lastp.mem and not lastp.salu
    L += stamp(cfg, 4)
    if cfg.stamps: A("s_waitcnt lgkmcnt(0)")
    A(lastp.m.t)
    if cfg.align: A(".p2align %d" % cfg.align)
    for _ in range(cfg.pad): A("s_nop 0")
    A("L_loop:")
    L += [x.t for x in lastb.valu]
    for g, gp in enumerate(G[bstart[1]:bstart[1] + 127]):
        L += gp.text()
        if cfg.xnop and g % cfg.xnop == 0: A("s_nop 0")
    A(lastb.m.t)
    A("s_cbranch_scc1 L_loop")
    L += [x.t for x in lastb.valu]
    for gp in G[tstart:]: L += gp.text()
    L += stamp(cfg, 5)
    sys.stderr.write("tail: softmax ends at gap %d of %d, block-0 epilogue left %d\n" % (smend - tstart, len(G) - tstart, len(ep0)))
    T = [x.t for x in ep0] + [x.t for x in epi_write(0)]
    T += epi_inv(2) + epi_inv(3)
    T += [x.t for x in epi_conv(1, True)]
    W0 = "s_waitcnt lgkmcnt(0)"
    T += [W0] + [x.t for x in epi_read(0) + epi_write(1)]
    T += [x.t for x in epi_conv(2, True)]
    T += [W0] + [x.t for x in epi_store(cfg, 0) + epi_read(1) + epi_write(2)]
    T += [x.t for x in epi_conv(3, True)]
    T += [W0] + [x.t for x in epi_store(cfg, 1) + epi_read(2) + epi_write(3)]
    T += ["v_add_f32 v%d, v%d, v%d" % (t0, vL[0], vL[1]), "v_add_f32 v%d, v%d, v%d" % (t1, vL[2], vL[3]), "v_add_f32 v%d, v%d, v%d" % (t0, t0, t1),
          "v_cmp_nge_f32 vcc, s%d, v%d" % (sThr, t0)]
    T += [W0] + [x.t for x in epi_read(3)] + [x.t for x in epi_store(cfg, 2)]
    T += [W0] + [x.t for x in epi_store(cfg, 3)]
    T += ["s_cbranch_vccnz L_fallback"]
    L += T
    if cfg.stamps:
        A("s_waitcnt vmcnt(0)")
        L += stamp(cfg, 6) + stamp(cfg, 1)
        A("s_waitcnt lgkmcnt(0)")
        A("s_lshl_b32 s%d, s2, 2" % sTmp)
        A("s_add_u32 s%d, s%d, s%d" % (sTmp, sTmp, sW))
        A("s_lshl_b32 s%d, s%d, 8" % (sTmp, sTmp))
        A("v_mov_b32 v%d, s%d" % (t0, sTmp))
        for kk in range(7):
            A("v_mov_b32 v%d, s%d" % (t2, sStamp + 2 * kk))
            A("v_mov_b32 v%d, s%d" % (t3, sStamp + 2 * kk + 1))
            A("global_store_dwordx2 v%d, v[%d:%d], s[44:45] offset:%d" % (t0, t2, t3, 8 * kk))
            A("s_nop 1")
        A("v_lshl_add_u32 v%d, v%d, 3, v%d" % (t0, vLane, t0))
        A("v_cmp_gt_u32 vcc, 16, v%d" % vLane)
        A("s_and_saveexec_b64 s[48:49], vcc")
        A("global_store_dwordx2 v%d, v[%d:%d], s[44:45] offset:64" % (t0, vStLo, vStRt))
    A("L_end:")
    A("s_endpgm")
    L += fallback(cfg)
    A('.section .rodata,"a"'); A(".p2align 6")
    A(".amdhsa_kernel %s_kernel" % NAME)
    A("  .amdhsa_next_free_vgpr 512"); A("  .amdhsa_next_free_sgpr 102"); A("  .amdhsa_accum_offset 256")
    A("  .amdhsa_group_segment_fixed_size 0"); A("  .amdhsa_kernarg_size 48"); A("  .amdhsa_user_sgpr_count 2")
    A("  .amdhsa_user_sgpr_kernarg_segment_ptr 1"); A("  .amdhsa_system_sgpr_workgroup_id_x 1")
    A(".end_amdhsa_kernel")
    return "\n".join(L) + "\n"

if __name__ == "__main__":
    ap = argparse.ArgumentParser()
    ap.add_argument("-o", default="cdna_kernels/%s.s" % NAME)
    ap.add_argument("opts", nargs="*")
    a = ap.parse_args()
    cfg = Cfg()
    for o in a.opts:
        k, v = o.split("=")
        cur = getattr(cfg, k)
        if isinstance(cur, str): v = (" " + v.replace("+", " ")) if v else ""
        elif isinstance(cur, tuple): v = tuple(int(x) for x in v.split(","))
        elif isinstance(cur, float): v = float(v)
        else: v = int(v)
        setattr(cfg, k, v)
    open(a.o, "w").write(build(cfg))
```

```python
import sys, struct, argparse

NAME = "standalone__gqa_softmax__near_ridge"
SLOT = 16640
BLK = 1040
STAGE = 2 * SLOT
LDS_BYTES = 9 * SLOT
OPITCH = 272
OREG = 64 * OPITCH

def f2u(x): return struct.unpack("<I", struct.pack("<f", x))[0]

class Cfg:
    stamps = 0
    ld_pol = " nt"
    st_pol = " sc0 sc1"
    thresh = 2.0 ** 60
    kdma = (21, 25, 29, 33)
    vdma = (69, 73, 77, 81)
    lat = 5
    pf = 0
    align = 6
    pad = 0
    pre = 0
    phi = 7
    alag = 3
    xnop = 0
    ramp = 0
    rampnop = 1
    dist = 3
    win = 9
    late = (8, 24, 40)

class I:
    def __init__(self, t, c=4, k="valu", w=None, need=None):
        self.t = t; self.c = c; self.k = k; self.w = w; self.need = need

def O(b, D): return 128 + 32 * b + 4 * D
def S(b): return 64 + 8 * b
def N(b): return 96 + 4 * b
def Qa(b, s): return 16 * b + 4 * s
def Ka(par, kb2, s): return 64 + 32 * par + 16 * kb2 + 4 * s
def Va(par, D): return 128 + 32 * par + 4 * D
vLane = 1
vK, vKl, vV, vVl = 2, 3, 4, 5
vDma = (6, 7, 8, 9)
vL = (10, 11, 12, 13)
vQrd, vOw, vOr = 14, 15, 16
vInv = (18, 20, 22, 24)
vT = (26, 27, 28, 29)
vStLo, vStRt = 30, 31
vStage = 32
vQd = (112, 113, 114, 115)
vX = (116, 117)
sW = 3
sSrdQ, sSrdK, sSrdV, sSrdO = 8, 12, 16, 20
sC, sThr, sWoff, sOff, sCur, sPrev = 24, 26, 27, 28, 29, 30
sK16 = (None, 32, 33, 34)
sTmp = 36
sWslot = 46
sIt = 47
sOreg = 31
sPrev2 = 35
sStamp = 56
PRE = [0]

def vr(a, n): return "v[%d:%d]" % (a, a + n - 1)
def ar(a, n): return "a[%d:%d]" % (a, a + n - 1)
def srd(a): return "s[%d:%d]" % (a, a + 3)

def mfma_qk(u, b, kb2, s, zero=False):
    par = u & 1
    d = vr(S(b) + 4 * kb2, 4)
    c = d if s else ("0" if (zero or not PRE[0]) else vr(N(b), 4))
    return I("v_mfma_f32_16x16x32_bf16 %s, %s, %s, %s" % (d, ar(Ka(par, kb2, s), 4), ar(Qa(b, s), 4), c), 8, "mfma", need=[("K", u, kb2, s)])

def mfma_pv(u, b, D, zero=False):
    par = u & 1
    d = vr(O(b, D), 4)
    x = I("v_mfma_f32_16x16x32_bf16 %s, %s, %s, %s" % (d, ar(Va(par, D), 4), vr(S(b), 4), "0" if zero else d), 8, "mfma",
          need=[("V", u, D, 0), ("V", u, D, 1)])
    x.pneed = (u, b)
    return x

def k_reads(u, areg=vK, base=0):
    kb = par = u & 1
    return [I("ds_read_b128 %s, v%d offset:%d" % (ar(Ka(par, kb2, s), 4), areg, base + 256 * (2 * kb + kb2) + 16 * s), 4, "ds", w=("K", u, kb2, s))
            for kb2 in range(2) for s in range(4)]

def v_reads(u, areg=vV, base=SLOT):
    kb = par = u & 1
    return [I("ds_read_b64_tr_b16 %s, v%d offset:%d" % (ar(Va(par, D) + 2 * e, 2), areg, base + 256 * (2 * kb + e) + 16 * D), 4, "ds", w=("V", u, D, e))
            for D in range(8) for e in range(2)]

def dma_ins(cfg, srdreg, j, soff, regs=vDma):
    return I("buffer_load_dwordx4 v%d, %s, %s offen offset:%d%s lds" % (regs[j], srd(srdreg), soff, BLK * j, cfg.ld_pol), 8, "dma")

def sm_ins(kind, b, e, explicit=False):
    s = S(b)
    if kind == "F":
        if PRE[0]:
            if not explicit: return None
            return I("v_add_f32 v%d, v%d, v%d" % (s + e, s + e, N(b)), 4)
        return I("v_fma_f32 v%d, v%d, s%d, v%d" % (s + e, s + e, sC, N(b)), 4)
    if kind == "E": return I("v_exp_f32 v%d, v%d" % (s + e, s + e), 8, "trans")
    if kind == "A": return I("v_add_f32 v%d, v%d, v%d" % (vL[b], vL[b], s + e), 4)
    if kind == "C": return I("v_cvt_pk_bf16_f32 v%d, v%d, v%d" % (s + e, s + 2 * e, s + 2 * e + 1), 4)

def sm_plain(b):
    out = []
    for j in range(6):
        for h in range(2):
            if j < 4: out.append(sm_ins("F", b, 2 * j + h, True))
            if 1 <= j <= 4: out.append(sm_ins("E", b, 2 * (j - 1) + h))
            if j >= 2: out.append(sm_ins("A", b, 2 * (j - 2) + h))
        if j >= 2: out.append(sm_ins("C", b, j - 2))
    return [x.t for x in out]

def xlane(op, r, t):
    return ["v_mov_b32 v%d, v%d" % (t, r), "s_nop 1", "v_permlane32_swap_b32 v%d, v%d" % (r, t), "%s v%d, v%d, v%d" % (op, r, r, t),
            "v_mov_b32 v%d, v%d" % (t, r), "s_nop 1", "v_permlane16_swap_b32 v%d, v%d" % (r, t), "%s v%d, v%d, v%d" % (op, r, r, t)]

def max_chain(b, dst, t):
    s = S(b)
    out = ["v_max3_f32 v%d, v%d, v%d, v%d" % (dst, s, s + 1, s + 2), "v_max3_f32 v%d, v%d, v%d, v%d" % (dst, dst, s + 3, s + 4),
           "v_max3_f32 v%d, v%d, v%d, v%d" % (dst, dst, s + 5, s + 6), "v_max_f32 v%d, v%d, v%d" % (dst, dst, s + 7)]
    return out + xlane("v_max_f32", dst, t)

class Gap:
    def __init__(self, m):
        self.m = m; self.salu = []; self.mem = []; self.valu = []
    def cost(self):
        c = 0
        for i, x in enumerate(self.salu): c += x.c - (4 if i == 0 else 0)
        return c + sum(x.c for x in self.mem) + sum(x.c for x in self.valu)
    def text(self): return [self.m.t] + [x.t for x in self.salu + self.mem + self.valu]

def add_waits(cfg, gaps, have):
    issued = []; covered = -1; idx = {}
    for g, gp in enumerate(gaps):
        for x in gp.salu:
            if x.k == "wait0": covered = len(issued) - 1
        if g + 1 < len(gaps):
            nd = gaps[g + 1].m.need or []
            missing = [t for t in nd if t not in idx and t not in have]
            if missing: raise SystemExit("read not issued before use: %s gap %d" % (missing, g + 1))
            need = [idx[t] for t in nd if t in idx]
            if need and max(need) > covered:
                tgt = max(need)
                if issued[tgt][1] > g - cfg.lat: sys.stderr.write("warn: short ds latency at gap %d (issued %d)\n" % (g, issued[tgt][1]))
                for j in range(len(issued)):
                    if issued[j][1] <= g - cfg.lat: tgt = max(tgt, j)
                n = len(issued) - 1 - tgt
                assert n <= 15
                gp.salu.insert(0, I("s_waitcnt lgkmcnt(%d)" % n, 4, "wait"))
                covered = tgt
        for x in gp.mem:
            if x.k == "ds": idx[x.w] = len(issued); issued.append((x.w, g))

def group(kind, u, b, zero=False):
    if kind == "QK": return [Gap(mfma_qk(u, b, kb2, s)) for kb2 in range(2) for s in range(4)]
    return [Gap(mfma_pv(u, b, D, zero)) for D in range(8)]

def epi_inv(b):
    return xlane("v_add_f32", vL[b], vInv[b]) + ["v_rcp_f32 v%d, v%d" % (vInv[b], vL[b])]

def epi_conv(b, packed):
    out = []
    for D in range(8):
        o = O(b, D)
        if packed:
            for r in (0, 2): out.append(I("v_pk_mul_f32 %s, %s, %s op_sel_hi:[1,0]" % (vr(o + r, 2), vr(o + r, 2), vr(vInv[b], 2))))
        else:
            for r in range(4): out.append(I("v_mul_f32 v%d, v%d, v%d" % (o + r, o + r, vInv[b])))
        for k in range(2): out.append(I("v_cvt_pk_bf16_f32 v%d, v%d, v%d" % (o + k, o + 2 * k, o + 2 * k + 1)))
    return out

def epi_write(b):
    return [I("ds_write_b64 v%d, %s offset:%d" % (vOw, vr(O(b, D), 2), 16 * OPITCH * b + 16 * D), 4, "dsw") for D in range(8)]

def epi_read(b):
    return [I("ds_read_b128 %s, v%d offset:%d" % (vr(vStage + 16 * (b & 1) + 4 * j, 4), vOr, OPITCH * (16 * b + 4 * j)), 4, "dsr") for j in range(4)]

def epi_store(cfg, b):
    return [I("buffer_store_dwordx4 %s, v%d, %s, %s offen offset:%d%s" % (vr(vStage + 16 * (b & 1) + 4 * j, 4), vDma[j], srd(sSrdO),
              "s%d" % sK16[b] if b else "0", BLK * j, cfg.st_pol), 4, "st") for j in range(4)]

def fallback(cfg):
    L = []; A = L.append
    A("L_fallback:")
    A("s_waitcnt vmcnt(0) lgkmcnt(0)")
    fd = vQd
    A("v_lshlrev_b32 v%d, 4, v%d" % (fd[0], vLane))
    for j in range(1, 4): A("v_add_u32 v%d, %d, v%d" % (fd[j], 3056 * j, fd[0]))
    A("s_add_u32 s48, s%d, %d" % (sWslot, 5 * SLOT))
    A("v_add_u32 v%d, s48, v%d" % (vK, vKl))
    A("v_add_u32 v%d, s%d, v%d" % (vV, sOreg, vVl))
    for r in range(128): A("v_mov_b32 v%d, 0" % (128 + r))
    for b in range(4):
        A("v_mov_b32 v%d, 0" % vL[b]); A("v_mov_b32 v%d, 0x7f7fffff" % N(b))
    A("s_mov_b32 s%d, 0" % sOff)
    A("L_fb_loop:")
    for (sr, base) in ((sSrdK, 48), (sSrdV, sOreg)):
        for jj in range(4):
            A("s_add_u32 m0, s%d, %d" % (base, 4 * BLK * jj))
            A("s_add_u32 s49, s%d, %d" % (sOff, 1024 * jj))
            for j in range(4): A(dma_ins(cfg, sr, j, "s49", fd).t)
    A("s_waitcnt vmcnt(0)")
    for u in range(2):
        for x in k_reads(u, vK, 0): A(x.t)
        A("s_waitcnt lgkmcnt(0)")
        for x in v_reads(u, vV, 0): A(x.t)
        for b in range(4):
            for kb2 in range(2):
                for s in range(4): A(mfma_qk(u, b, kb2, s, True).t)
        A("s_nop 15")
        for b in range(4):
            L += max_chain(b, vT[0], vT[1])
            if PRE[0]: A("v_sub_f32 v%d, 0, v%d" % (vT[0], vT[0]))
            else: A("v_mul_f32 v%d, s%d, -v%d" % (vT[0], sC, vT[0]))
            A("v_min_f32 v%d, v%d, v%d" % (vT[0], vT[0], N(b)))
            A("v_sub_f32 v%d, v%d, v%d" % (vT[1], vT[0], N(b)))
            A("v_exp_f32 v%d, v%d" % (vT[1], vT[1]))
            A("v_mov_b32 v%d, v%d" % (N(b), vT[0]))
            A("v_mul_f32 v%d, v%d, v%d" % (vL[b], vL[b], vT[1]))
            for r in range(32): A("v_mul_f32 v%d, v%d, v%d" % (O(b, 0) + r, O(b, 0) + r, vT[1]))
            L += sm_plain(b)
        A("s_waitcnt lgkmcnt(0)")
        A("s_nop 1")
        for b in range(4):
            for D in range(8): A(mfma_pv(u, b, D).t)
        A("s_nop 15")
    A("s_add_u32 s%d, s%d, 16384" % (sOff, sOff))
    A("s_cmp_lt_u32 s%d, 262144" % sOff)
    A("s_cbranch_scc1 L_fb_loop")
    for b in range(4):
        L += epi_inv(b) + ["s_nop 0"] + [x.t for x in epi_conv(b, False) + epi_write(b)]
        A("s_waitcnt lgkmcnt(0)")
        L += [x.t for x in epi_read(b)]
        A("s_waitcnt lgkmcnt(0)")
        L += [x.t for x in epi_store(cfg, b)]
        A("s_waitcnt vmcnt(0)")
    A("s_endpgm")
    return L

def stamp(cfg, idx):
    if not cfg.stamps: return []
    r = sStamp + 2 * idx
    return ["%s s[%d:%d]" % ("s_memrealtime" if idx < 2 else "s_memtime", r, r + 1)]

def body_fixed(cfg, G, i):
    G[0].salu.append(I("s_waitcnt vmcnt(%d)" % (8 * (cfg.dist - 1)), 4, "wait"))
    G[0].salu.append(I("s_barrier", 12, "bar"))
    reads = k_reads(2 * i) + v_reads(2 * i) + k_reads(2 * i + 1) + v_reads(2 * i + 1)
    dg = set(cfg.vdma) | set(cfg.kdma)
    par = (cfg.phi + cfg.alag + 1) & 1
    free = [g for g in range(1, 122) if g not in dg and (g & 1) == par]
    if cfg.pre:
        light = [g for g in free if not G[g].hasC]
        heavy = [g for g in free if G[g].hasC]
        nh = len(reads) - len(light)
        step = len(heavy) / float(max(nh, 1))
        free = sorted(light + [heavy[int(j * step)] for j in range(nh)])
    assert len(free) >= len(reads)
    pos = {}
    for x, g in zip(reads, free): G[g].mem.append(x); pos[x.w] = g
    lastK = pos[("K", 2 * i + 1, 1, 3)]; lastV = pos[("V", 2 * i + 1, 7, 1)]
    G[cfg.kdma[0] - 1].salu.append(I("s_add_u32 m0, s%d, s%d" % (sPrev if cfg.dist == 3 else sPrev2, sWoff), 4, "salu"))
    for j, g in enumerate(cfg.kdma): G[g].mem.append(dma_ins(cfg, sSrdK, j, "s%d" % sOff))
    assert cfg.vdma[0] - 1 > cfg.kdma[3]
    G[cfg.vdma[0] - 1].salu.append(I("s_add_u32 m0, m0, %d" % SLOT, 4, "salu"))
    for j, g in enumerate(cfg.vdma): G[g].mem.append(dma_ins(cfg, sSrdV, j, "s%d" % sOff))
    a = cfg.vdma[3] + 1
    G[a].salu.append(I("s_add_u32 s%d, s%d, 16384" % (sOff, sOff), 4, "salu"))
    if cfg.dist == 2: G[a - 2].salu.append(I("s_mov_b32 s%d, s%d" % (sPrev2, sPrev), 4, "salu"))
    G[a + 1].salu.append(I("s_mov_b32 s%d, s%d" % (sPrev, sCur), 4, "salu"))
    G[a + 2].salu.append(I("s_add_u32 s%d, s%d, %d" % (sCur, sCur, STAGE), 4, "salu"))
    G[a + 3].salu.append(I("s_cmp_eq_u32 s%d, %d" % (sCur, 4 * STAGE), 4, "salu"))
    G[a + 4].salu.append(I("s_cselect_b32 s%d, 0, s%d" % (sCur, sCur), 4, "salu"))
    G[max(a + 5, lastK + 1)].valu.append(I("v_add_u32 v%d, s%d, v%d" % (vK, sCur, vKl)))
    G[max(a + 5, lastV + 1)].valu.append(I("v_add_u32 v%d, s%d, v%d" % (vV, sCur, vVl)))
    G[125].salu.append(I("s_cmp_lt_u32 s%d, %d" % (sOff, (16 + cfg.dist) * 16384), 4, "salu"))
    if cfg.stamps:
        G[122].salu.append(I("s_memtime s[50:51]", 4, "salu"))
        G[123].salu.append(I("s_memrealtime s[52:53]", 4, "salu"))
        G[124].valu.append(I("v_cmp_eq_u32 vcc, s%d, v%d" % (sIt, vLane)))
        G[126].valu.append(I("v_mov_b32 v%d, s50" % vX[0])); G[126].valu.append(I("v_mov_b32 v%d, s52" % vX[1]))
        G[126].valu.append(I("v_cndmask_b32 v%d, v%d, v%d, vcc" % (vStLo, vStLo, vX[0])))
        G[126].valu.append(I("v_cndmask_b32 v%d, v%d, v%d, vcc" % (vStRt, vStRt, vX[1])))
        G[6].salu.append(I("s_add_u32 s%d, s%d, 1" % (sIt, sIt), 4, "salu"))
    G[126].salu.append(I("s_waitcnt lgkmcnt(0)", 4, "wait0"))

def build(cfg):
    PRE[0] = cfg.pre
    L = []; A = L.append
    A("; @launch grid=(256,1,1) block=(256,1,1) lds=%d" % LDS_BYTES)
    A('.amdgcn_target "amdgcn-amd-amdhsa--gfx950"')
    A(".text"); A(".globl %s_kernel" % NAME); A(".p2align 8"); A(".type %s_kernel,@function" % NAME)
    A("%s_kernel:" % NAME)
    A("s_cmp_ge_u32 s2, 256")
    A("s_cbranch_scc1 L_end")
    A("s_load_dwordx4 s[4:7], s[0:1], 0")
    A("s_load_dwordx4 s[40:43], s[0:1], 16")
    L += stamp(cfg, 0) + stamp(cfg, 2)
    if cfg.stamps: A("s_load_dwordx2 s[44:45], s[0:1], 40")
    t0, t1, t2, t3 = vT
    A("v_lshrrev_b32 v%d, 6, v0" % t0)
    A("v_and_b32 v%d, 63, v0" % vLane)
    A("v_readfirstlane_b32 s%d, v%d" % (sW, t0))
    A("v_lshlrev_b32 v%d, 4, v0" % vDma[0])
    if cfg.pf:
        A("s_getpc_b64 s[48:49]")
        for j in range(0, cfg.pf, 4):
            if j: A("v_add_u32 v%d, %d, v%d" % (t1, 1024 * j, vDma[0]))
            A("global_load_dwordx4 v[%d:%d], v%d, s[48:49]" % (vStage + j, vStage + j + 3, t1 if j else vDma[0]))
    for j in range(1, 4): A("v_add_u32 v%d, %d, v%d" % (vDma[j], 3056 * j, vDma[0]))
    A("v_lshlrev_b32 v%d, 2, v0" % t0)
    A("v_and_b32 v%d, 0xc0, v%d" % (t0, t0))
    A("v_xor_b32 v%d, v%d, v%d" % (vQd[0], t0, vDma[0]))
    for j in range(1, 4): A("v_add_u32 v%d, %d, v%d" % (vQd[j], 3056 * j, vQd[0]))
    A("s_mul_i32 s%d, s%d, %d" % (sWoff, sW, 4 * BLK))
    A("s_mul_i32 s%d, s%d, %d" % (sWslot, sW, SLOT))
    A("s_mul_i32 s%d, s%d, %d" % (sOreg, sW, OREG))
    A("s_lshl_b32 s%d, s2, 16" % sTmp)
    A("s_lshl_b32 s%d, s2, 18" % (sTmp + 1))
    for sr, n in ((sSrdQ, 65536), (sSrdK, 262144), (sSrdV, 262144), (sSrdO, 65536)):
        A("s_mov_b32 s%d, %d" % (sr + 2, n)); A("s_mov_b32 s%d, 0x20000" % (sr + 3))
    for j in range(1, 4): A("s_mov_b32 s%d, %d" % (sK16[j], 16384 * j))
    A("s_waitcnt lgkmcnt(0)")
    def mk(sr, p, t):
        A("s_add_u32 s%d, s%d, s%d" % (sr, p, t))
        A("s_addc_u32 s%d, s%d, 0" % (sr + 1, p + 1))
        A("s_and_b32 s%d, s%d, 0xffff" % (sr + 1, sr + 1))
    def emit_dma(srdreg, slot, soff):
        A("s_add_u32 m0, s%d, %d" % (sWoff, slot * SLOT))
        A("s_nop 0")
        for j in range(4): A(dma_ins(cfg, srdreg, j, soff).t)
    def grp(name):
        so = lambda j: "0" if j == 0 else "s%d" % sK16[j]
        j = int(name[1])
        if name[0] == "Q":
            return ["s_add_u32 m0, s%d, %d" % (sWslot, 5 * SLOT + 4 * BLK * j), "s_nop 0"] + [dma_ins(cfg, sSrdQ, x, so(j), vQd).t for x in range(4)]
        sr, slot = (sSrdK, 2 * j) if name[0] == "K" else (sSrdV, 2 * j + 1)
        return ["s_add_u32 m0, s%d, %d" % (sWoff, slot * SLOT), "s_nop 0"] + [dma_ins(cfg, sr, x, so(j)).t for x in range(4)]
    order = ["K0", "Q0", "Q1", "Q2", "Q3", "V0", "K1", "V1", "K2", "V2"] + (["K3", "V3"] if cfg.dist == 3 else [])
    nearly = 9
    st = {"n": 0}
    def top_up(done):
        while st["n"] < min(nearly, done + cfg.win):
            L.extend(grp(order[st["n"]])); st["n"] += 1
    def wait_for(name, extra=""):
        k = order.index(name)
        A("s_waitcnt vmcnt(%d)%s" % (4 * (st["n"] - k - 1), extra))
        return k + 1
    mk(sSrdK, 6, sTmp + 1)
    L.extend(grp("K0")); st["n"] = 1
    mk(sSrdQ, 4, sTmp)
    mk(sSrdV, 40, sTmp + 1)
    top_up(0)
    mk(sSrdO, 42, sTmp)
    A("v_bfe_u32 v%d, v%d, 2, 2" % (t0, vLane))
    A("v_lshrrev_b32 v%d, 1, v%d" % (t1, t0))
    A("v_xor_b32 v%d, v%d, v%d" % (t1, t0, t1))
    A("v_and_b32 v%d, 3, v%d" % (t2, vLane))
    A("v_lshrrev_b32 v%d, 4, v%d" % (t3, vLane))
    A("v_and_b32 v%d, 1, v%d" % (vX[0], t3))
    A("v_lshrrev_b32 v%d, 1, v%d" % (vX[1], t3))
    A("v_lshl_add_u32 v%d, v%d, 1, v%d" % (vX[0], vX[0], vX[1]))
    A("v_lshl_add_u32 v%d, v%d, 2, v%d" % (vKl, t1, t2))
    A("v_mul_u32_u24 v%d, %d, v%d" % (vKl, BLK, vKl))
    A("v_lshl_add_u32 v%d, v%d, 6, v%d" % (vKl, vX[0], vKl))
    A("v_mul_u32_u24 v%d, %d, v%d" % (vQrd, BLK, t2))
    A("v_lshl_add_u32 v%d, v%d, 8, v%d" % (vQrd, t1, vQrd))
    A("v_xor_b32 v%d, v%d, v%d" % (vX[0], vX[0], t1))
    A("v_lshl_add_u32 v%d, v%d, 6, v%d" % (vQrd, vX[0], vQrd))
    A("v_add_u32 v%d, s%d, v%d" % (vQrd, sWslot, vQrd))
    A("v_add_u32 v%d, %d, v%d" % (vQrd, 5 * SLOT, vQrd))
    A("v_lshl_add_u32 v%d, v%d, 2, v%d" % (vOw, t2, t1))
    A("v_mul_u32_u24 v%d, %d, v%d" % (vOw, OPITCH, vOw))
    A("v_lshl_add_u32 v%d, v%d, 7, v%d" % (vOw, vX[1], vOw))
    A("v_and_b32 v%d, 1, v%d" % (vX[0], t3))
    A("v_lshl_add_u32 v%d, v%d, 3, v%d" % (vOw, vX[0], vOw))
    A("v_add_u32 v%d, s%d, v%d" % (vOw, sOreg, vOw))
    A("v_mul_u32_u24 v%d, %d, v%d" % (vOr, OPITCH, t3))
    A("v_and_b32 v%d, 15, v%d" % (vX[0], vLane))
    A("v_lshl_add_u32 v%d, v%d, 4, v%d" % (vOr, vX[0], vOr))
    A("v_add_u32 v%d, s%d, v%d" % (vOr, sOreg, vOr))
    A("v_xor_b32 v%d, v%d, v%d" % (vX[1], t3, vX[1]))
    A("v_lshl_add_u32 v%d, v%d, 2, v%d" % (vVl, vX[1], t0))
    A("v_mul_u32_u24 v%d, %d, v%d" % (vVl, BLK, vVl))
    A("v_lshrrev_b32 v%d, 1, v%d" % (vX[0], t2))
    A("v_lshl_add_u32 v%d, v%d, 7, v%d" % (vVl, vX[0], vVl))
    A("v_and_b32 v%d, 1, v%d" % (vX[0], t2))
    A("v_lshl_add_u32 v%d, v%d, 3, v%d" % (vVl, vX[0], vVl))
    A("v_add_u32 v%d, %d, v%d" % (vK, STAGE, vKl))
    A("v_add_u32 v%d, %d, v%d" % (vV, STAGE, vVl))
    cbits = f2u(1.4426950408889634 * 128 ** -0.5)
    A("s_mov_b32 s%d, 0x%08x" % (sC, cbits)); A("s_mov_b32 s%d, 0x%08x" % (sC + 1, cbits))
    A("s_mov_b32 s%d, 0x%08x" % (sThr, f2u(cfg.thresh)))
    A("s_mov_b32 s%d, %d" % (sOff, (1 + cfg.dist) * 16384))
    A("s_mov_b32 s%d, %d" % (sPrev2, 3 * STAGE))
    A("s_mov_b32 s%d, %d" % (sCur, STAGE)); A("s_mov_b32 s%d, 0" % sPrev)
    A("s_mov_b32 s%d, -1" % sIt)
    for b in range(4): A("v_mov_b32 v%d, 0" % vL[b])
    if cfg.stamps: A("v_mov_b32 v%d, 0" % vStLo); A("v_mov_b32 v%d, 0" % vStRt)

    def q_read(b):
        if cfg.pre: return ["ds_read_b128 %s, v%d offset:%d" % (vr(128 + 4 * s, 4), vQrd, 4 * BLK * b + 16 * s) for s in range(4)]
        return ["ds_read_b128 %s, v%d offset:%d" % (ar(Qa(b, s), 4), vQrd, 4 * BLK * b + 16 * s) for s in range(4)]
    def q_scale(b):
        out = []
        for r in range(16):
            out.append("v_lshlrev_b32 v%d, 16, v%d" % (144 + 2 * r, 128 + r))
            out.append("v_and_b32 v%d, 0xffff0000, v%d" % (145 + 2 * r, 128 + r))
        for r in range(16): out.append("v_pk_mul_f32 %s, %s, s[%d:%d]" % (vr(144 + 2 * r, 2), vr(144 + 2 * r, 2), sC, sC + 1))
        for r in range(16): out.append("v_cvt_pk_bf16_f32 v%d, v%d, v%d" % (128 + r, 144 + 2 * r, 145 + 2 * r))
        for r in range(16): out.append("v_accvgpr_write_b32 a%d, v%d" % (Qa(b, 0) + r, 128 + r))
        out.append("s_nop 1")
        return out
    def first_sm(b):
        out = max_chain(b, t0, t1)
        if cfg.pre:
            for r in range(4): out.append("v_sub_f32 v%d, 0, v%d" % (N(b) + r, t0))
        else: out.append("v_mul_f32 v%d, s%d, -v%d" % (N(b), sC, t0))
        return out + sm_plain(b)
    if st["n"] < nearly: top_up(wait_for("K0"))
    d = wait_for("Q0")
    L += stamp(cfg, 3)
    L += q_read(0)
    A("s_barrier")
    L += [x.t for x in k_reads(0, vKl, 0)]
    top_up(d)
    for b in range(4):
        if b:
            d = wait_for("Q%d" % b)
            L += q_read(b)
            top_up(d)
            L += first_sm(b - 1)
        if cfg.pre:
            A("s_waitcnt lgkmcnt(%d)" % (8 if (b == 0 and not cfg.stamps) else 0))
            L += q_scale(b)
        A("s_waitcnt lgkmcnt(0)")
        k1 = k_reads(1, vKl, 0) if b == 0 else []
        for j, gp in enumerate([mfma_qk(0, b, kb2, s, True) for kb2 in range(2) for s in range(4)]):
            A(gp.t)
            if k1: A(k1[j].t)
        A("s_nop 7")
    L += first_sm(3)
    d = wait_for("V0", " lgkmcnt(0)")
    A("s_barrier")
    L += [x.t for x in v_reads(0, vVl, SLOT)]
    nearly = len(order)
    top_up(d)
    rest = order[st["n"]:]

    G = []
    qk_at = {}
    def add(kind, u, b, zero=False):
        if kind == "QK": qk_at[(u, b)] = len(G)
        G.extend(group(kind, u, b, zero))
    add("PV", 0, 0, True); add("PV", 0, 1, True); add("QK", 1, 0); add("PV", 0, 2, True); add("QK", 1, 1); add("PV", 0, 3, True); add("QK", 1, 2)
    bstart = {}
    for i in range(1, 16):
        bstart[i] = len(G)
        for u in (2 * i - 1, 2 * i):
            add("PV", u, 0); add("QK", u, 3); add("PV", u, 1); add("QK", u + 1, 0); add("PV", u, 2); add("QK", u + 1, 1); add("PV", u, 3); add("QK", u + 1, 2)
    tstart = len(G)
    add("PV", 31, 0); add("QK", 31, 3); add("PV", 31, 1); add("PV", 31, 2); add("PV", 31, 3)
    for gp in G: gp.hasC = False
    cdone = {}
    tailsm = []
    for u in range(1, 32):
        for b in range(4):
            g0 = qk_at[(u, b)] + cfg.phi
            for e in range(8):
                for kind, g in (("F", g0 + 2 * e), ("E", g0 + 2 * e + 1), ("A", g0 + 2 * e + 1 + cfg.alag)):
                    x = sm_ins(kind, b, e)
                    if x is None: continue
                    x.key = (g, u, b, kind, e)
                    if g >= tstart: tailsm.append(x)
                    else: G[g].valu.append(x)
                if e & 1:
                    g = g0 + 2 * e + 1 + cfg.alag
                    x = sm_ins("C", b, e // 2); x.key = (g, u, b, "C", e // 2)
                    if g >= tstart: tailsm.append(x)
                    else: G[g].valu.append(x); G[g].hasC = True
                    cdone[(u, b)] = g
    rank = {"F": 0, "A": 1, "C": 2, "E": 3}
    for gp in G: gp.valu.sort(key=lambda x: rank[x.key[3]])
    for i in range(1, 16): body_fixed(cfg, G[bstart[i]:bstart[i] + 128], i)
    for j, x in enumerate(v_reads(1, vVl, SLOT)): G[3 + 2 * j].mem.append(x)
    G[bstart[1] - 2].salu.append(I("s_waitcnt lgkmcnt(0)", 4, "wait0"))
    assert len(rest) <= len(cfg.late)
    for name, g in zip(rest, cfg.late[len(cfg.late) - len(rest):]):
        t = grp(name)
        G[g - 1].salu.append(I(t[0], 4, "salu"))
        for j in range(4): G[g + 2 * j].mem.append(I(t[2 + j], 8, "dma"))
    G[tstart].salu.append(I("s_waitcnt vmcnt(0)", 4, "wait"))
    G[tstart].salu.append(I("s_barrier", 12, "bar"))
    tailsm.sort(key=lambda x: (x.key[0], rank[x.key[3]]))
    placed = {}
    rel3 = qk_at[(31, 3)]
    g = tstart
    level = 16
    for x in tailsm:
        _, u, b, kind, e = x.key
        lo = g
        first = "E" if cfg.pre else "F"
        if b == 3 and kind == first: lo = max(lo, rel3 + (3 if e < 4 else 7) + 3)
        if kind == "E" and (b, "F", e) in placed: lo = max(lo, placed[(b, "F", e)] + 1)
        if kind == "A" and (b, "E", e) in placed: lo = max(lo, placed[(b, "E", e)] + 1)
        g = lo
        while G[g].cost() + x.c > level: g += 1
        G[g].valu.append(x); placed[(b, kind, e)] = g
        if kind == "C": cdone[(u, b)] = g
    smend = g
    for g, gp in enumerate(G):
        if hasattr(gp.m, "pneed") and gp.m.pneed[0] > 0:
            assert cdone[gp.m.pneed] < g - 1, "P late %s at %d" % (gp.m.pneed, g)
    have = {("K", 1, kb2, s) for kb2 in range(2) for s in range(4)} | {("V", 0, D, e) for D in range(8) for e in range(2)}
    lastuse = {}
    for g, gp in enumerate(G):
        for t in gp.m.need: lastuse[t] = g
    for g, gp in enumerate(G):
        for x in gp.mem:
            if x.k == "ds":
                old = (x.w[0], x.w[1] - 2) + x.w[2:]
                assert lastuse.get(old, -1) <= g, "fragment overwritten early %s" % (x.w,)
    add_waits(cfg, G, have)
    ep0 = [I(t, 8 if t.startswith("s_nop") or t.startswith("v_rcp") else 4) for t in epi_inv(0) + epi_inv(1)] + epi_conv(0, False)
    for g in range(tstart + 11, len(G)):
        while ep0 and G[g].cost() < 8: G[g].valu.append(ep0.pop(0))
    b1 = [x.text() for x in G[bstart[1]:bstart[1] + 128]]
    for i in range(2, 16):
        assert [x.text() for x in G[bstart[i]:bstart[i] + 128]] == b1, "not periodic at %d" % i
    costs = [gp.cost() for gp in G[bstart[2]:bstart[2] + 128]]
    sys.stderr.write("gap costs: %s\n est cycles/tile %d\n" % ("".join("%x" % min(15, c // 4) for c in costs), sum(8 + max(8, c) for c in costs) + 20))
    A("s_waitcnt lgkmcnt(0)")
    for gp in G[:bstart[1] - 1]: L += gp.text()
    lastp = G[bstart[1] - 1]; lastb = G[bstart[1] + 127]
    assert [x.t for x in lastp.valu] == [x.t for x in lastb.valu] and not lastb.mem and not lastb.salu and not lastp.mem and not lastp.salu
    L += stamp(cfg, 4)
    if cfg.stamps: A("s_waitcnt lgkmcnt(0)")
    A(lastp.m.t)
    if cfg.ramp:
        A("L_loop0:")
        L += [x.t for x in lastb.valu]
        for g, gp in enumerate(G[bstart[1]:bstart[1] + 127]):
            tx = gp.text()
            if cfg.rampnop == 0: tx = [gp.m.t] + [x.t for x in gp.salu + gp.valu + gp.mem]
            if cfg.rampnop == -1: tx = [gp.m.t] + [x.t for x in gp.valu + gp.salu + gp.mem]
            for t in tx:
                if t.startswith("s_cmp_lt_u32 s%d" % sOff): t = "s_cmp_lt_u32 s%d, %d" % (sOff, (1 + cfg.dist + cfg.ramp) * 16384)
                A(t)
            if cfg.rampnop > 0: A("s_nop %d" % (cfg.rampnop - 1))
        A(lastb.m.t)
        A("s_cbranch_scc1 L_loop0")
    if cfg.align: A(".p2align %d" % cfg.align)
    for _ in range(cfg.pad): A("s_nop 0")
    A("L_loop:")
    L += [x.t for x in lastb.valu]
    for g, gp in enumerate(G[bstart[1]:bstart[1] + 127]):
        L += gp.text()
        if cfg.xnop and g % cfg.xnop == 0: A("s_nop 0")
    A(lastb.m.t)
    A("s_cbranch_scc1 L_loop")
    L += [x.t for x in lastb.valu]
    for gp in G[tstart:]: L += gp.text()
    L += stamp(cfg, 5)
    sys.stderr.write("tail: softmax ends at gap %d of %d, block-0 epilogue left %d\n" % (smend - tstart, len(G) - tstart, len(ep0)))
    T = [x.t for x in ep0] + [x.t for x in epi_write(0)]
    T += epi_inv(2) + epi_inv(3)
    T += [x.t for x in epi_conv(1, True)]
    W0 = "s_waitcnt lgkmcnt(0)"
    T += [W0] + [x.t for x in epi_read(0) + epi_write(1)]
    T += [x.t for x in epi_conv(2, True)]
    T += [W0] + [x.t for x in epi_store(cfg, 0) + epi_read(1) + epi_write(2)]
    T += [x.t for x in epi_conv(3, True)]
    T += [W0] + [x.t for x in epi_store(cfg, 1) + epi_read(2) + epi_write(3)]
    T += ["v_add_f32 v%d, v%d, v%d" % (t0, vL[0], vL[1]), "v_add_f32 v%d, v%d, v%d" % (t1, vL[2], vL[3]), "v_add_f32 v%d, v%d, v%d" % (t0, t0, t1),
          "v_cmp_nge_f32 vcc, s%d, v%d" % (sThr, t0)]
    T += [W0] + [x.t for x in epi_read(3)] + [x.t for x in epi_store(cfg, 2)]
    T += [W0] + [x.t for x in epi_store(cfg, 3)]
    T += ["s_cbranch_vccnz L_fallback"]
    L += T
    if cfg.stamps:
        A("s_waitcnt vmcnt(0)")
        L += stamp(cfg, 6) + stamp(cfg, 1)
        A("s_waitcnt lgkmcnt(0)")
        A("s_lshl_b32 s%d, s2, 2" % sTmp)
        A("s_add_u32 s%d, s%d, s%d" % (sTmp, sTmp, sW))
        A("s_lshl_b32 s%d, s%d, 8" % (sTmp, sTmp))
        A("v_mov_b32 v%d, s%d" % (t0, sTmp))
        for kk in range(7):
            A("v_mov_b32 v%d, s%d" % (t2, sStamp + 2 * kk))
            A("v_mov_b32 v%d, s%d" % (t3, sStamp + 2 * kk + 1))
            A("global_store_dwordx2 v%d, v[%d:%d], s[44:45] offset:%d" % (t0, t2, t3, 8 * kk))
            A("s_nop 1")
        A("v_lshl_add_u32 v%d, v%d, 3, v%d" % (t0, vLane, t0))
        A("v_cmp_gt_u32 vcc, 16, v%d" % vLane)
        A("s_and_saveexec_b64 s[48:49], vcc")
        A("global_store_dwordx2 v%d, v[%d:%d], s[44:45] offset:64" % (t0, vStLo, vStRt))
    A("L_end:")
    A("s_endpgm")
    L += fallback(cfg)
    A('.section .rodata,"a"'); A(".p2align 6")
    A(".amdhsa_kernel %s_kernel" % NAME)
    A("  .amdhsa_next_free_vgpr 512"); A("  .amdhsa_next_free_sgpr 102"); A("  .amdhsa_accum_offset 256")
    A("  .amdhsa_group_segment_fixed_size 0"); A("  .amdhsa_kernarg_size 48"); A("  .amdhsa_user_sgpr_count 2")
    A("  .amdhsa_user_sgpr_kernarg_segment_ptr 1"); A("  .amdhsa_system_sgpr_workgroup_id_x 1")
    A(".end_amdhsa_kernel")
    return "\n".join(L) + "\n"

if __name__ == "__main__":
    ap = argparse.ArgumentParser()
    ap.add_argument("-o", default="cdna_kernels/%s.s" % NAME)
    ap.add_argument("opts", nargs="*")
    a = ap.parse_args()
    cfg = Cfg()
    for o in a.opts:
        k, v = o.split("=")
        cur = getattr(cfg, k)
        if isinstance(cur, str): v = (" " + v.replace("+", " ")) if v else ""
        elif isinstance(cur, tuple): v = tuple(int(x) for x in v.split(","))
        elif isinstance(cur, float): v = float(v)
        else: v = int(v)
        setattr(cfg, k, v)
    open(a.o, "w").write(build(cfg))
```

```python
import re, sys

def regs(tok):
    tok = tok.strip().lstrip("-")
    if tok.startswith("abs("): tok = tok[4:-1]
    m = re.fullmatch(r"([vas])\[(\d+):(\d+)\]", tok)
    if m: return [(m.group(1), i) for i in range(int(m.group(2)), int(m.group(3)) + 1)]
    m = re.fullmatch(r"([vas])(\d+)", tok)
    if m: return [(m.group(1), int(m.group(2)))]
    if tok == "vcc": return [("s", 106), ("s", 107)]
    if tok == "m0": return [("s", 124)]
    return []

TRANS = ("v_exp_f32", "v_rcp_f32", "v_log_f32", "v_rsq_f32", "v_sqrt_f32")
class Ins: pass

def parse(line):
    line = line.split(";")[0].strip()
    if not line or line.endswith(":") or line.startswith("."): return None
    x = Ins(); x.text = line
    line2 = re.sub(r"\s+op_sel(_hi)?:\[[0-9,]+\]", "", line)
    op, _, rest = line2.partition(" ")
    x.op = op
    toks = [t.strip() for t in rest.split(",")] if rest else []
    if toks:
        last = toks[-1].split()
        toks[-1] = last[0]; x.mods = last[1:]
    else: x.mods = []
    x.w = []; x.r = []; x.A = []; x.B = []; x.C = []; x.passes = 0
    x.kind = "other"
    if op.startswith("v_mfma"):
        x.kind = "mfma"; x.passes = 8 if "32x32x16" in op else 4
        x.w = regs(toks[0]); x.A = regs(toks[1]); x.B = regs(toks[2]); x.C = regs(toks[3]); x.r = x.A + x.B + x.C
    elif op.startswith("v_cmp"):
        x.kind = "valu"; x.w = regs(toks[0]); x.r = sum((regs(t) for t in toks[1:]), [])
    elif op.startswith("v_permlane"):
        x.kind = "perm"; x.w = regs(toks[0]) + regs(toks[1]); x.r = list(x.w)
    elif op.startswith("v_writelane"):
        x.kind = "valu"; x.w = regs(toks[0]); x.r = regs(toks[1]) + regs(toks[2])
    elif op.startswith("v_readfirstlane") or op.startswith("v_readlane"):
        x.kind = "rfl"; x.w = regs(toks[0]); x.r = regs(toks[1])
    elif op.startswith("v_"):
        x.kind = "trans" if op in TRANS else "valu"
        x.w = regs(toks[0]); x.r = sum((regs(t) for t in toks[1:]), [])
        if op.startswith("v_fmac") or op.startswith("v_dot2c"): x.r += x.w
        if op.startswith("v_cndmask") and len(toks) == 3: x.r += regs("vcc")
    elif op.startswith("ds_read"):
        x.kind = "dsr"; x.w = regs(toks[0]); x.r = regs(toks[1])
    elif op.startswith("ds_write"):
        x.kind = "dsw"; x.r = sum((regs(t) for t in toks), [])
    elif op.startswith("buffer_load"):
        if "lds" in x.mods:
            x.kind = "dma"; x.r = sum((regs(t) for t in toks), []) + regs("m0")
        else:
            x.kind = "vld"; x.w = regs(toks[0]); x.r = sum((regs(t) for t in toks[1:]), [])
    elif op.startswith("global_load"):
        x.kind = "vld"; x.w = regs(toks[0]); x.r = sum((regs(t) for t in toks[1:]), [])
    elif op.startswith("buffer_store"):
        x.kind = "vst"; x.r = sum((regs(t) for t in toks), []); x.data = regs(toks[0])
    elif op.startswith("global_store"):
        x.kind = "vst"; x.r = sum((regs(t) for t in toks), []); x.data = regs(toks[1])
    elif op == "s_nop":
        x.kind = "nop"; x.n = int(toks[0]) + 1
    elif op == "s_waitcnt":
        x.kind = "wait"
        m = re.search(r"lgkmcnt\((\d+)\)", line); x.lgkm = int(m.group(1)) if m else None
        m = re.search(r"vmcnt\((\d+)\)", line); x.vm = int(m.group(1)) if m else None
    elif op.startswith("s_load") or op.startswith("s_mem"):
        x.kind = "smem"; x.w = regs(toks[0]); x.r = sum((regs(t) for t in toks[1:]), [])
    elif op.startswith("s_cmp") or op.startswith("s_cbranch") or op in ("s_barrier", "s_endpgm", "s_branch", "s_setprio", "s_setpc_b64", "s_sleep"):
        x.kind = "sctl"; x.r = sum((regs(t) for t in toks), [])
    elif op.startswith("s_"):
        x.kind = "salu"; x.w = regs(toks[0]); x.r = sum((regs(t) for t in toks[1:]), [])
    else:
        raise SystemExit("unknown op: " + line)
    return x

def check(ins, strict=False, pos=None):
    errs = []
    n = len(ins)
    VAL = ("valu", "trans", "perm", "rfl")
    for i, p in enumerate(ins):
        if p.kind not in ("mfma", "salu", "vst") + VAL: continue
        t = 0; lastm = 0 if p.kind == "mfma" else None; lastp = p.passes
        pw = set(p.w); pc = set(p.C)
        j = i + 1
        prev = p
        while j < n and t < 14:
            c = ins[j]
            t += prev.n if prev.kind == "nop" and prev is not p else 1
            if c.kind == "mfma" and lastm is not None and not strict:
                t = max(t, lastm + lastp)
            if c.kind == "mfma": lastm = t; lastp = c.passes
            d = t - 1
            need = 0; why = ""
            cr, cw = set(c.r), set(c.w)
            if p.kind == "mfma":
                big = 12 if p.passes == 8 else 8
                if c.kind in VAL + ("dsr", "dsw", "vst", "vld", "dma") and (pw & (cr | cw)): need, why = big, "mfma D -> valu/mem"
                if c.kind == "mfma":
                    if pw & (set(c.A) | set(c.B)): need, why = big, "mfma D -> mfma A/B"
                    elif pw & set(c.C) and (c.C != p.w or c.passes != p.passes): need, why = big - 2, "mfma D -> overlapping C"
                if c.kind in VAL and (pc & cw):
                    k = 7 if p.passes == 8 else 3
                    if k > need: need, why = k, "mfma C read -> valu write"
            elif p.kind in VAL:
                vw = {r for r in pw if r[0] != "s"}; sw = {r for r in pw if r[0] == "s"}
                if c.kind == "mfma" and vw & cr: need, why = 2, "valu -> mfma"
                if p.kind == "trans" and c.kind in ("valu", "perm", "rfl") and vw & cr: need, why = 1, "trans -> valu"
                if c.kind == "perm" and vw & cr: need, why = 2, "valu -> permlane"
                if c.kind == "rfl" and vw & cr: need, why = max(need, 1), "valu -> readlane"
                if c.kind in VAL and sw & cr: need, why = 2, "valu sgpr -> valu"
                if c.kind in ("dma", "vld", "vst") and sw & cr: need, why = 5, "valu sgpr -> vmem"
            elif p.kind == "salu":
                if ("s", 124) in pw and c.kind == "dma": need, why = 1, "m0 -> dma"
            elif p.kind == "vst":
                if len(p.data) >= 3 and set(p.data) & cw: need, why = 2, "store data WAR"
            if d < need:
                if pos is not None: pos.append((j, need - d))
                errs.append("hazard %s: need %d have %d\n    %s\n    %s" % (why, need, d, p.text, c.text))
            if c.op in ("s_endpgm", "s_setpc_b64", "s_branch"): break
            prev = c
            j += 1
    pend = []
    vpend = []
    for c in ins:
        if c.kind == "wait":
            if c.lgkm is not None:
                if any(k == "smem" for k, _ in pend) and c.lgkm > 0 and False:
                    errs.append("counted lgkmcnt with smem outstanding: " + c.text)
                while len(pend) > c.lgkm: pend.pop(0)
            if c.vm is not None:
                while len(vpend) > c.vm: vpend.pop(0)
            continue
        touched = set(c.r) | set(c.w)
        for k, w in pend:
            if touched & w: errs.append("use of pending lgkm result: " + c.text)
        for w in vpend:
            if touched & w: errs.append("use of pending vmem result: " + c.text)
        if c.kind in ("dsr", "dsw"): pend.append((c.kind, set(c.w)))
        if c.kind == "smem": pend.append(("smem", set(c.w))); pend.append(("smem", set(c.w)))
        if c.kind in ("vld", "vst", "dma"): vpend.append(set(c.w))
        if len(vpend) > 63: errs.append("vmcnt overflow at " + c.text)
        if c.op in ("s_endpgm",): pend = []; vpend = []
    return errs

def fix(lines, strict=False):
    lines = list(lines)
    n = 0
    while True:
        idx = [i for i, l in enumerate(lines) if parse(l)]
        ins = [parse(lines[i]) for i in idx]
        pos = []
        check(ins, strict, pos)
        if not pos: return lines, n
        j, k = min(pos, key=lambda p: (p[0], -p[1]))
        lines.insert(idx[j], "s_nop %d" % (k - 1)); n += 1

if __name__ == "__main__":
    txt = open(sys.argv[1]).read().split(".section .rodata")[0]
    lines = txt.split("\n")
    if "s_branch L_mid" in lines:
        a = lines.index("s_branch L_mid"); m = lines.index("L_mid:")
        e = next(i for i in range(m, len(lines)) if lines[i].startswith("s_cbranch_scc1 L_loop"))
        lines = lines[:a] + ["s_nop 0"] + lines[m + 1:e] + ["s_nop 0"] + lines[a + 1:]
    for lab in ("L_loop0", "L_loop", "L_fb_loop"):
        if lab + ":" in lines:
            a = lines.index(lab + ":")
            b = max(i for i, l in enumerate(lines) if l.startswith("s_cbranch") and l.split()[-1] == lab)
            lines = lines[:b + 1] + lines[a + 1:b + 1] + lines[b + 1:]
    ins = [x for x in (parse(l) for l in lines) if x]
    errs = check(ins, strict="--strict" in sys.argv)
    for e in errs[:40]: print(e)
    print("%d instructions, %d problems" % (len(ins), len(errs)))
```

```python
import sys, struct, argparse
import check as CK

NAME = "standalone__gqa_softmax__near_ridge"
SLOT = 16640
BLK = 1040
STAGE = 2 * SLOT
LDS_BYTES = 9 * SLOT
OPITCH = 272
OREG = 64 * OPITCH

def f2u(x): return struct.unpack("<I", struct.pack("<f", x))[0]

class Cfg:
    stamps = 0
    ld_pol = " nt"
    st_pol = " sc0 sc1"
    thresh = 2.0 ** 60
    dmag = (4, 12, 20, 28, 36, 45, 53, 61)
    lat = 5
    pf = 19
    align = 6
    zset = (0, 2)
    phi = 7
    ramp = 3
    dist = 2
    win = 3
    order = " Q0 K0 V0 Q1 Q2 K1 Q3 V1 K2 V2 K3 V3 K4"
    lazy = 1
    progpk = 6
    trunc = 0
    compact = 1
    tst = (0, 13, 23, 40, 78, 90, 118, 130)
    pkburst = 1
    dbl = (13, 23)
    rot = 0
    stsp = 4
    pad = 0
    stlast = 4
    st_pol2 = ""
    dmag0 = (4, 20, 36, 53, 70, 86, 102, 119)
    vgap15 = 0
    wins = (2, 2, 2, 3)
    clus = 60
    startv = 0
    weave = 0
    vgap = 34
    tail = 7
    pvfirst = 1
    tlb = 0
    xs = " K0 V0 Q1"
    urg = 6.0
    elevel = 20

class I:
    def __init__(self, t, c=4, k="valu", w=None, need=None):
        self.t = t; self.c = c; self.k = k; self.w = w; self.need = need or []

def O(b, D): return 128 + 32 * b + 4 * D
def N(b): return 96 + 4 * b
def Qa(b, s): return 16 * b + 4 * s
KOV, VOV, SOV, POV = {}, {}, {}, {}
def Ka(u, kb2, s): return KOV.get(u, 64 + 32 * (u & 1)) + 16 * kb2 + 4 * s
def Va(u, D): return VOV.get(u, 128 + 32 * (u & 1)) + 4 * D
def S(u, b): return SOV.get((u, b), 64 + 8 * b)
def Pr(u, b): return POV.get((u, b), S(u, b))
vLane = 1
vK, vKl, vV, vVl = 2, 3, 4, 5
vDma = (6, 7, 8, 9)
vL = (10, 11, 12, 13)
vQrd, vOw, vOr = 14, 15, 16
vInv = (18, 20, 22, 24)
vT = (26, 27, 28, 29)
vStLo, vStRt = 30, 31
vOnes = 32
def Lz(b): return 36 + 4 * b
vX = (17, 19)
vQd = (60, 61, 62, 63)
sW = 3
sSrdQ, sSrdK, sSrdV, sSrdO = 8, 12, 16, 20
sC, sThr, sWoff, sOff, sCur, sPrev = 24, 26, 27, 28, 29, 30
sOreg = 31
sK16 = (None, 32, 33, 34)
sPrev2 = 35
sTmp = 36
sWslot = 46
sIt = 47
sStamp = 56
sKV = (94, 95, 96, 97)
sQO = (98, 99, 100, 101)
sDm = 54
sRot = 55

def vr(a, n): return "v[%d:%d]" % (a, a + n - 1)
def ar(a, n): return "a[%d:%d]" % (a, a + n - 1)
def srd(a): return "s[%d:%d]" % (a, a + 3)
MF = "v_mfma_f32_16x16x32_bf16"

def mfma_qk(u, b, kb2, s, zero=False):
    d = vr(S(u, b) + 4 * kb2, 4)
    c = d if s else ("0" if zero else vr(N(b), 4))
    return I("%s %s, %s, %s, %s" % (MF, d, ar(Ka(u, kb2, s), 4), ar(Qa(b, s), 4), c), 8, "mfma", need=[("K", u, kb2, s)])

def mfma_pv(u, b, D, zero=False):
    d = vr(O(b, D), 4)
    x = I("%s %s, %s, %s, %s" % (MF, d, ar(Va(u, D), 4), vr(Pr(u, b), 4), "0" if zero else d), 8, "mfma", need=[("V", u, D, 0), ("V", u, D, 1)])
    x.pneed = (u, b)
    return x

def mfma_sum(u, b, zero=False):
    d = vr(Lz(b), 4)
    x = I("%s %s, %s, %s, %s" % (MF, d, vr(vOnes, 4), vr(Pr(u, b), 4), "0" if zero else d), 8, "mfma")
    x.pneed = (u, b)
    return x

def k_reads(u, areg=vK, base=0):
    return [I("ds_read_b128 %s, v%d offset:%d" % (ar(Ka(u, kb2, s), 4), areg, base + 256 * (2 * (u & 1) + kb2) + 16 * s), 4, "ds", w=("K", u, kb2, s))
            for kb2 in range(2) for s in range(4)]

def v_reads(u, areg=vV, base=SLOT):
    return [I("ds_read_b64_tr_b16 %s, v%d offset:%d" % (ar(Va(u, D) + 2 * e, 2), areg, base + 256 * (2 * (u & 1) + e) + 16 * D), 4, "ds", w=("V", u, D, e))
            for D in range(8) for e in range(2)]

def dma_ins(cfg, srdreg, j, soff, regs=vDma):
    return I("buffer_load_dwordx4 v%d, %s, %s offen offset:%d%s lds" % (regs[j], srd(srdreg), soff, BLK * j, cfg.ld_pol), 8, "dma")

TRUNC = [0]
def sm_ins(kind, u, b, e):
    s = S(u, b)
    if kind == "F": x = I("v_add_f32 v%d, v%d, v%d" % (s + e, s + e, N(b)), 4)
    elif kind == "E": x = I("v_exp_f32 v%d, v%d" % (s + e, s + e), 8, "trans")
    elif kind == "A": x = I("v_add_f32 v%d, v%d, v%d" % (vL[b], vL[b], s + e), 4)
    elif TRUNC[0]: x = I("v_perm_b32 v%d, v%d, v%d, s39" % (Pr(u, b) + e, s + 2 * e + 1, s + 2 * e), 4)
    else: x = I("v_cvt_pk_bf16_f32 v%d, v%d, v%d" % (Pr(u, b) + e, s + 2 * e, s + 2 * e + 1), 4)
    x.key = (u, b, kind, e)
    return x

def sm_plain(u, b, adds, withF=True, skip=()):
    out = []
    for j in range(6):
        for h in range(2):
            if j < 4 and withF: out.append(sm_ins("F", u, b, 2 * j + h))
            if 1 <= j <= 4: out.append(sm_ins("E", u, b, 2 * (j - 1) + h))
            if j >= 2 and adds: out.append(sm_ins("A", u, b, 2 * (j - 2) + h))
        if j >= 2: out.append(sm_ins("C", u, b, j - 2))
    return [x.t for x in out if x.key[1:] not in skip]

def xlane(op, r, t):
    return ["v_mov_b32 v%d, v%d" % (t, r), "s_nop 1", "v_permlane32_swap_b32 v%d, v%d" % (r, t), "%s v%d, v%d, v%d" % (op, r, r, t),
            "v_mov_b32 v%d, v%d" % (t, r), "s_nop 1", "v_permlane16_swap_b32 v%d, v%d" % (r, t), "%s v%d, v%d, v%d" % (op, r, r, t)]

def max_chain(u, b, dst, t):
    s = S(u, b)
    out = ["v_max3_f32 v%d, v%d, v%d, v%d" % (dst, s, s + 1, s + 2), "v_max3_f32 v%d, v%d, v%d, v%d" % (dst, dst, s + 3, s + 4),
           "v_max3_f32 v%d, v%d, v%d, v%d" % (dst, dst, s + 5, s + 6), "v_max_f32 v%d, v%d, v%d" % (dst, dst, s + 7)]
    return out + xlane("v_max_f32", dst, t)

class Gap:
    def __init__(self, m):
        self.m = m; self.salu = []; self.mem = []; self.valu = []; self.closed = False
    def cost(self):
        c = 0
        for i, x in enumerate(self.salu): c += x.c - (4 if i == 0 and self.m else 0)
        return c + sum(x.c for x in self.mem) + sum(x.c for x in self.valu)
    def text(self, lazy=False):
        body = self.salu + (self.valu + self.mem if lazy else self.mem + self.valu)
        return ([self.m.t] if self.m else []) + [x.t for x in body]

def add_waits(cfg, gaps, have):
    issued = []; covered = -1; idx = {}
    for g, gp in enumerate(gaps):
        for x in gp.salu:
            if x.k == "wait0": covered = len(issued) - 1
        nd = []
        if g + 1 < len(gaps) and gaps[g + 1].m: nd += gaps[g + 1].m.need
        for x in gp.mem: nd += x.need
        missing = [t for t in nd if t not in idx and t not in have]
        if missing: raise SystemExit("read not issued before use: %s gap %d" % (missing, g + 1))
        need = [idx[t] for t in nd if t in idx]
        if need and max(need) > covered:
            tgt = max(need)
            if issued[tgt][1] > g - cfg.lat: sys.stderr.write("warn: short ds latency at gap %d (issued %d)\n" % (g, issued[tgt][1]))
            for j in range(len(issued)):
                if issued[j][1] <= g - cfg.lat: tgt = max(tgt, j)
            n = min(15, len(issued) - 1 - tgt)
            gp.salu.insert(0, I("s_waitcnt lgkmcnt(%d)" % n, 4, "wait"))
            covered = len(issued) - 1 - n
        for x in gp.mem:
            if x.k in ("ds", "dsw"): idx[x.w] = len(issued); issued.append((x.w, g))

def epi_inv(cfg, b, z):
    if z: return [I("v_rcp_f32 v%d, v%d" % (vInv[b], Lz(b)), 8, "trans")]
    out = [I(t, 8 if t.startswith("s_nop") else 4) for t in xlane("v_add_f32", vL[b], vInv[b])]
    return out + [I("v_rcp_f32 v%d, v%d" % (vInv[b], vL[b]), 8, "trans")]

def epi_conv(b, D, packed):
    o = O(b, D); out = []
    if packed:
        for r in (0, 2): out.append(I("v_pk_mul_f32 %s, %s, %s op_sel_hi:[1,0]" % (vr(o + r, 2), vr(o + r, 2), vr(vInv[b], 2))))
    else:
        for r in range(4): out.append(I("v_mul_f32 v%d, v%d, v%d" % (o + r, o + r, vInv[b])))
    for k in range(2): out.append(I("v_cvt_pk_bf16_f32 v%d, v%d, v%d" % (o + k, o + 2 * k, o + 2 * k + 1)))
    return out

def epi_write(b, D): return I("ds_write_b64 v%d, %s offset:%d" % (vOw, vr(O(b, D), 2), 16 * OPITCH * b + 16 * D), 12, "dsw", w=("W", b, D))
def epi_read(b, j): return I("ds_read_b128 %s, v%d offset:%d" % (vr(O(b, j), 4), vOr, OPITCH * (16 * b + 4 * j)), 4, "ds", w=("R", b, j))
def epi_store(cfg, b, j):
    return I("buffer_store_dwordx4 %s, v%d, %s, %s offen offset:%d%s" % (vr(O(b, j), 4), vDma[j], srd(sSrdO),
             "s%d" % sQO[b], BLK * j, cfg.st_pol if b < cfg.stlast else cfg.st_pol2), 16, "st", need=[("R", b, j)])

def fallback(cfg):
    L = []; A = L.append
    KOV.clear(); VOV.clear(); SOV.clear(); POV.clear()
    A("; ---- exact fallback: online softmax with the true running maximum, one wave alone in its own LDS region ----")
    A("L_fallback:")
    A("s_waitcnt vmcnt(0) lgkmcnt(0)")
    fd = vQd
    A("v_lshlrev_b32 v%d, 4, v%d" % (fd[0], vLane))
    for j in range(1, 4): A("v_add_u32 v%d, %d, v%d" % (fd[j], 3056 * j, fd[0]))
    A("v_add_u32 v%d, s%d, v%d" % (vK, sOreg, vKl))
    A("v_add_u32 v%d, s%d, v%d" % (vV, sOreg, vVl))
    for r in range(128): A("v_mov_b32 v%d, 0" % (128 + r))
    for b in range(4):
        A("v_mov_b32 v%d, 0" % vL[b]); A("v_mov_b32 v%d, 0x7f7fffff" % N(b))
    A("s_mov_b32 s%d, 0" % sOff)
    A("L_fb_loop:")
    for sr in (sSrdK, sSrdV):
        for jj in range(4):
            A("s_add_u32 m0, s%d, %d" % (sOreg, 4 * BLK * jj))
            A("s_add_u32 s49, s%d, %d" % (sOff, 1024 * jj))
            for j in range(4): A(dma_ins(cfg, sr, j, "s49", fd).t)
        A("s_waitcnt vmcnt(0)")
        for u in range(2):
            for x in (k_reads(u, vK, 0) if sr == sSrdK else v_reads(u, vV, 0)): A(x.t)
            A("s_waitcnt lgkmcnt(0)")
    for u in range(2):
        for b in range(4):
            for kb2 in range(2):
                for s in range(4): A(mfma_qk(u, b, kb2, s, True).t)
        A("s_nop 15")
        for b in range(4):
            L += max_chain(u, b, vT[0], vT[1])
            A("v_sub_f32 v%d, 0, v%d" % (vT[0], vT[0]))
            A("v_min_f32 v%d, v%d, v%d" % (vT[0], vT[0], N(b)))
            A("v_sub_f32 v%d, v%d, v%d" % (vT[1], vT[0], N(b)))
            A("v_exp_f32 v%d, v%d" % (vT[1], vT[1]))
            A("v_mov_b32 v%d, v%d" % (N(b), vT[0]))
            A("v_mul_f32 v%d, v%d, v%d" % (vL[b], vL[b], vT[1]))
            for r in range(32): A("v_mul_f32 v%d, v%d, v%d" % (O(b, 0) + r, O(b, 0) + r, vT[1]))
            L += sm_plain(u, b, True)
        A("s_nop 1")
        for b in range(4):
            for D in range(8): A(mfma_pv(u, b, D).t)
        A("s_nop 15")
    A("s_add_u32 s%d, s%d, 16384" % (sOff, sOff))
    A("s_cmp_lt_u32 s%d, 262144" % sOff)
    A("s_cbranch_scc1 L_fb_loop")
    for b in range(4):
        L += [x.t for x in epi_inv(cfg, b, False)] + ["s_nop 0"]
        for D in range(8): L += [x.t for x in epi_conv(b, D, False)] + [epi_write(b, D).t]
        A("s_waitcnt lgkmcnt(0)")
        L += [epi_read(b, j).t for j in range(4)]
        A("s_waitcnt lgkmcnt(0)")
        L += [epi_store(cfg, b, j).t for j in range(4)]
    A("s_endpgm")
    return L

def stamp(cfg, idx):
    if not cfg.stamps: return []
    r = sStamp + 2 * idx
    return ["%s s[%d:%d]" % ("s_memrealtime" if idx < 2 else "s_memtime", r, r + 1)]

HEADER = """
Attention forward  out = softmax(q k^T / sqrt(128)) v,  B*H = 256 heads, Sq 256, Sk 1024, D 128, bf16 in / bf16 out.
Written with my own generator script (dev/gen6.py); every instruction and its placement comes from that script.
Kernarg: q @0, k @8, v @16, out @24, debug @32 (unused), ws @40 (unused).

One workgroup per head, 4 waves, one per SIMD; a wave owns 64 query rows = 4 blocks of 16.
K / V / Q reach LDS through LDS-DMA (1 KiB blocks, pitch 1040 B, 4-stage ring of 64-key K and V tiles).
S^T = K Q^T and O^T = V^T P^T use v_mfma_f32_16x16x32_bf16, so a lane always works on one query row:
  a[0:63] Q (pre-multiplied by log2(e)/sqrt(D)), a[64:127] K fragments, a[128:191] V fragments (transposing LDS reads),
  v[128:255] O accumulators, v[64:95] scores / packed probabilities, v[96:111] minus the row reference.
Softmax guard: the reference subtracted from a row is the true maximum of its first 64 scores (it enters through the
MFMA C operand).  Every probability is bounded by the row sum, so one check of the sums at the end proves that nothing
came near overflow; a wave that fails it redoes its rows in L_fallback with the true running maximum.
Row sums: VALU adds for blocks 1 and 3, one extra MFMA against a ones matrix for blocks 0 and 2.
Layout of the code: tiles 0-1 in data-arrival order, L_loop0 (tiles 2-3, looser instruction order: the chip throttles
memory for the rest of the launch if the load rises too fast), L_loop (tiles 4-14), last tile block by block so that
finished blocks are normalised, transposed through LDS and stored while the others still compute.
"""
XS = [0]
def xstamp(cfg):
    if cfg.stamps < 2 or XS[0] >= 8: return []
    r = 72 + 2 * XS[0]; XS[0] += 1
    if cfg.stamps == 3:
        return ["s_memtime s[%d:%d]" % (r, r + 1), "s_memrealtime s[90:91]", "s_waitcnt lgkmcnt(0)", "s_mov_b32 s%d, s90" % (r + 1)]
    return ["s_memtime s[%d:%d]" % (r, r + 1), "s_waitcnt lgkmcnt(0)"]

def build(cfg):
    Z = set(cfg.zset)
    TRUNC[0] = cfg.trunc
    L = []; A = L.append
    for t in HEADER.strip("\n").split("\n"): A(("; " + t).rstrip())
    A("; @launch grid=(256,1,1) block=(256,1,1) lds=%d" % LDS_BYTES)
    A('.amdgcn_target "amdgcn-amd-amdhsa--gfx950"')
    A(".text"); A(".globl %s_kernel" % NAME); A(".p2align 8"); A(".type %s_kernel,@function" % NAME)
    A("%s_kernel:" % NAME)
    t0, t1, t2, t3 = vT
    if cfg.compact:
        late_setup = []
        A("s_load_dwordx4 s[4:7], s[0:1], 0")
        A("s_load_dwordx4 s[40:43], s[0:1], 16")
        A("s_lshr_b32 s%d, s2, 8" % sTmp)
        A("s_cbranch_scc1 L_end")
        L += stamp(cfg, 0) + stamp(cfg, 2)
        if cfg.stamps: A("s_load_dwordx2 s[44:45], s[0:1], 40")
        if cfg.pf:
            A("s_getpc_b64 s[48:49]")
            A("v_lshlrev_b32 v%d, 7, v0" % t1)
            A("v_min_u32 v%d, %d, v%d" % (t1, cfg.pf * 1024, t1))
            A("global_load_dword v192, v%d, s[48:49]" % t1)
        A("v_lshrrev_b32 v%d, 6, v0" % t0)
        A("v_lshlrev_b32 v%d, 4, v0" % vDma[0])
        A("v_readfirstlane_b32 s%d, v%d" % (sW, t0))
        A("v_lshlrev_b32 v%d, 2, v0" % t0)
        A("v_and_b32 v%d, 0xc0, v%d" % (t0, t0))
        A("v_xor_b32 v%d, v%d, v%d" % (vQd[0], t0, vDma[0]))
        A("s_movk_i32 s%d, 3056" % (sTmp + 2))
        for j in range(1, 4): A("v_add_u32 v%d, s%d, v%d" % (vQd[j], sTmp + 2, vQd[j - 1]))
        A("s_mul_i32 s%d, s%d, %d" % (sWoff, sW, 4 * BLK))
        A("s_lshl_b32 s%d, s2, 16" % sTmp)
        A("s_mov_b32 s%d, 65536" % (sSrdQ + 2)); A("s_mov_b32 s%d, 0x20000" % (sSrdQ + 3))
        for j in range(1, 4): A("v_add_u32 v%d, s%d, v%d" % (vDma[j], sTmp + 2, vDma[j - 1]))
        A("s_lshl_b32 s%d, s2, 18" % (sTmp + 1))
        A("s_lshl_b32 s%d, s%d, 2" % (sSrdK + 2, sSrdQ + 2)); A("s_mov_b32 s%d, s%d" % (sSrdK + 3, sSrdQ + 3))
        late_setup += ["v_and_b32 v%d, 63, v0" % vLane, "s_mul_i32 s%d, s%d, %d" % (sOreg, sW, OREG),
                       "s_mov_b32 s%d, s%d" % (sSrdV + 2, sSrdK + 2), "s_mov_b32 s%d, s%d" % (sSrdV + 3, sSrdQ + 3),
                       "s_mov_b32 s%d, s%d" % (sSrdO + 2, sSrdQ + 2), "s_mov_b32 s%d, s%d" % (sSrdO + 3, sSrdQ + 3)]
        late_setup += ["s_mov_b32 s%d, %d" % (sK16[j], 16384 * j) for j in range(1, 4)]
    else:
        A("s_cmp_ge_u32 s2, 256")
        A("s_cbranch_scc1 L_end")
        A("s_load_dwordx4 s[4:7], s[0:1], 0")
        A("s_load_dwordx4 s[40:43], s[0:1], 16")
        L += stamp(cfg, 0) + stamp(cfg, 2)
        if cfg.stamps: A("s_load_dwordx2 s[44:45], s[0:1], 40")
        t0, t1, t2, t3 = vT
        A("v_lshrrev_b32 v%d, 6, v0" % t0)
        A("v_and_b32 v%d, 63, v0" % vLane)
        A("v_readfirstlane_b32 s%d, v%d" % (sW, t0))
        A("v_lshlrev_b32 v%d, 4, v0" % vDma[0])
        if cfg.pf:
            A("s_getpc_b64 s[48:49]")
            for j in range(0, cfg.pf, 4):
                if j: A("v_add_u32 v%d, %d, v%d" % (t1, 1024 * j, vDma[0]))
                A("global_load_dwordx4 v[%d:%d], v%d, s[48:49]" % (192 + j, 192 + j + 3, t1 if j else vDma[0]))
        for j in range(1, 4): A("v_add_u32 v%d, %d, v%d" % (vDma[j], 3056 * j, vDma[0]))
        A("v_lshlrev_b32 v%d, 2, v0" % t0)
        A("v_and_b32 v%d, 0xc0, v%d" % (t0, t0))
        A("v_xor_b32 v%d, v%d, v%d" % (vQd[0], t0, vDma[0]))
        for j in range(1, 4): A("v_add_u32 v%d, %d, v%d" % (vQd[j], 3056 * j, vQd[0]))
        A("s_mul_i32 s%d, s%d, %d" % (sWoff, sW, 4 * BLK))
        A("s_mul_i32 s%d, s%d, %d" % (sOreg, sW, OREG))
        A("s_lshl_b32 s%d, s2, 16" % sTmp)
        A("s_lshl_b32 s%d, s2, 18" % (sTmp + 1))
        for sr, n in ((sSrdQ, 65536), (sSrdK, 262144), (sSrdV, 262144), (sSrdO, 65536)):
            A("s_mov_b32 s%d, %d" % (sr + 2, n)); A("s_mov_b32 s%d, 0x20000" % (sr + 3))
    global sKV, sQO, sDm
    if not cfg.rot:
        sKV = sQO = (93, 32, 33, 34); sDm = sOff
        if not cfg.compact:
            for j in range(1, 4): A("s_mov_b32 s%d, %d" % (sK16[j], 16384 * j))
    else:
        if cfg.rot & 1:
            A("s_lshr_b32 s%d, s2, 3" % sRot); A("s_mul_i32 s%d, s2, 5" % sDm); A("s_add_u32 s%d, s%d, s%d" % (sRot, sRot, sDm))
            A("s_lshl_b32 s%d, s%d, 14" % (sRot, sRot))
        else: A("s_mov_b32 s%d, 0" % sRot)
        for j in range(4):
            A("s_add_u32 s%d, s%d, %d" % (sKV[j], sRot, 16384 * j)); A("s_and_b32 s%d, s%d, 0x3ffff" % (sKV[j], sKV[j]))
            if cfg.rot & 2: A("s_and_b32 s%d, s%d, 0xffff" % (sQO[j], sKV[j]))
            else: A("s_mov_b32 s%d, %d" % (sQO[j], 16384 * j))
        A("s_add_u32 s%d, s%d, %d" % (sDm, sRot, 16384 * 4)); A("s_and_b32 s%d, s%d, 0x3ffff" % (sDm, sDm))
    A("s_waitcnt lgkmcnt(0)")
    def mk(sr, p, t):
        A("s_add_u32 s%d, s%d, s%d" % (sr, p, t))
        A("s_addc_u32 s%d, s%d, 0" % (sr + 1, p + 1))
        if not cfg.compact: A("s_and_b32 s%d, s%d, 0xffff" % (sr + 1, sr + 1))
    def grp(name):
        so = lambda j: "s%d" % (sKV[j] if j < 4 else sDm)
        j = int(name[1])
        if name[0] == "Q":
            return ["s_add_u32 m0, s%d, %d" % (sWoff, (5 + j) * SLOT), "s_nop 0"] + [dma_ins(cfg, sSrdQ, x, "s%d" % sQO[j], vQd).t for x in range(4)]
        sr, slot = (sSrdK, 2 * (j % 4)) if name[0] == "K" else (sSrdV, 2 * (j % 4) + 1)
        return ["s_add_u32 m0, s%d, %d" % (sWoff, slot * SLOT), "s_nop 0"] + [dma_ins(cfg, sr, x, so(j)).t for x in range(4)]
    assert cfg.dist == 2
    order = cfg.order.split()
    if cfg.startv == 3: order[2], order[3] = order[3], order[2]
    if cfg.startv == 4: order[2], order[3], order[4] = order[3], order[4], order[2]
    st = {"n": 0, "max": order.index("V2")}
    def top_up(done):
        w_ = cfg.wins[min(done, len(cfg.wins) - 1)] if cfg.wins else cfg.win
        while st["n"] < min(st["max"], done + w_):
            nm_ = order[st["n"]]
            if nm_ in st.get("pre", {}): A(st["pre"][nm_]); st["extra"] = st["n"]
            L.extend(grp(nm_)); st["n"] += 1
    def wait_for(name, extra=""):
        k = order.index(name)
        more = 1 if st.get("extra", -1) > k else 0
        if name in cfg.xs.split() and cfg.stamps == 2: L.extend(xstamp(cfg))
        A("s_waitcnt vmcnt(%d)%s" % (4 * (st["n"] - k - 1) + more, extra))
        if name[0] != "Q": A("s_barrier")
        if name in cfg.xs.split() and cfg.stamps < 4: L.extend(xstamp(cfg))
        return k + 1
    if cfg.tlb & 1:
        A("s_load_dword s92, s[6:7], s%d" % (sTmp + 1))
        A("s_load_dword s93, s[40:41], s%d" % (sTmp + 1))
        A("s_load_dword s94, s[42:43], s%d" % sTmp)
    mk(sSrdQ, 4, sTmp)
    if cfg.tlb & 2:
        mk(sSrdK, 6, sTmp + 1); mk(sSrdV, 40, sTmp + 1); mk(sSrdO, 42, sTmp)
        A("v_mov_b32 v250, s%d" % sSrdQ); A("v_mov_b32 v251, s%d" % (sSrdQ + 1))
        for j, sr in enumerate((sSrdK, sSrdV, sSrdO)):
            A("v_writelane_b32 v250, s%d, %d" % (sr, 16 * (j + 1))); A("v_writelane_b32 v251, s%d, %d" % (sr + 1, 16 * (j + 1)))
        A("global_load_dword v252, v[250:251], off")
    L.extend(grp(order[0])); st["n"] = 1
    if cfg.compact:
        mk(sSrdK, 6, sTmp + 1)
        L.extend(grp(order[1])); st["n"] = 2
        L.extend(late_setup)
        mk(sSrdV, 40, sTmp + 1)
    elif not cfg.tlb & 2:
        mk(sSrdK, 6, sTmp + 1)
        mk(sSrdV, 40, sTmp + 1)
    top_up(0)
    if not cfg.tlb & 2: mk(sSrdO, 42, sTmp)
    A("v_bfe_u32 v%d, v%d, 2, 2" % (t0, vLane))
    A("v_lshrrev_b32 v%d, 1, v%d" % (t1, t0))
    A("v_xor_b32 v%d, v%d, v%d" % (t1, t0, t1))
    A("v_and_b32 v%d, 3, v%d" % (t2, vLane))
    A("v_lshrrev_b32 v%d, 4, v%d" % (t3, vLane))
    A("v_and_b32 v%d, 1, v%d" % (vX[0], t3))
    A("v_lshrrev_b32 v%d, 1, v%d" % (vX[1], t3))
    A("v_lshl_add_u32 v%d, v%d, 1, v%d" % (vX[0], vX[0], vX[1]))
    A("v_lshl_add_u32 v%d, v%d, 2, v%d" % (vKl, t1, t2))
    A("v_mul_u32_u24 v%d, %d, v%d" % (vKl, BLK, vKl))
    A("v_lshl_add_u32 v%d, v%d, 6, v%d" % (vKl, vX[0], vKl))
    A("v_mul_u32_u24 v%d, %d, v%d" % (vQrd, BLK, t2))
    A("v_lshl_add_u32 v%d, v%d, 8, v%d" % (vQrd, t1, vQrd))
    A("v_xor_b32 v%d, v%d, v%d" % (vX[0], vX[0], t1))
    A("v_lshl_add_u32 v%d, v%d, 6, v%d" % (vQrd, vX[0], vQrd))
    A("v_add_u32 v%d, s%d, v%d" % (vQrd, sWoff, vQrd))
    A("v_add_u32 v%d, %d, v%d" % (vQrd, 5 * SLOT, vQrd))
    A("v_lshl_add_u32 v%d, v%d, 2, v%d" % (vOw, t2, t1))
    A("v_mul_u32_u24 v%d, %d, v%d" % (vOw, OPITCH, vOw))
    A("v_lshl_add_u32 v%d, v%d, 7, v%d" % (vOw, vX[1], vOw))
    A("v_and_b32 v%d, 1, v%d" % (vX[0], t3))
    A("v_lshl_add_u32 v%d, v%d, 3, v%d" % (vOw, vX[0], vOw))
    A("v_add_u32 v%d, s%d, v%d" % (vOw, sOreg, vOw))
    A("v_mul_u32_u24 v%d, %d, v%d" % (vOr, OPITCH, t3))
    A("v_and_b32 v%d, 15, v%d" % (vX[0], vLane))
    A("v_lshl_add_u32 v%d, v%d, 4, v%d" % (vOr, vX[0], vOr))
    A("v_add_u32 v%d, s%d, v%d" % (vOr, sOreg, vOr))
    A("v_xor_b32 v%d, v%d, v%d" % (vX[1], t3, vX[1]))
    A("v_lshl_add_u32 v%d, v%d, 2, v%d" % (vVl, vX[1], t0))
    A("v_mul_u32_u24 v%d, %d, v%d" % (vVl, BLK, vVl))
    A("v_lshrrev_b32 v%d, 1, v%d" % (vX[0], t2))
    A("v_lshl_add_u32 v%d, v%d, 7, v%d" % (vVl, vX[0], vVl))
    A("v_and_b32 v%d, 1, v%d" % (vX[0], t2))
    A("v_lshl_add_u32 v%d, v%d, 3, v%d" % (vVl, vX[0], vVl))
    A("v_add_u32 v%d, %d, v%d" % (vK, 2 * STAGE, vKl))
    A("v_add_u32 v%d, %d, v%d" % (vV, 2 * STAGE, vVl))
    cbits = f2u(1.4426950408889634 * 128 ** -0.5)
    A("s_mov_b32 s%d, 0x%08x" % (sC, cbits)); A("s_mov_b32 s%d, 0x%08x" % (sC + 1, cbits))
    A("s_mov_b32 s%d, 0x%08x" % (sThr, f2u(cfg.thresh)))
    if cfg.trunc: A("s_mov_b32 s39, 0x07060302")
    A("s_mov_b32 s%d, %d" % (sOff, (2 + cfg.dist) * 16384))
    A("s_mov_b32 s%d, %d" % (sPrev2, STAGE))
    A("s_mov_b32 s%d, %d" % (sCur, 3 * STAGE)); A("s_mov_b32 s%d, %d" % (sPrev, 2 * STAGE))
    A("s_mov_b32 s%d, 0" % sIt)
    for b in range(4): A("v_mov_b32 v%d, 0" % vL[b])
    for r in range(4): A("v_mov_b32 v%d, 0x3f803f80" % (vOnes + r))
    if cfg.stamps: A("v_mov_b32 v%d, 0" % vStLo); A("v_mov_b32 v%d, 0" % vStRt)

    class TL:
        def __init__(self): self.G = []; self.qk = {}; self.pv = {}
        def add(self, kind, u, b, zero=False):
            if kind == "QK":
                self.qk[(u, b)] = len(self.G)
                self.G += [Gap(mfma_qk(u, b, kb2, s)) for kb2 in range(2) for s in range(4)]
            else:
                self.pv[(u, b)] = len(self.G)
                self.G += [Gap(mfma_pv(u, b, D, zero)) for D in range(8)]
                if b in Z: self.G.append(Gap(mfma_sum(u, b, zero)))
        def body(self, i):
            for u in (2 * i - 1, 2 * i):
                for b in range(4):
                    self.add("PV", u, b)
                    self.add("QK", *((u, 3) if b == 0 else (u + 1, b - 1)))
    NB = 128 + 2 * len(Z)

    def body_fixed(G, i):
        G[0].salu.append(I("s_waitcnt vmcnt(%d)" % (8 * (cfg.dist - 1)), 4, "wait"))
        G[0].salu.append(I("s_barrier", 12, "bar")); G[0].closed = True
        kd, vd = cfg.dmag[:4], cfg.dmag[4:]
        G[kd[0] - 1].salu.append(I("s_add_u32 m0, s%d, s%d" % (sPrev if cfg.dist == 3 else sPrev2, sWoff), 4, "salu"))
        for j, g in enumerate(kd): G[g].mem.append(dma_ins(cfg, sSrdK, j, "s%d" % sDm)); G[g].closed = True
        G[vd[0] - 1].salu.append(I("s_add_u32 m0, m0, %d" % SLOT, 4, "salu"))
        for j, g in enumerate(vd): G[g].mem.append(dma_ins(cfg, sSrdV, j, "s%d" % sDm)); G[g].closed = True
        a = kd[0] + 1
        seq = []
        if cfg.dist == 2: seq.append("s_mov_b32 s%d, s%d" % (sPrev2, sPrev))
        seq += ["s_mov_b32 s%d, s%d" % (sPrev, sCur), "s_add_u32 s%d, s%d, %d" % (sCur, sCur, STAGE),
                "s_cmp_eq_u32 s%d, %d" % (sCur, 4 * STAGE), "s_cselect_b32 s%d, 0, s%d" % (sCur, sCur)]
        for j, t in enumerate(seq): G[a + j].salu.append(I(t, 4, "salu"))
        G[vd[3] + 1].salu.append(I("s_add_u32 s%d, s%d, 16384" % (sOff, sOff), 4, "salu"))
        for j, t in enumerate([] if not cfg.rot else ["s_add_u32 s%d, s%d, s%d" % (sDm, sOff, sRot), "s_and_b32 s%d, s%d, 0x3ffff" % (sDm, sDm),
                               "s_cmp_lt_u32 s%d, 262144" % sOff, "s_cselect_b32 s%d, s%d, s%d" % (sDm, sDm, sOff)]):
            G[NB - 10 + j].salu.append(I(t, 4, "salu"))
        G[NB - 3].salu.append(I("s_cmp_lt_u32 s%d, LIMIT" % sOff, 4, "salu"))
        assert max(vd[3], cfg.dmag0[7]) + 1 < NB - 10
        if cfg.stamps and cfg.stamps != 5:
            G[NB - 6].salu.append(I("s_memtime s[50:51]", 4, "salu"))
            G[NB - 5].salu.append(I("s_memrealtime s[52:53]", 4, "salu"))
            G[a + 6].salu.append(I("s_add_u32 s%d, s%d, 1" % (sIt, sIt), 4, "salu"))
        G[NB - 2].salu.append(I("s_waitcnt lgkmcnt(0)", 4, "wait0"))
        G[NB - 1].salu.append(I("s_cbranch_scc1 LOOP", 28, "br")); G[NB - 1].closed = True

    NSIM = 7
    T = TL()
    for i in range(1, NSIM + 1): T.body(i)
    G = T.G
    for i in range(1, NSIM + 1): body_fixed(G[(i - 1) * NB:i * NB], i)
    lastuse = {}
    firstuse = {}
    for g, gp in enumerate(G):
        for t in gp.m.need: lastuse[t] = g; firstuse.setdefault(t, g)
    blocks = sorted(T.qk, key=lambda k: T.qk[k])
    el = [(u, b, e) for (u, b) in blocks for e in range(8)]
    Dq = []
    for i in range(1, NSIM + 1):
        base = (i - 1) * NB
        rd = k_reads(2 * i) + v_reads(2 * i) + k_reads(2 * i + 1) + v_reads(2 * i + 1)
        for j, x in enumerate(rd):
            old = (x.w[0], x.w[1] - 2) + x.w[2:]
            x.rel = max(base + 1, lastuse.get(old, -1))
            x.dead = min(firstuse.get(x.w, 1 << 30) - cfg.lat - 1, base + NB - 2 - cfg.lat)
            x.it = i; x.last = None
        rd[31].last = "K"; rd[47].last = "V"
        Dq += rd
    for j in range(len(Dq) - 2, -1, -1): Dq[j].dead = min(Dq[j].dead, Dq[j + 1].dead - 1)
    at = {}
    pE = 0; Aq = []; Cq = []; Xq = []; pD = 0
    def readyX(g):
        out = []
        if Cq:
            u, b, k = Cq[0]
            okA = (b in Z) or all((u, b, "A", e) in at for e in range(k + 1)) and True
            if at.get((u, b, "E", 2 * k + 1), 1 << 30) < g and okA: out.append("C")
        if Xq and Xq[0][0] <= g: out.append("X")
        if Aq and at[Aq[0][:2] + ("E", Aq[0][2])] < g: out.append("A")
        return out
    def takeX(kind, g):
        if kind == "C":
            u, b, k = Cq.pop(0); x = sm_ins("C", u, b, k)
        elif kind == "A":
            u, b, e = Aq.pop(0); x = sm_ins("A", u, b, e)
        else:
            return Xq.pop(0)[1]
        at[x.key] = g
        return x
    for g, gp in enumerate(G):
        if gp.closed: continue
        if pE < len(el):
            u, b, e = el[pE]
            if g >= T.qk[(u, b)] + cfg.phi + 2 * e and not (pD < len(Dq) and Dq[pD].dead <= g):
                x = sm_ins("E", u, b, e); at[x.key] = g; gp.valu.append(x); pE += 1
                if b not in Z: Aq.append((u, b, e))
                if e & 1: Cq.append((u, b, e // 2))
                continue
        slots = 2
        while slots:
            rx = readyX(g)
            dok = pD < len(Dq) and Dq[pD].rel <= g and not gp.valu
            backlog = len(Aq) + len(Cq) + len(Xq)
            urgent = dok and Dq[pD].dead <= g + 2
            if dok and (urgent or not rx or (slots == 2 and backlog <= 3) or (slots == 1 and backlog <= 1)):
                x = Dq[pD]; pD += 1; gp.mem.append(x); x.at = g
                if x.last == "K": Xq.append((g + 1, I("v_add_u32 v%d, s%d, v%d" % (vK, sCur, vKl))))
                if x.last == "V": Xq.append((g + 1, I("v_add_u32 v%d, s%d, v%d" % (vV, sCur, vVl))))
            elif rx: gp.valu.append(takeX(rx[0], g))
            else: break
            slots -= 1
    ref = NSIM - 1
    have0 = {x.w for x in k_reads(1) + v_reads(1)}
    add_waits(cfg, G, have0)
    body = G[(ref - 1) * NB:ref * NB]
    prev = G[(ref - 2) * NB:(ref - 1) * NB]
    assert [x.text() for x in body] == [x.text() for x in prev], "schedule not periodic"
    for g, gp in enumerate(G[:NB * (NSIM - 1)]):
        if hasattr(gp.m, "pneed") and gp.m.pneed in T.qk:
            u, b = gp.m.pneed
            assert at[(u, b, "C", 3)] < g - 1, "P late"
    for (u, b), g in T.qk.items():
        if (u - 1, b) in T.qk and b not in Z and g < NB * (NSIM - 1): assert at[(u - 1, b, "A", 7)] < g
    assert sum(1 for gp in body for x in gp.valu if x.t.startswith("v_add_u32")) == 2
    costs = [gp.cost() for gp in body]
    sys.stderr.write("gap costs: %s\n est cycles/tile %d\n" % ("".join("%x" % min(15, c // 4) for c in costs), sum(8 + max(8, c) for c in costs)))
    uref = 2 * ref - 1
    pend = [x.key for gp in body for x in gp.valu if hasattr(x, "key") and x.key[0] == uref and x.key[1] < 3]
    assert not [1 for gp in body for x in gp.valu if hasattr(x, "key") and x.key[0] < uref]
    pendset = {k[1:] for k in pend}
    if cfg.stamps and cfg.stamps != 5:
        body[NB - 4].valu.append(I("v_cmp_eq_u32 vcc, s%d, v%d" % (sIt, vLane)))
        for t in ("v_mov_b32 v%d, s50" % vX[0], "v_mov_b32 v%d, s52" % vX[1], "v_cndmask_b32 v%d, v%d, v%d, vcc" % (vStLo, vStLo, vX[0]),
                  "v_cndmask_b32 v%d, v%d, v%d, vcc" % (vStRt, vStRt, vX[1])): body[NB - 2].valu.append(I(t))

    def pour(G, queue, at, qk, pv, virt=False):
        g = 0; n = 0
        while n < len(queue):
            if g >= len(G):
                assert virt; G.append(Gap(None))
            gp = G[g]
            level = 8 if gp.m else 16
            acc = 0
            for j in range(n, len(queue)):
                acc += queue[j].c
                dl = getattr(queue[j], "dead", None)
                if dl is not None:
                    assert dl >= g, "deadline missed %s" % queue[j].t
                    room = [h for h in range(g, dl + 1)]
                    fixed = sum(G[h].cost() for h in room)
                    level = max(level, (acc + fixed) / float(len(room)))
            while n < len(queue) and queue[n].lo(at) <= g and (gp.cost() < level - 1e-9 or getattr(queue[n], "dead", None) == g):
                x = queue[n]; n += 1
                if hasattr(x, "alt") and not gp.m and (g == 0 or not G[g - 1].m) : pass
                gp.valu.append(x)
                if hasattr(x, "key"): at[x.key] = g
                if hasattr(x, "after"): x.after(g)
            g += 1

    def pour2(G, streams, at):
        g = 0
        dead = [next((x.dead for x in st_ if hasattr(x, "dead")), None) for st_ in streams]
        def rem(i):
            c = 0
            for x in streams[i]:
                c += x.c
                if hasattr(x, "dead"): return c
            return 0
        while any(streams):
            if g >= len(G): G.append(Gap(None))
            gp = G[g]
            while True:
                ready = [i for i, st_ in enumerate(streams) if st_ and st_[0].lo(at) <= g]
                if not ready: break
                need = {}
                for i in ready:
                    if dead[i] is not None and rem(i):
                        assert dead[i] >= g, "deadline missed"
                        w = sum(rem(j) for j in range(len(streams)) if dead[j] is not None and dead[j] <= dead[i])
                        need[i] = w / float(dead[i] - g - 1) if dead[i] - g - 1 >= 1 else 999
                vc = sum(x.c for x in gp.valu if hasattr(x, "key") and len(x.key) == 4)
                urgent = [i for i in sorted(need, key=lambda i: dead[i]) if need[i] >= cfg.urg and vc < need[i]]
                pick = None
                if urgent: pick = urgent[0]
                elif gp.cost() < (8 if gp.m else 16): pick = ready[0]
                else:
                    ep = [i for i in ready if dead[i] is None]
                    if ep and gp.cost() < cfg.elevel: pick = ep[0]
                if pick is None: break
                if getattr(streams[pick][0], "burst", False) and gp.cost() < 16:
                    oth = [i for i in ready if i != pick and not getattr(streams[i][0], "burst", False)]
                    if oth: pick = oth[0]
                x = streams[pick].pop(0)
                gp.valu.append(x)
                if hasattr(x, "key"): at[x.key] = g
                if hasattr(x, "after"): x.after(g)
            g += 1

    def sm_queue(u, b, qk, pv, skip=lambda k: False):
        out = []
        seq = []
        for j in range(6):
            for h in range(2):
                if j < 4: seq.append(("E", 2 * j + h))
                if j >= 1 and j <= 4 and b not in Z: seq.append(("A", 2 * (j - 1) + h))
            if 1 <= j <= 4: seq.append(("C", j - 1))
        for kind, e in seq:
            if skip((b, kind, e)): continue
            x = sm_ins(kind, u, b, e)
            if kind == "E":
                rel = qk[(u, b)] + (3 if e < 4 else 7) + 3 if (u, b) in qk else 0
                x.lo = lambda at, rel=rel: rel
            elif kind == "A": x.lo = lambda at, k=(u, b, "E", e): at.get(k, -9) + 1
            else:
                x.lo = lambda at, k=(u, b, "E", 2 * e + 1): at.get(k, -9) + 1
                if e == 3 and (u, b) in pv: x.dead = pv[(u, b)] - 2
            out.append(x)
        return out

    def make_first():
        out = []
        for gp in body:
            n = Gap(gp.m); n.salu = [x for x in gp.salu if not (x.k == "wait" and "lgkm" in x.t)]
            n.valu = list(gp.valu); n.mem = [x for x in gp.mem if x.k != "ds"]
            out.append(n)
        if cfg.dmag0 != cfg.dmag:
            dm = [x for n in out for x in n.mem]
            mv = {}
            for n in out:
                n.mem = []
                for x in list(n.salu):
                    if x.t.startswith("s_add_u32 m0, m0"): mv["mV"] = x; n.salu.remove(x)
                    elif x.t.startswith("s_add_u32 s%d, s%d, 16384" % (sOff, sOff)): mv["off"] = x; n.salu.remove(x)
            assert cfg.dmag0[0] == cfg.dmag[0]
            for x, g in zip(dm, cfg.dmag0): out[g].mem.append(x)
            out[cfg.dmag0[4] - 1].salu.append(mv["mV"]); out[cfg.dmag0[7] + 1].salu.append(mv["off"])
        if cfg.clus:
            import re as _re
            def rs(x): return set(sum((CK.regs(t) for t in _re.findall(r"v\[\d+:\d+\]|v\d+", x.t)), []))
            g = 1; n = 0; acc = 0
            while g < NB - 6:
                a_, b_ = out[g], out[g + 1]
                ok = a_.valu and b_.valu and not a_.mem and not b_.mem and g + 1 != NB // 2 and \
                     not (set().union(*[rs(x) for x in a_.valu if x.k == "trans"] or [set()]) & set().union(*[rs(x) for x in b_.valu]))
                if ok:
                    acc += cfg.clus
                    if acc >= 100:
                        acc -= 100
                        b_.valu = a_.valu + b_.valu; a_.valu = []; n += 1
                    g += 2
                else: g += 1
            sys.stderr.write("clustered pairs: %d\n" % n)
        lastg = 0
        addr = {}
        for g, gp in enumerate(out):
            for x in gp.valu:
                if x.t.startswith("v_add_u32 v%d," % vK): addr["K"] = g
                if x.t.startswith("v_add_u32 v%d," % vV): addr["V"] = g
        moved = []
        firstV = None
        for g, gp in enumerate(body):
            for x in gp.mem:
                if x.k != "ds": continue
                h = max(g, lastg)
                if x.w[0] == "V": h = max(h, cfg.vgap + 1)
                if cfg.lazy:
                    while not out[h].valu or (out[h].mem and not (out[h].mem[0].k == "ds" and len(out[h].mem) < 2 and h >= g + 3)): h += 1
                elif h != g:
                    while (out[h].mem and (out[h].mem[0].k != "ds" or out[h].cost() >= 8)): h += 1
                assert h < NB - 3
                out[h].mem.append(x); lastg = h
                if x.last: moved.append((x.last, h))
        for kind, h in moved:
            g = addr[kind]
            if g <= h:
                y = [x for x in out[g].valu if x.t.startswith("v_add_u32 v%d," % (vK if kind == "K" else vV))][0]
                out[g].valu.remove(y); out[h + 1].valu.append(y)
        if cfg.vgap:
            out[0].salu[0] = I("s_waitcnt vmcnt(12)", 4, "wait")
            nk = sum(1 for g in cfg.dmag0 if g < cfg.vgap)
            out[cfg.vgap].salu += [I("s_waitcnt vmcnt(%d)" % (8 + nk), 4, "wait"), I("s_barrier", 12, "bar")]
        c2 = Cfg(); c2.lat = 3
        add_waits(c2, out, {x.w for x in k_reads(2 * ref - 1) + v_reads(2 * ref - 1)})
        return out
    first = make_first() if cfg.ramp else body
    H = NB // 2
    umid = 2 * ref
    pend2 = {x.key[1:] for gp in first[H:] for x in gp.valu if hasattr(x, "key") and x.key[0] == umid and x.key[1] < 3}
    assert not [1 for gp in first[H:] for x in gp.valu if hasattr(x, "key") and x.key[0] < umid]
    early = [(x.w[0], x.w[1] - umid + 4) + x.w[2:] for gp in first[:H] for x in gp.mem if x.k == "ds"]
    assert not [1 for gp in first[:H] for x in gp.valu if x.t.startswith("v_add_u32")]
    dg_ = cfg.dmag0 if cfg.ramp else cfg.dmag
    assert dg_[3] < H - 1 <= dg_[4] - 2

    A("; ---- tiles 0 and 1, in the order their data arrives ----")
    p0 = len(L)
    KOV.update({0: 192, 1: 224, 2: 64, 3: 96}); VOV.update({0: 128, 1: 160, 2: 192, 3: 224})
    aA, aB, aC = 112, 120, 52
    for b in range(4): SOV[(1, b)] = aA
    SOV.update({(3, 0): aB, (3, 1): aA, (3, 2): aB, (2, 3): aC, (3, 3): aB})
    for b in range(3): POV[(3, b)] = S(2, b) + 4
    W0 = "s_waitcnt lgkmcnt(0)"
    def q_read(b): return ["ds_read_b128 %s, v%d offset:%d" % (vr(O(b, s), 4), vQrd, SLOT * b + 16 * s) for s in range(4)]
    def q_scale_s(b, s_):
        out = []; raw = O(b, s_); tmp = O(b, 4) + 8 * (s_ & 1)
        for r in range(4):
            out.append("v_lshlrev_b32 v%d, 16, v%d" % (tmp + 2 * r, raw + r))
            out.append("v_and_b32 v%d, 0xffff0000, v%d" % (tmp + 2 * r + 1, raw + r))
        for r in range(8): out.append("v_mul_f32 v%d, s%d, v%d" % (tmp + r, sC, tmp + r))
        for r in range(4): out.append("v_cvt_pk_bf16_f32 v%d, v%d, v%d" % (raw + r, tmp + 2 * r, tmp + 2 * r + 1))
        for r in range(4): out.append("v_accvgpr_write_b32 a%d, v%d" % (Qa(b, s_) + r, raw + r))
        return out
    def q_scale(b):
        out = []; raw = O(b, 0); tmp = O(b, 4)
        for h in range(2):
            for r in range(8):
                out.append("v_lshlrev_b32 v%d, 16, v%d" % (tmp + 2 * r, raw + 8 * h + r))
                out.append("v_and_b32 v%d, 0xffff0000, v%d" % (tmp + 2 * r + 1, raw + 8 * h + r))
            for r in range(8): out.append("v_pk_mul_f32 %s, %s, s[%d:%d]" % (vr(tmp + 2 * r, 2), vr(tmp + 2 * r, 2), sC, sC + 1))
            for r in range(8): out.append("v_cvt_pk_bf16_f32 v%d, v%d, v%d" % (raw + 8 * h + r, tmp + 2 * r, tmp + 2 * r + 1))
            for r in range(8): out.append("v_accvgpr_write_b32 a%d, v%d" % (Qa(b, 0) + 8 * h + r, raw + 8 * h + r))
        return out
    def mix(ms, fill=(), lead=0, mem=(), per=2):
        fill = list(fill); n = len(ms) - lead; k = 0; mem = list(mem)
        for j, m in enumerate(ms):
            A(m.t)
            L.extend(mem[:per]); mem = mem[per:]
            if j == len(ms) - 1: L.extend(mem)
            if j >= lead:
                e = (len(fill) * (j - lead + 1)) // n
                L.extend(fill[k:e]); k = e
    def qk(u, b): return [mfma_qk(u, b, kb2, s, u < 2) for kb2 in range(2) for s in range(4)]
    def pv(u, b): return [mfma_pv(u, b, D, u == 0) for D in range(8)] + ([mfma_sum(u, b, u == 0)] if b in Z else [])
    def pv2(u, b): return [m for pair in zip(pv(u, b), pv(u + 1, b)) for m in pair]
    def sm(u, b, skip=()): return sm_plain(u, b, b not in Z, u < 2, skip)
    def rowmax(b):
        s0, s1 = S(0, b), S(1, b)
        v = [s0 + e for e in range(8)] + [s1 + e for e in range(8)]
        out = ["v_max3_f32 v%d, v%d, v%d, v%d" % (t0, v[0], v[1], v[2])]
        for e in range(3, 15, 2): out.append("v_max3_f32 v%d, v%d, v%d, v%d" % (t0, t0, v[e], v[e + 1]))
        out.append("v_max_f32 v%d, v%d, v%d" % (t0, t0, v[15]))
        out += xlane("v_max_f32", t0, t1)
        return out + ["v_sub_f32 v%d, 0, v%d" % (N(b) + r, t0) for r in range(4)]
    seg = {"at": None, "q": []}
    def flush():
        if seg["at"] is None: return
        lines = L[seg["at"]:]; q = list(seg["q"]); out = []; since = cfg.weave - 2
        hasm = any(t.startswith("v_mfma") for t in lines)
        for j, t in enumerate(lines):
            if q and q[0].startswith("s_add_u32 m0"): out.append(q.pop(0))
            out.append(t); since += 1
            nxt = lines[j + 1] if j + 1 < len(lines) else ""
            if q and since >= cfg.weave and (t.startswith("v_mfma") or since >= 2 * cfg.weave or not hasm) and not t.startswith("ds_") and not nxt.startswith("ds_"):
                out.append(q.pop(0)); since = 0
        out += q
        L[seg["at"]:] = out
        seg["at"] = None; seg["q"] = []
    def ev(name, reads, unlock=None):
        flush()
        d = wait_for(name)
        if unlock: st["max"] = order.index(unlock) if unlock in order else len(order)
        if not cfg.weave:
            L.extend(reads[:16]); top_up(d); L.extend(reads[16:])
            return
        L.extend(reads)
        k = len(L); top_up(d)
        seg["q"] = [t for t in L[k:] if t != "s_nop 0"]; del L[k:]
        seg["at"] = k
    def tx(xs): return [x.t for x in xs]
    ev("Q0", q_read(0))
    L += stamp(cfg, 3)
    A(W0); L += q_scale(0)
    ev("K0", tx(k_reads(0, vKl, 0) + k_reads(1, vKl, 0)), "K3")
    A("s_waitcnt lgkmcnt(8)"); mix(qk(0, 0)); A(W0); mix(qk(1, 0))
    L += rowmax(0) + sm(0, 0) + sm(1, 0)
    if cfg.tlb & 4: st["pre"] = {order[st["n"]]: "buffer_load_dword v21, off, %s, 0" % srd(sSrdO)}
    if cfg.startv in (3, 4):
        SOV[(1, 1)] = aB
        ev("Q1", q_read(1))
        A(W0); L += q_scale(1); mix(qk(0, 1) + qk(1, 1)); L += rowmax(1) + sm(0, 1) + sm(1, 1)
    if cfg.startv == 4:
        SOV[(1, 2)] = aC
        ev("Q2", q_read(2))
        A(W0); L += q_scale(2); mix(qk(0, 2) + qk(1, 2)); L += rowmax(2) + sm(0, 2) + sm(1, 2)
    ev("V0", tx(v_reads(0, vVl, SLOT) + v_reads(1, vVl, SLOT)))
    A(W0); mix(pv2(0, 0))
    def scale_qk(b, cover):
        if cover: mix(cover, q_scale_s(b, 0))
        else: L.extend(q_scale_s(b, 0))
        for s_ in range(4):
            ms = [mfma_qk(u, b, kb2, s_, True) for u in range(2) for kb2 in range(2)]
            mix(ms, q_scale_s(b, s_ + 1) if s_ < 3 else [])
    rd2 = {x.w: x for x in k_reads(4) + v_reads(4) + k_reads(5) + v_reads(5)}
    assert all(w in early for w in rd2 if w[:2] == ("K", 4))
    if cfg.startv in (0, 2, 3, 4):
        if cfg.startv == 3:
            m1 = pv2(0, 1)
            mix(m1[:8])
            ev("Q2", q_read(2))
            mix(m1[8:])
            A(W0); L += q_scale(2); mix(qk(0, 2) + qk(1, 2)); L += rowmax(2) + sm(0, 2); mix(pv(0, 2), sm(1, 2))
        elif cfg.startv == 4:
            mix(pv2(0, 1)); mix(pv(0, 2))
        elif cfg.startv == 0:
            ev("Q1", q_read(1))
            A(W0); L += q_scale(1); mix(qk(0, 1) + qk(1, 1)); L += rowmax(1) + sm(0, 1); mix(pv(0, 1), sm(1, 1))
            ev("Q2", q_read(2))
            mix(pv(1, 1))
            A(W0); L += q_scale(2); mix(qk(0, 2) + qk(1, 2)); L += rowmax(2) + sm(0, 2); mix(pv(0, 2), sm(1, 2))
        else:
            SOV[(1, 2)] = aC
            wv = cfg.weave; cfg.weave = 12
            ev("Q1", q_read(1))
            A(W0); scale_qk(1, []); L += rowmax(1) + sm(0, 1)
            ev("Q2", q_read(2))
            mix(pv(0, 1), sm(1, 1))
            A(W0); scale_qk(2, [])
            mix(pv(1, 1), rowmax(2) + sm(0, 2), 2)
            mix(pv(0, 2), sm(1, 2))
            flush(); cfg.weave = wv
        ev("K1", tx(k_reads(2, vKl, STAGE) + k_reads(3, vKl, STAGE)), "end")
        mix(pv(1, 2))
        A("s_waitcnt lgkmcnt(8)"); mix(qk(2, 0)); A(W0)
        mix(qk(3, 0) + qk(2, 1) + qk(3, 1), sm(2, 0) + sm(3, 0), 2)
        mix(qk(2, 2) + qk(3, 2), sm(2, 1) + sm(3, 1))
        ev("Q3", q_read(3))
        L += sm(2, 2)
        A(W0); L += q_scale(3); mix(qk(0, 3) + qk(1, 3), sm(3, 2)); L += rowmax(3)
        mix(qk(2, 3) + qk(3, 3), sm(0, 3) + sm(1, 3))
        ev("V1", tx(v_reads(2, vVl, STAGE + SLOT) + v_reads(3, vVl, STAGE + SLOT)))
        mix(pv2(0, 3), sm(2, 3) + sm(3, 3))
        A(W0)
        mix(pv2(2, 0) + pv2(2, 1))
        ev("K2", tx(k_reads(4)) + [rd2[w].t for w in early if w[:2] == ("K", 5)])
        mix(pv2(2, 2))
        A(W0)
        mix(qk(4, 0))
        mix(qk(4, 1) + pv2(2, 3) + qk(4, 2), sm(4, 0, pend2) + sm(4, 1, pend2), 2)
        L += sm(4, 2, pend2)
        ev("V2", [rd2[w].t for w in early if w[0] == "V"])
    else:
        SOV[(1, 2)] = aC
        ev("Q1", q_read(1))
        A(W0); scale_qk(1, []); L += rowmax(1) + sm(0, 1)
        ev("Q2", q_read(2))
        mix(pv(0, 1), sm(1, 1))
        A(W0); scale_qk(2, [])
        mix(pv(1, 1), rowmax(2) + sm(0, 2), 2)
        ev("K1", [], "end")
        mix(pv(0, 2), sm(1, 2), mem=tx(k_reads(2, vKl, STAGE) + k_reads(3, vKl, STAGE)))
        mix(pv(1, 2)[:4]); A(W0)
        mix(qk(2, 0) + pv(1, 2)[4:] + qk(3, 0) + qk(2, 1) + qk(3, 1), sm(2, 0) + sm(3, 0), 10)
        ev("Q3", q_read(3))
        mix(qk(2, 2), sm(2, 1))
        A(W0)
        mix(qk(3, 2), sm(3, 1))
        scale_qk(3, [])
        L += sm(2, 2)[:6] + rowmax(3)
        mix(qk(2, 3), sm(2, 2)[6:] + sm(3, 2))
        mix(qk(3, 3), sm(0, 3))
        ev("V1", [])
        vr23 = [x.t for p_ in zip(v_reads(2, vVl, STAGE + SLOT)[0::2], v_reads(2, vVl, STAGE + SLOT)[1::2],
                                  v_reads(3, vVl, STAGE + SLOT)[0::2], v_reads(3, vVl, STAGE + SLOT)[1::2]) for x in p_]
        mix(pv(0, 3), sm(1, 3), mem=vr23[:16])
        mix(pv(1, 3), [], mem=vr23[16:])
        A("s_waitcnt lgkmcnt(12)")
        m0_ = pv2(2, 0)
        mix(m0_[:8], sm(2, 3)[:8]); A(W0)
        mix(m0_[8:] + pv2(2, 1), sm(2, 3)[8:] + sm(3, 3))
        ev("K2", [])
        mix(pv2(2, 2), mem=tx(k_reads(4)) + [rd2[w].t for w in early if w[:2] == ("K", 5)], per=1)
        A(W0)
        m3 = pv2(2, 3)
        mix(qk(4, 0) + qk(4, 1) + m3[:8] + qk(4, 2), sm(4, 0, pend2) + sm(4, 1, pend2), 7)
        ev("V2", [])
        mix(m3[8:], sm(4, 2, pend2), mem=[rd2[w].t for w in early if w[0] == "V"], per=3)
    flush()
    top_up(99)
    assert st["n"] == len(order)
    L += stamp(cfg, 4)
    A(W0)
    fixed, nfix = CK.fix(L[p0:], True)
    L[p0:] = fixed
    sys.stderr.write("start: %d lines, %d nops added\n" % (len(fixed), nfix))
    A("s_branch L_mid")
    KOV.clear(); VOV.clear(); SOV.clear(); POV.clear()
    def emit_loop(label, gaps, lazy, last_i, mid):
        A(label + ":")
        for g, gp in enumerate(gaps):
            if mid and g == H: A("L_mid:")
            for t in gp.text(lazy):
                A(t.replace("LIMIT", str((last_i + 1 + cfg.dist) * 16384)).replace("LOOP", label))
    if cfg.ramp: emit_loop("L_loop0", first, cfg.lazy, cfg.ramp, True)
    if cfg.stamps == 5: L += xstamp(cfg)
    if cfg.align: A(".p2align %d" % cfg.align)
    for _ in range(cfg.pad): A("s_nop 0")
    emit_loop("L_loop", body, False, 14, not cfg.ramp)

    KOV[31] = 224; VOV[31] = 192
    for b in range(4): SOV[(31, b)] = 112 + 8 * (b & 1)
    E = TL()
    orders = [
        "P0a P1a Q0b Q0c Q3a Q1b Q1c P0b P0c P2a Q2b Q2c P1b P1c P3a Q3b Q3c P2b P2c P3b P3c | s1a s2a s0b s0c s1b s1c e0 s3a s2b s2c e1 s3b s3c e2 e3",
        "P0a P1a Q0b Q0c Q3a Q1b Q1c P0b P0c P2a Q2b Q2c P1b P1c P3a P2b P2c Q3b Q3c P3b P3c | s1a s2a s0b s0c s1b s1c e0 s3a s2b s2c e1 e2 s3b s3c e3",
        "P0a Q3a P1a Q0b Q0c P2a Q1b P3a Q1c P0b P0c Q2b Q2c P1b P1c Q3b Q3c P2b P2c P3b P3c | s1a s2a s3a s0b s0c s1b s1c e0 s2b s2c e1 s3b s3c e2 e3",
        "P0a P1a Q0b Q0c Q3a Q1b Q1c P0b P0c P2a Q2b Q2c P1b P1c P3a Q3b P2b P2c Q3c P3b P3c | s1a s2a s0b s0c s1b s1c e0 s3a s2b s2c e1 s3b e2 s3c e3",
        "P0a P1a Q0b Q0c Q3a Q1b Q1c R0bc P2a Q2b Q2c R1bc P3a Q3b Q3c R2bc R3bc | s1a s2a s0b s0c s1b s1c e0 s3a s2b s2c e1 s3b s3c e2 e3",
        "P0a P1a Q0b Q0c Q3a Q1b Q1c R0bc P2a Q2b Q2c R1bc Q3b Q3c R2bc R3abc | s1a s2a s0b s0c s1b s1c e0 s2b s2c e1 s3a s3b s3c e2 e3",
        "P0a P1a Q0b Q0c Q1b Q1c R0bc P2a Q2b Q2c Q3a R1bc Q3b Q3c R2bc R3abc | s1a s2a s0b s0c s1b s1c e0 s2b s2c e1 s3a s3b s3c e2 e3",
        "P0a P1a Q0b Q0c Q3a Q1b Q1c R0bc P2a Q2b Q2c R1bc Q3b Q3c R2bc P3a R3bc | s1a s2a s0b s0c s1b s1c e0 s2b s2c e1 s3a s3b s3c e2 e3",
    ]
    mo, vo = [x.split() for x in orders[cfg.tail].split("|")]
    un = {"a": 29, "b": 30, "c": 31}
    if cfg.tail >= 5: SOV[(30, 3)] = 52
    done_at = {}
    for w in mo:
        b = int(w[1])
        if w[0] == "R":
            us = [un[c] for c in w[2:]]
            for u in us: E.pv[(u, b)] = len(E.G)
            if b in Z:
                for u in us: E.G.append(Gap(mfma_sum(u, b)))
                done_at[(b, 8)] = len(E.G) - 1
            for D in range(8):
                for u in us: E.G.append(Gap(mfma_pv(u, b, D)))
                done_at[(b, D)] = len(E.G) - 1
        else:
            E.add("QK" if w[0] == "Q" else "PV", un[w[2]], b)
            if w[0] == "P":
                for D in range(9): done_at[(b, D)] = E.pv[(un[w[2]], b)] + D
    G = E.G
    nm = len(G)
    if cfg.vgap15:
        G[0].salu.append(I("s_waitcnt vmcnt(12)", 4, "wait")); G[0].salu.append(I("s_barrier", 12, "bar"))
        for j, x in enumerate(k_reads(30) + k_reads(31)): G[1 + j].mem.append(x)
        G[cfg.vgap15].salu.append(I("s_waitcnt vmcnt(0)", 4, "wait")); G[cfg.vgap15].salu.append(I("s_barrier", 12, "bar"))
        for j, x in enumerate(v_reads(30) + v_reads(31)): G[cfg.vgap15 + 1 + j].mem.append(x)
    else:
        G[0].salu.append(I("s_waitcnt vmcnt(0)", 4, "wait")); G[0].salu.append(I("s_barrier", 12, "bar"))
        g_ = 1
        vv = v_reads(30) + v_reads(31)
        if cfg.tail >= 4: vv.sort(key=lambda x: (x.w[2], x.w[1], x.w[3]))
        for j, x in enumerate(k_reads(30) + k_reads(31) + vv):
            G[g_].mem.append(x)
            if not (cfg.dbl[0] <= g_ < cfg.dbl[1] and len(G[g_].mem) < 2): g_ += 1
    def side(g, x):
        while True:
            while g >= len(G): G.append(Gap(None))
            kinds = {y.k == "st" for y in G[g].mem}
            if G[g].m and kinds and kinds != {x.k == "st"} and x.k == "st": g += 1
            else: break
        G[g].mem.append(x)
    q = []
    for w in vo:
        b = int(w[1])
        if w[0] == "s":
            u = un[w[2]]
            q.append(sm_queue(u, b, E.qk, E.pv, skip=(lambda k: k not in pendset) if (u == 29 and b < 3) else (lambda k: False)))
        else:
            pvg = E.pv[(31, b)]
            inv = epi_inv(cfg, b, b in Z)
            for x in inv: x.lo = (lambda at, r=done_at[(b, 8)] + 3: r) if b in Z else (lambda at, r=pvg - 4, ks=[(uu, b, "A", 7) for uu in ((29, 30, 31) if b == 3 else (30, 31))]: max([r] + [at.get(k, 999) + 1 for k in ks]))
            inv[-1].key = ("inv", b)
            q.append(list(inv))
            prog = (w == vo[-1]) and mo[-1][0] == "R"
            packed = (w == vo[-1]) and not prog
            if cfg.pkburst and not packed and not prog:
                pk = I("\n".join(x.t for D in range(8) for x in epi_conv(b, D, True)[:2]), 64)
                pk.lo = lambda at, r=done_at[(b, 7)] + 3, k=("inv", b): max(r, at[k] + 1)
                pk.burst = True
                q[-1].append(pk)
            for D in range(8):
                pk_ = packed or (prog and D >= cfg.progpk)
                cv = epi_conv(b, D, pk_)
                if cfg.pkburst and not packed and not prog: cv = cv[4:]
                rel = max(min(done_at[(b, D)] + 3, nm + 1), nm + 1 if pk_ else 0)
                for x in cv: x.lo = lambda at, r=rel, k=("inv", b): max(r, at[k] + 1)
                def aft(g, b=b, D=D):
                    side(g + 1, epi_write(b, D))
                    if D == 7:
                        for j in range(4): side(g + 1 + (j + 1) // 2, epi_read(b, j))
                        for j in range(4): side(g + 9 + (cfg.stsp if b != int(vo[-1][1]) else 1) * j, epi_store(cfg, b, j))
                cv[-1].after = aft
                q[-1] += cv
    assert not [k for k in pendset if k[0] == 0]
    at2 = {}
    pour2(G, q, at2)
    add_waits(cfg, G, {x.w for x in k_reads(29) + v_reads(29)})
    sys.stderr.write("tail costs: %s  est %d\n" % ("".join("%x" % min(15, gp.cost() // 4) if gp.m else "(%x)" % (gp.cost() // 4) for gp in G),
                      sum(8 + max(8, gp.cost()) if gp.m else gp.cost() for gp in G)))
    sys.stderr.write("stores at gaps: %s of %d/%d\n" % ([g for g, gp in enumerate(G) for x in gp.mem if x.k == "st"][::4], nm, len(G)))
    if cfg.stamps == 4:
        sys.stderr.write("est segs: %s\n" % [sum(8 + max(8, gp.cost()) if gp.m else gp.cost() for gp in G[a_:b_]) for a_, b_ in zip(cfg.tst, cfg.tst[1:])])
    A("; ---- last tile, block by block, with the epilogue woven in ----")
    p1 = len(L)
    for g, gp in enumerate(G):
        if cfg.stamps == 5 and g == 0: L += xstamp(cfg)
        if cfg.stamps == 4 and g in cfg.tst: L += xstamp(cfg)
        if g == nm:
            L += stamp(cfg, 5)
            if cfg.stamps: A("s_waitcnt lgkmcnt(0)")
            A("s_nop 3")
        for t in "\n".join(gp.text()).split("\n"):
            if not t: continue
            pv_ = L[-1]
            if pv_.startswith("v_rcp_f32") or (pv_.startswith("v_exp_f32") and not gp.m): A("s_nop 0")
            A(t)
    L[p1:] = CK.fix(L[p1:], True)[0]
    ls = [Lz(b) if b in Z else vL[b] for b in range(4)]
    L += ["v_add_f32 v%d, v%d, v%d" % (t0, ls[0], ls[1]), "v_add_f32 v%d, v%d, v%d" % (t1, ls[2], ls[3]), "v_add_f32 v%d, v%d, v%d" % (t0, t0, t1),
          "v_cmp_nge_f32 vcc, s%d, v%d" % (sThr, t0), "s_cbranch_vccnz L_fallback"]
    if cfg.stamps:
        A("s_waitcnt vmcnt(0)")
        L += stamp(cfg, 6) + stamp(cfg, 1)
        A("s_waitcnt lgkmcnt(0)")
        A("s_lshl_b32 s%d, s2, 2" % sTmp)
        A("s_add_u32 s%d, s%d, s%d" % (sTmp, sTmp, sW))
        A("s_lshl_b32 s%d, s%d, 8" % (sTmp, sTmp))
        A("v_mov_b32 v%d, s%d" % (t0, sTmp))
        for kk in range(7):
            A("v_mov_b32 v%d, s%d" % (t2, sStamp + 2 * kk))
            A("v_mov_b32 v%d, s%d" % (t3, sStamp + 2 * kk + 1))
            A("global_store_dwordx2 v%d, v[%d:%d], s[44:45] offset:%d" % (t0, t2, t3, 8 * kk))
            A("s_nop 1")
        for kk in range(XS[0]):
            A("v_mov_b32 v%d, s%d" % (t2, 72 + 2 * kk))
            A("v_mov_b32 v%d, s%d" % (t3, 72 + 2 * kk + 1))
            A("global_store_dwordx2 v%d, v[%d:%d], s[44:45] offset:%d" % (t0, t2, t3, 192 + 8 * kk))
            A("s_nop 1")
        A("v_lshl_add_u32 v%d, v%d, 3, v%d" % (t0, vLane, t0))
        A("v_cmp_gt_u32 vcc, 16, v%d" % vLane)
        A("s_and_saveexec_b64 s[48:49], vcc")
        A("global_store_dwordx2 v%d, v[%d:%d], s[44:45] offset:64" % (t0, vStLo, vStRt))
    A("L_end:")
    A("s_endpgm")
    L += fallback(cfg)
    A('.section .rodata,"a"'); A(".p2align 6")
    A(".amdhsa_kernel %s_kernel" % NAME)
    A("  .amdhsa_next_free_vgpr 512"); A("  .amdhsa_next_free_sgpr 102"); A("  .amdhsa_accum_offset 256")
    A("  .amdhsa_group_segment_fixed_size 0"); A("  .amdhsa_kernarg_size 48"); A("  .amdhsa_user_sgpr_count 2")
    A("  .amdhsa_user_sgpr_kernarg_segment_ptr 1"); A("  .amdhsa_system_sgpr_workgroup_id_x 1")
    A(".end_amdhsa_kernel")
    return "\n".join(L).replace(", s93 offen", ", 0 offen") + "\n"

if __name__ == "__main__":
    ap = argparse.ArgumentParser()
    ap.add_argument("-o", default="cdna_kernels/%s.s" % NAME)
    ap.add_argument("opts", nargs="*")
    a = ap.parse_args()
    cfg = Cfg()
    for o in a.opts:
        k, v = o.split("=")
        cur = getattr(cfg, k)
        if isinstance(cur, str): v = (" " + v.replace("+", " ")) if v else ""
        elif isinstance(cur, tuple): v = tuple(int(x) for x in v.split(",")) if v else ()
        elif isinstance(cur, float): v = float(v)
        else: v = int(v)
        setattr(cfg, k, v)
    open(a.o, "w").write(build(cfg))
```

```python
import sys, struct, argparse
import check as CK

NAME = "standalone__gqa_softmax__near_ridge"
SLOT = 16640
BLK = 1040
STAGE = 2 * SLOT
LDS_BYTES = 9 * SLOT
OPITCH = 272
OREG = 64 * OPITCH

def f2u(x): return struct.unpack("<I", struct.pack("<f", x))[0]

class Cfg:
    stamps = 0
    ld_pol = " nt"
    st_pol = " sc0 sc1"
    thresh = 2.0 ** 60
    dmag = (10, 22, 34, 46, 58, 70, 82, 94)
    dmag0 = (46, 58, 70, 82, 93, 101, 109, 117)
    lat = 5
    pf = 17
    align = 6
    zset = (0, 2)
    ramp = 2
    lazy = 1
    clus = 0
    kgap = 0
    wins = (2,)
    order = " Q0 K0 V0 Q1 Q2 K1 Q3 V1 K2 V2 K3 V3 K4"
    tail = 7
    urg = 6.0
    elevel = 20
    stsp = 4
    progpk = 6
    xs = " K0 V0 Q1"
    tst = (0, 13, 23, 40, 78, 90, 100, 110)
    loose = 0
    dense = 1
    snake = 0
    bl2 = 3
    bl1 = 1

class I:
    def __init__(self, t, c=4, k="valu", w=None, need=None):
        self.t = t; self.c = c; self.k = k; self.w = w; self.need = need or []

def O(b, D): return 128 + 32 * b + 4 * D
def N(b): return 96 + 4 * b
def Qa(b, s): return 16 * b + 4 * s
KOV, VOV, SOV, POV = {}, {}, {}, {}
def Ka(u, kb2, s): return KOV.get(u, 64 + 32 * (u & 1)) + 16 * kb2 + 4 * s
def Va(u, D): return VOV.get(u, 128 + 32 * (u & 1)) + 4 * D
def S(u, b): return SOV.get((u, b), (44, 52, 112, 120)[b] if u & 1 else 64 + 8 * b)
def Pr(u, b): return POV.get((u, b), S(u, b))
vLane = 1
vK, vKl, vV, vVl = 2, 3, 4, 5
vDma = (6, 7, 8, 9)
vL = (10, 11, 12, 13)
vQrd, vOw, vOr = 14, 15, 16
vInv = (18, 20, 22, 24)
vT = (26, 27, 28, 29)
vStLo, vStRt = 30, 31
vOnes = 32
ZL = []
def Lz(b): return 36 + 4 * ZL.index(b)
vX = (17, 19)
vQd = (60, 61, 62, 63)
sW = 3
sSrdQ, sSrdK, sSrdV, sSrdO = 8, 12, 16, 20
sC, sThr, sWoff, sOff, sCur, sPrev = 24, 26, 27, 28, 29, 30
sOreg = 31
sK16 = (None, 32, 33, 34)
sPrev2 = 35
sTmp = 36
sWslot = 46
sIt = 47
sStamp = 56
sA, sB, sD = 29, 30, 35

def vr(a, n): return "v[%d:%d]" % (a, a + n - 1)
def ar(a, n): return "a[%d:%d]" % (a, a + n - 1)
def srd(a): return "s[%d:%d]" % (a, a + 3)
MF = "v_mfma_f32_16x16x32_bf16"

SNAKE = [0]
def mfma_qk(u, b, kb2, s, zero=False):
    d = vr(S(u, b) + 4 * kb2, 4)
    c = d if s else ("0" if zero else vr(N(b), 4))
    if SNAKE[0] and kb2: s = 3 - s
    return I("%s %s, %s, %s, %s" % (MF, d, ar(Ka(u, kb2, s), 4), ar(Qa(b, s), 4), c), 8, "mfma", need=[("K", u, kb2, s)])

def mfma_pv(u, b, D, zero=False):
    d = vr(O(b, D), 4)
    x = I("%s %s, %s, %s, %s" % (MF, d, ar(Va(u, D), 4), vr(Pr(u, b), 4), "0" if zero else d), 8, "mfma", need=[("V", u, D, 0), ("V", u, D, 1)])
    x.pneed = (u, b)
    return x

def mfma_sum(u, b, zero=False):
    d = vr(Lz(b), 4)
    x = I("%s %s, %s, %s, %s" % (MF, d, vr(vOnes, 4), vr(Pr(u, b), 4), "0" if zero else d), 8, "mfma")
    x.pneed = (u, b)
    return x

def k_reads(u, areg=vK, base=0):
    return [I("ds_read_b128 %s, v%d offset:%d" % (ar(Ka(u, kb2, s), 4), areg, base + 256 * (2 * (u & 1) + kb2) + 16 * s), 4, "ds", w=("K", u, kb2, s))
            for kb2 in range(2) for s in (range(3, -1, -1) if SNAKE[0] and kb2 else range(4))]

def v_reads(u, areg=vV, base=SLOT):
    return [I("ds_read_b64_tr_b16 %s, v%d offset:%d" % (ar(Va(u, D) + 2 * e, 2), areg, base + 256 * (2 * (u & 1) + e) + 16 * D), 4, "ds", w=("V", u, D, e))
            for D in range(8) for e in range(2)]

def dma_ins(cfg, srdreg, j, soff, regs=vDma):
    return I("buffer_load_dwordx4 v%d, %s, %s offen offset:%d%s lds" % (regs[j], srd(srdreg), soff, BLK * j, cfg.ld_pol), 8, "dma")

def sm_ins(kind, u, b, e):
    s = S(u, b)
    if kind == "F": x = I("v_add_f32 v%d, v%d, v%d" % (s + e, s + e, N(b)), 4)
    elif kind == "E": x = I("v_exp_f32 v%d, v%d" % (s + e, s + e), 8, "trans")
    elif kind == "A": x = I("v_add_f32 v%d, v%d, v%d" % (vL[b], vL[b], s + e), 4)
    else: x = I("v_cvt_pk_bf16_f32 v%d, v%d, v%d" % (Pr(u, b) + e, s + 2 * e, s + 2 * e + 1), 4)
    x.key = (u, b, kind, e)
    return x

def sm_plain(u, b, adds, withF=True, skip=()):
    out = []
    for j in range(6):
        for h in range(2):
            if j < 4 and withF: out.append(sm_ins("F", u, b, 2 * j + h))
            if 1 <= j <= 4: out.append(sm_ins("E", u, b, 2 * (j - 1) + h))
            if j >= 2 and adds: out.append(sm_ins("A", u, b, 2 * (j - 2) + h))
        if j >= 2: out.append(sm_ins("C", u, b, j - 2))
    return [x.t for x in out if x.key[1:] not in skip]

def xlane(op, r, t):
    return ["v_mov_b32 v%d, v%d" % (t, r), "s_nop 1", "v_permlane32_swap_b32 v%d, v%d" % (r, t), "%s v%d, v%d, v%d" % (op, r, r, t),
            "v_mov_b32 v%d, v%d" % (t, r), "s_nop 1", "v_permlane16_swap_b32 v%d, v%d" % (r, t), "%s v%d, v%d, v%d" % (op, r, r, t)]

def max_chain(u, b, dst, t):
    s = S(u, b)
    out = ["v_max3_f32 v%d, v%d, v%d, v%d" % (dst, s, s + 1, s + 2), "v_max3_f32 v%d, v%d, v%d, v%d" % (dst, dst, s + 3, s + 4),
           "v_max3_f32 v%d, v%d, v%d, v%d" % (dst, dst, s + 5, s + 6), "v_max_f32 v%d, v%d, v%d" % (dst, dst, s + 7)]
    return out + xlane("v_max_f32", dst, t)

class Gap:
    def __init__(self, m):
        self.m = m; self.salu = []; self.mem = []; self.valu = []; self.closed = False
    def cost(self):
        c = 0
        for i, x in enumerate(self.salu): c += x.c - (4 if i == 0 and self.m else 0)
        return c + sum(x.c for x in self.mem) + sum(x.c for x in self.valu)
    def text(self, lazy=False):
        body = self.salu + (self.valu + self.mem if lazy else self.mem + self.valu)
        return ([self.m.t] if self.m else []) + [x.t for x in body]

def add_waits(cfg, gaps, have):
    issued = []; covered = -1; idx = {}
    for g, gp in enumerate(gaps):
        for x in gp.salu:
            if x.k == "wait0": covered = len(issued) - 1
        nd = []
        if g + 1 < len(gaps) and gaps[g + 1].m: nd += gaps[g + 1].m.need
        for x in gp.mem: nd += x.need
        missing = [t for t in nd if t not in idx and t not in have]
        if missing: raise SystemExit("read not issued before use: %s gap %d" % (missing, g + 1))
        need = [idx[t] for t in nd if t in idx]
        if need and max(need) > covered:
            tgt = max(need)
            if issued[tgt][1] > g - cfg.lat: sys.stderr.write("warn: short ds latency at gap %d (issued %d)\n" % (g, issued[tgt][1]))
            for j in range(len(issued)):
                if issued[j][1] <= g - cfg.lat: tgt = max(tgt, j)
            n = min(15, len(issued) - 1 - tgt)
            gp.salu.insert(0, I("s_waitcnt lgkmcnt(%d)" % n, 4, "wait"))
            covered = len(issued) - 1 - n
        for x in gp.mem:
            if x.k in ("ds", "dsw"): idx[x.w] = len(issued); issued.append((x.w, g))

def epi_inv(cfg, b, z):
    if z: return [I("v_rcp_f32 v%d, v%d" % (vInv[b], Lz(b)), 8, "trans")]
    out = [I(t, 8 if t.startswith("s_nop") else 4) for t in xlane("v_add_f32", vL[b], vInv[b])]
    return out + [I("v_rcp_f32 v%d, v%d" % (vInv[b], vL[b]), 8, "trans")]

def epi_conv(b, D, packed):
    o = O(b, D); out = []
    if packed:
        for r in (0, 2): out.append(I("v_pk_mul_f32 %s, %s, %s op_sel_hi:[1,0]" % (vr(o + r, 2), vr(o + r, 2), vr(vInv[b], 2))))
    else:
        for r in range(4): out.append(I("v_mul_f32 v%d, v%d, v%d" % (o + r, o + r, vInv[b])))
    for k in range(2): out.append(I("v_cvt_pk_bf16_f32 v%d, v%d, v%d" % (o + k, o + 2 * k, o + 2 * k + 1)))
    return out

def epi_write(b, D): return I("ds_write_b64 v%d, %s offset:%d" % (vOw, vr(O(b, D), 2), 16 * OPITCH * b + 16 * D), 12, "dsw", w=("W", b, D))
def epi_read(b, j): return I("ds_read_b128 %s, v%d offset:%d" % (vr(O(b, j), 4), vOr, OPITCH * (16 * b + 4 * j)), 4, "ds", w=("R", b, j))
def epi_store(cfg, b, j):
    return I("buffer_store_dwordx4 %s, v%d, %s, %s offen offset:%d%s" % (vr(O(b, j), 4), vDma[j], srd(sSrdO),
             "s%d" % sK16[b] if b else "0", BLK * j, cfg.st_pol), 16, "st", need=[("R", b, j)])

def fallback(cfg):
    L = []; A = L.append
    KOV.clear(); VOV.clear(); SOV.clear(); POV.clear()
    A("; ---- exact fallback: online softmax with the true running maximum, one wave alone in its own LDS region ----")
    A("L_fallback:")
    A("s_waitcnt vmcnt(0) lgkmcnt(0)")
    fd = vQd
    A("v_lshlrev_b32 v%d, 4, v%d" % (fd[0], vLane))
    for j in range(1, 4): A("v_add_u32 v%d, %d, v%d" % (fd[j], 3056 * j, fd[0]))
    A("v_add_u32 v%d, s%d, v%d" % (vK, sOreg, vKl))
    A("v_add_u32 v%d, s%d, v%d" % (vV, sOreg, vVl))
    for r in range(128): A("v_mov_b32 v%d, 0" % (128 + r))
    for b in range(4):
        A("v_mov_b32 v%d, 0" % vL[b]); A("v_mov_b32 v%d, 0x7f7fffff" % N(b))
    A("s_mov_b32 s%d, 0" % sOff)
    A("L_fb_loop:")
    for sr in (sSrdK, sSrdV):
        for jj in range(4):
            A("s_add_u32 m0, s%d, %d" % (sOreg, 4 * BLK * jj))
            A("s_add_u32 s49, s%d, %d" % (sOff, 1024 * jj))
            for j in range(4): A(dma_ins(cfg, sr, j, "s49", fd).t)
        A("s_waitcnt vmcnt(0)")
        for u in range(2):
            for x in (k_reads(u, vK, 0) if sr == sSrdK else v_reads(u, vV, 0)): A(x.t)
            A("s_waitcnt lgkmcnt(0)")
    for u in range(2):
        for b in range(4):
            for kb2 in range(2):
                for s in range(4): A(mfma_qk(u, b, kb2, s, True).t)
        A("s_nop 15")
        for b in range(4):
            L += max_chain(u, b, vT[0], vT[1])
            A("v_sub_f32 v%d, 0, v%d" % (vT[0], vT[0]))
            A("v_min_f32 v%d, v%d, v%d" % (vT[0], vT[0], N(b)))
            A("v_sub_f32 v%d, v%d, v%d" % (vT[1], vT[0], N(b)))
            A("v_exp_f32 v%d, v%d" % (vT[1], vT[1]))
            A("v_mov_b32 v%d, v%d" % (N(b), vT[0]))
            A("v_mul_f32 v%d, v%d, v%d" % (vL[b], vL[b], vT[1]))
            for r in range(32): A("v_mul_f32 v%d, v%d, v%d" % (O(b, 0) + r, O(b, 0) + r, vT[1]))
            L += sm_plain(u, b, True)
        A("s_nop 1")
        for b in range(4):
            for D in range(8): A(mfma_pv(u, b, D).t)
        A("s_nop 15")
    A("s_add_u32 s%d, s%d, 16384" % (sOff, sOff))
    A("s_cmp_lt_u32 s%d, 262144" % sOff)
    A("s_cbranch_scc1 L_fb_loop")
    for b in range(4):
        L += [x.t for x in epi_inv(cfg, b, False)] + ["s_nop 0"]
        for D in range(8): L += [x.t for x in epi_conv(b, D, False)] + [epi_write(b, D).t]
        A("s_waitcnt lgkmcnt(0)")
        L += [epi_read(b, j).t for j in range(4)]
        A("s_waitcnt lgkmcnt(0)")
        L += [epi_store(cfg, b, j).t for j in range(4)]
    A("s_endpgm")
    return L

def stamp(cfg, idx):
    if not cfg.stamps: return []
    r = sStamp + 2 * idx
    return ["%s s[%d:%d]" % ("s_memrealtime" if idx < 2 else "s_memtime", r, r + 1)]

HEADER = """
Attention forward  out = softmax(q k^T / sqrt(128)) v,  B*H = 256 heads, Sq 256, Sk 1024, D 128, bf16 in / bf16 out.
Written with my own generator script (dev/gen7.py); every instruction and its placement comes from that script.
Kernarg: q @0, k @8, v @16, out @24, debug @32 (unused), ws @40 (unused).

One workgroup per head, 4 waves, one per SIMD; a wave owns 64 query rows = 4 blocks of 16.
K / V / Q reach LDS through LDS-DMA (1 KiB blocks, pitch 1040 B, 4-stage ring of 64-key K and V tiles).
S^T = K Q^T and O^T = V^T P^T use v_mfma_f32_16x16x32_bf16, so a lane always works on one query row:
  a[0:63] Q (pre-multiplied by log2(e)/sqrt(D)), a[64:127] K fragments, a[128:191] V fragments (transposing LDS reads),
  v[128:255] O accumulators, v[44:59] v[64:95] v[112:127] scores / packed probabilities, v[96:111] minus the row reference.
Softmax guard: the reference subtracted from a row is the true maximum of its first 64 scores (it enters through the
MFMA C operand).  Every probability is bounded by the row sum, so one check of the sums at the end proves that nothing
came near overflow; a wave that fails it redoes its rows in L_fallback with the true running maximum.
Row sums: VALU adds for two of the blocks, extra MFMAs against a ones matrix for the other two.
Layout of the code: tiles 0-1 in data-arrival order, L_loop0 (next two tiles, looser instruction order: the chip
throttles memory for the rest of the launch if the load rises too fast), L_loop (one tile per trip), then the end of
the last tile, where finished blocks are normalised, transposed through LDS and stored while the others still compute.
"""
XS = [0]
def xstamp(cfg):
    if cfg.stamps < 2 or XS[0] >= 8: return []
    r = 72 + 2 * XS[0]; XS[0] += 1
    if cfg.stamps == 3:
        return ["s_memtime s[%d:%d]" % (r, r + 1), "s_memrealtime s[90:91]", "s_waitcnt lgkmcnt(0)", "s_mov_b32 s%d, s90" % (r + 1)]
    return ["s_memtime s[%d:%d]" % (r, r + 1), "s_waitcnt lgkmcnt(0)"]

def build(cfg):
    Z = set(cfg.zset)
    ZL[:] = sorted(Z)
    SNAKE[0] = cfg.snake
    assert len(Z) <= 2
    L = []; A = L.append
    for t in HEADER.strip("\n").split("\n"): A(("; " + t).rstrip())
    A("; @launch grid=(256,1,1) block=(256,1,1) lds=%d" % LDS_BYTES)
    A('.amdgcn_target "amdgcn-amd-amdhsa--gfx950"')
    A(".text"); A(".globl %s_kernel" % NAME); A(".p2align 8"); A(".type %s_kernel,@function" % NAME)
    A("%s_kernel:" % NAME)
    t0, t1, t2, t3 = vT
    A("s_load_dwordx4 s[4:7], s[0:1], 0")
    A("s_load_dwordx4 s[40:43], s[0:1], 16")
    A("s_lshr_b32 s%d, s2, 8" % sTmp)
    A("s_cbranch_scc1 L_end")
    L += stamp(cfg, 0) + stamp(cfg, 2)
    if cfg.stamps: A("s_load_dwordx2 s[44:45], s[0:1], 40")
    if cfg.pf:
        A("s_getpc_b64 s[48:49]")
        A("v_lshlrev_b32 v%d, 7, v0" % t1)
        A("v_min_u32 v%d, %d, v%d" % (t1, cfg.pf * 1024, t1))
        A("global_load_dword v192, v%d, s[48:49]" % t1)
    A("v_lshrrev_b32 v%d, 6, v0" % t0)
    A("v_lshlrev_b32 v%d, 4, v0" % vDma[0])
    A("v_readfirstlane_b32 s%d, v%d" % (sW, t0))
    A("v_lshlrev_b32 v%d, 2, v0" % t0)
    A("v_and_b32 v%d, 0xc0, v%d" % (t0, t0))
    A("v_xor_b32 v%d, v%d, v%d" % (vQd[0], t0, vDma[0]))
    A("s_movk_i32 s%d, 3056" % (sTmp + 2))
    for j in range(1, 4): A("v_add_u32 v%d, s%d, v%d" % (vQd[j], sTmp + 2, vQd[j - 1]))
    A("s_mul_i32 s%d, s%d, %d" % (sWoff, sW, 4 * BLK))
    A("s_lshl_b32 s%d, s2, 16" % sTmp)
    A("s_mov_b32 s%d, 65536" % (sSrdQ + 2)); A("s_mov_b32 s%d, 0x20000" % (sSrdQ + 3))
    for j in range(1, 4): A("v_add_u32 v%d, s%d, v%d" % (vDma[j], sTmp + 2, vDma[j - 1]))
    A("s_lshl_b32 s%d, s2, 18" % (sTmp + 1))
    A("s_lshl_b32 s%d, s%d, 2" % (sSrdK + 2, sSrdQ + 2)); A("s_mov_b32 s%d, s%d" % (sSrdK + 3, sSrdQ + 3))
    def mk(sr, p, t):
        A("s_add_u32 s%d, s%d, s%d" % (sr, p, t))
        A("s_addc_u32 s%d, s%d, 0" % (sr + 1, p + 1))
    def grp(name):
        so = lambda j: "0" if j == 0 else ("s%d" % sK16[j] if j < 4 else "s%d" % sOff)
        j = int(name[1])
        if name[0] == "Q":
            return ["s_add_u32 m0, s%d, %d" % (sWoff, (5 + j) * SLOT), "s_nop 0"] + [dma_ins(cfg, sSrdQ, x, so(j), vQd).t for x in range(4)]
        sr, slot = (sSrdK, 2 * (j % 4)) if name[0] == "K" else (sSrdV, 2 * (j % 4) + 1)
        return ["s_add_u32 m0, s%d, %d" % (sWoff, slot * SLOT), "s_nop 0"] + [dma_ins(cfg, sr, x, so(j)).t for x in range(4)]
    order = cfg.order.split()
    st = {"n": 0, "max": order.index("V2")}
    def top_up(done):
        w_ = cfg.wins[min(done, len(cfg.wins) - 1)]
        while st["n"] < min(st["max"], done + w_):
            L.extend(grp(order[st["n"]])); st["n"] += 1
    def wait_for(name):
        k = order.index(name)
        if name in cfg.xs.split() and cfg.stamps == 2: L.extend(xstamp(cfg))
        A("s_waitcnt vmcnt(%d)" % (4 * (st["n"] - k - 1)))
        if name[0] != "Q": A("s_barrier")
        if name in cfg.xs.split() and cfg.stamps < 4: L.extend(xstamp(cfg))
        return k + 1
    g0 = grp(order[0])
    A(g0[0])
    A("s_waitcnt lgkmcnt(0)")
    mk(sSrdQ, 4, sTmp)
    L.extend(g0[2:])
    g1 = grp(order[1])
    A(g1[0]); mk(sSrdK, 6, sTmp + 1); L.extend(g1[2:]); st["n"] = 2
    L.extend(["v_and_b32 v%d, 63, v0" % vLane, "s_mul_i32 s%d, s%d, %d" % (sOreg, sW, OREG),
              "s_mov_b32 s%d, s%d" % (sSrdV + 2, sSrdK + 2), "s_mov_b32 s%d, s%d" % (sSrdV + 3, sSrdQ + 3),
              "s_mov_b32 s%d, s%d" % (sSrdO + 2, sSrdQ + 2), "s_mov_b32 s%d, s%d" % (sSrdO + 3, sSrdQ + 3)])
    L.extend(["s_mov_b32 s%d, %d" % (sK16[j], 16384 * j) for j in range(1, 4)])
    mk(sSrdV, 40, sTmp + 1)
    top_up(0)
    mk(sSrdO, 42, sTmp)
    A("v_bfe_u32 v%d, v%d, 2, 2" % (t0, vLane))
    A("v_lshrrev_b32 v%d, 1, v%d" % (t1, t0))
    A("v_xor_b32 v%d, v%d, v%d" % (t1, t0, t1))
    A("v_and_b32 v%d, 3, v%d" % (t2, vLane))
    A("v_lshrrev_b32 v%d, 4, v%d" % (t3, vLane))
    A("v_and_b32 v%d, 1, v%d" % (vX[0], t3))
    A("v_lshrrev_b32 v%d, 1, v%d" % (vX[1], t3))
    A("v_lshl_add_u32 v%d, v%d, 1, v%d" % (vX[0], vX[0], vX[1]))
    A("v_lshl_add_u32 v%d, v%d, 2, v%d" % (vKl, t1, t2))
    A("v_mul_u32_u24 v%d, %d, v%d" % (vKl, BLK, vKl))
    A("v_lshl_add_u32 v%d, v%d, 6, v%d" % (vKl, vX[0], vKl))
    A("v_mul_u32_u24 v%d, %d, v%d" % (vQrd, BLK, t2))
    A("v_lshl_add_u32 v%d, v%d, 8, v%d" % (vQrd, t1, vQrd))
    A("v_xor_b32 v%d, v%d, v%d" % (vX[0], vX[0], t1))
    A("v_lshl_add_u32 v%d, v%d, 6, v%d" % (vQrd, vX[0], vQrd))
    A("v_add_u32 v%d, s%d, v%d" % (vQrd, sWoff, vQrd))
    A("v_add_u32 v%d, %d, v%d" % (vQrd, 5 * SLOT, vQrd))
    A("v_lshl_add_u32 v%d, v%d, 2, v%d" % (vOw, t2, t1))
    A("v_mul_u32_u24 v%d, %d, v%d" % (vOw, OPITCH, vOw))
    A("v_lshl_add_u32 v%d, v%d, 7, v%d" % (vOw, vX[1], vOw))
    A("v_and_b32 v%d, 1, v%d" % (vX[0], t3))
    A("v_lshl_add_u32 v%d, v%d, 3, v%d" % (vOw, vX[0], vOw))
    A("v_add_u32 v%d, s%d, v%d" % (vOw, sOreg, vOw))
    A("v_mul_u32_u24 v%d, %d, v%d" % (vOr, OPITCH, t3))
    A("v_and_b32 v%d, 15, v%d" % (vX[0], vLane))
    A("v_lshl_add_u32 v%d, v%d, 4, v%d" % (vOr, vX[0], vOr))
    A("v_add_u32 v%d, s%d, v%d" % (vOr, sOreg, vOr))
    A("v_xor_b32 v%d, v%d, v%d" % (vX[1], t3, vX[1]))
    A("v_lshl_add_u32 v%d, v%d, 2, v%d" % (vVl, vX[1], t0))
    A("v_mul_u32_u24 v%d, %d, v%d" % (vVl, BLK, vVl))
    A("v_lshrrev_b32 v%d, 1, v%d" % (vX[0], t2))
    A("v_lshl_add_u32 v%d, v%d, 7, v%d" % (vVl, vX[0], vVl))
    A("v_and_b32 v%d, 1, v%d" % (vX[0], t2))
    A("v_lshl_add_u32 v%d, v%d, 3, v%d" % (vVl, vX[0], vVl))
    A("v_add_u32 v%d, %d, v%d" % (vK, 2 * STAGE, vKl))
    A("v_add_u32 v%d, %d, v%d" % (vV, 2 * STAGE, vVl))
    cbits = f2u(1.4426950408889634 * 128 ** -0.5)
    A("s_mov_b32 s%d, 0x%08x" % (sC, cbits)); A("s_mov_b32 s%d, 0x%08x" % (sC + 1, cbits))
    A("s_mov_b32 s%d, 0x%08x" % (sThr, f2u(cfg.thresh)))
    A("s_mov_b32 s%d, %d" % (sOff, 4 * 16384))
    A("s_mov_b32 s%d, %d" % (sA, 3 * STAGE)); A("s_mov_b32 s%d, 0" % sB); A("s_mov_b32 s%d, %d" % (sD, STAGE))
    if cfg.stamps: A("s_mov_b32 s%d, -1" % sIt)
    for b in range(4): A("v_mov_b32 v%d, 0" % vL[b])
    for r in range(4): A("v_mov_b32 v%d, 0x3f803f80" % (vOnes + r))
    if cfg.stamps: A("v_mov_b32 v%d, 0" % vStLo); A("v_mov_b32 v%d, 0" % vStRt)

    class TL:
        def __init__(self): self.G = []; self.qk = {}; self.pv = {}; self.done = {}
        def qkt(self, T, b):
            for u in (2 * T, 2 * T + 1):
                self.qk[(u, b)] = len(self.G)
                self.G += [Gap(mfma_qk(u, b, kb2, s)) for kb2 in range(2) for s in range(4)]
        def pvt(self, T, b):
            us = (2 * T, 2 * T + 1)
            for u in us: self.pv[(u, b)] = len(self.G)
            if b in Z:
                for u in us: self.G.append(Gap(mfma_sum(u, b)))
                self.done[(b, 8)] = len(self.G) - 1
            for D in range(8):
                for u in us: self.G.append(Gap(mfma_pv(u, b, D)))
                self.done[(b, D)] = len(self.G) - 1
        def body(self, T):
            self.pvt(T, 3); self.qkt(T + 1, 2); self.pvt(T + 1, 0); self.qkt(T + 1, 3)
            self.pvt(T + 1, 1); self.qkt(T + 2, 0); self.pvt(T + 1, 2); self.qkt(T + 2, 1)
    NB = 128 + 2 * len(Z)
    def vt_reads(T, areg=vV, base=SLOT):
        return sorted(v_reads(2 * T, areg, base) + v_reads(2 * T + 1, areg, base), key=lambda x: (x.w[2], x.w[1], x.w[3]))
    def kt_reads(T, areg=vK, base=0): return k_reads(2 * T, areg, base) + k_reads(2 * T + 1, areg, base)

    def body_fixed(G):
        G[0].salu.append(I("s_waitcnt vmcnt(8)", 4, "wait"))
        G[0].salu.append(I("s_barrier", 12, "bar")); G[0].closed = True
        vd, kd = cfg.dmag[:4], cfg.dmag[4:]
        G[vd[0] - 1].salu.append(I("s_add_u32 m0, m0, %d" % SLOT, 4, "salu"))
        for j, g in enumerate(vd): G[g].mem.append(dma_ins(cfg, sSrdV, j, "s%d" % sOff)); G[g].closed = True
        G[vd[3] + 1].salu.append(I("s_add_u32 s%d, s%d, 16384" % (sOff, sOff), 4, "salu"))
        assert kd[0] - 1 > vd[3] + 1
        G[kd[0] - 1].salu.append(I("s_add_u32 m0, s%d, s%d" % (sD, sWoff), 4, "salu"))
        for j, g in enumerate(kd): G[g].mem.append(dma_ins(cfg, sSrdK, j, "s%d" % sOff)); G[g].closed = True
        seq = ["s_mov_b32 s%d, s%d" % (sA, sB), "s_mov_b32 s%d, s%d" % (sB, sD), "s_add_u32 s%d, s%d, %d" % (sD, sD, STAGE),
               "s_cmp_eq_u32 s%d, %d" % (sD, 4 * STAGE), "s_cselect_b32 s%d, 0, s%d" % (sD, sD)]
        assert kd[0] < NB - 12
        for j, t in enumerate(seq): G[NB - 12 + j].salu.append(I(t, 4, "salu"))
        G[NB - 3].salu.append(I("s_cmp_lt_u32 s%d, LIMIT" % sOff, 4, "salu"))
        if cfg.stamps and cfg.stamps != 5:
            G[NB - 6].salu.append(I("s_memtime s[50:51]", 4, "salu"))
            G[NB - 5].salu.append(I("s_memrealtime s[52:53]", 4, "salu"))
            G[NB - 14].salu.append(I("s_add_u32 s%d, s%d, 1" % (sIt, sIt), 4, "salu"))
        G[NB - 2].salu.append(I("s_waitcnt lgkmcnt(0)", 4, "wait0"))
        G[NB - 1].salu.append(I("s_cbranch_scc1 LOOP", 28, "br")); G[NB - 1].closed = True

    NSIM = 14
    T = TL()
    for i in range(1, NSIM + 1): T.body(i)
    G = T.G
    for i in range(NSIM): body_fixed(G[i * NB:(i + 1) * NB])
    lastuse = {}; firstuse = {}
    for g, gp in enumerate(G):
        for t in gp.m.need: lastuse[t] = g; firstuse.setdefault(t, g)
    blocks = sorted(T.qk, key=lambda k: T.qk[k])
    el = [(u, b, e) for (u, b) in blocks for e in range(8)]
    Dq = []
    for i in range(1, NSIM + 1):
        base = (i - 1) * NB
        rd = vt_reads(i + 1) + kt_reads(i + 2)
        for j, x in enumerate(rd):
            old = (x.w[0], x.w[1] - 2) + x.w[2:]
            dflt = base + 1 if x.w[0] == "V" else T.qk[(2 * i + 2, 3)] + j - 32
            x.rel = max(base + 1, lastuse.get(old, dflt))
            x.dead = min(firstuse.get(x.w, 1 << 30) - cfg.lat - 1, base + NB - 16)
            x.last = None
        rd[31].last = "V"; rd[47].last = "K"
        Dq += rd
    for j in range(len(Dq) - 2, -1, -1): Dq[j].dead = min(Dq[j].dead, Dq[j + 1].dead - 1)
    at = {}
    pE = 0; Aq = []; Cq = []; Xq = []; pD = 0
    def readyX(g):
        out = []
        if Cq:
            u, b, k = Cq[0]
            okA = (b in Z) or all((u, b, "A", e) in at for e in range(k + 1))
            if at.get((u, b, "E", 2 * k + 1), 1 << 30) < g and okA: out.append("C")
        if Xq and Xq[0][0] <= g: out.append("X")
        if Aq and at[Aq[0][:2] + ("E", Aq[0][2])] < g: out.append("A")
        return out
    def takeX(kind, g):
        if kind == "C": u, b, k = Cq.pop(0); x = sm_ins("C", u, b, k)
        elif kind == "A": u, b, e = Aq.pop(0); x = sm_ins("A", u, b, e)
        else: return Xq.pop(0)[1]
        at[x.key] = g
        return x
    prevE = False
    for g, gp in enumerate(G):
        if gp.closed: prevE = False; continue
        eok = False
        if pE < len(el):
            u, b, e = el[pE]
            eok = g >= T.qk[(u, b)] + (3 if e < 4 else 7) + 4
        nD = sum(1 for j in (pD, pD + 1) if j < len(Dq) and Dq[j].rel <= g)
        backlog = len(Aq) + len(Cq) + len([1 for x in Xq if x[0] <= g])
        urgent = nD and Dq[pD].dead <= g
        prevD = g > 0 and any(x.k == "ds" for x in G[g - 1].mem)
        have4 = (0 if (prevD and not urgent) else nD) + backlog
        if eok and not urgent and (have4 < 2 or not prevE):
            x = sm_ins("E", u, b, e); at[x.key] = g; gp.valu.append(x); pE += 1
            if b not in Z: Aq.append((u, b, e))
            if e & 1: Cq.append((u, b, e // 2))
            prevE = True
            continue
        prevE = False
        slots = 2
        while slots:
            rx = readyX(g)
            dok = pD < len(Dq) and Dq[pD].rel <= g and not gp.valu
            backlog = len(Aq) + len(Cq) + len(Xq)
            urg2 = dok and Dq[pD].dead <= g + 2
            if dok and (urg2 or not rx or (slots == 2 and backlog <= cfg.bl2) or (slots == 1 and backlog <= cfg.bl1)):
                x = Dq[pD]; pD += 1; gp.mem.append(x); x.at = g
                if x.last == "K": Xq.append((g + 1, I("v_add_u32 v%d, s%d, v%d" % (vK, sB, vKl))))
                if x.last == "V": Xq.append((g + 1, I("v_add_u32 v%d, s%d, v%d" % (vV, sA, vVl))))
            elif rx: gp.valu.append(takeX(rx[0], g))
            else: break
            slots -= 1
    ref = NSIM - 2
    add_waits(cfg, G, {x.w for x in vt_reads(1) + kt_reads(2)})
    body = G[(ref - 1) * NB:ref * NB]
    prev = G[(ref - 2) * NB:(ref - 1) * NB]
    costs = [gp.cost() for gp in body]
    sys.stderr.write("gap costs: %s\n           %s\n est cycles/tile %d\n" % ("".join("%x" % min(15, c // 4) for c in costs),
        "".join("E" if gp.valu and gp.valu[0].k == "trans" else ("m" if gp.mem and gp.mem[0].k == "dma" else str(len(gp.mem))) for gp in body), sum(8 + max(8, c) for c in costs)))
    assert [x.text() for x in body] == [x.text() for x in prev], "schedule not periodic"
    slack = 999
    for g, gp in enumerate(G[:NB * (NSIM - 1)]):
        if hasattr(gp.m, "pneed") and gp.m.pneed in T.qk:
            u, b = gp.m.pneed
            slack = min(slack, g - 1 - at[(u, b, "C", 3)])
    sys.stderr.write("P slack %d\n" % slack)
    assert slack > 0, "P late"
    for (u, b), g in T.qk.items():
        if (u - 2, b) in T.qk and b not in Z and g < NB * (NSIM - 1): assert at[(u - 2, b, "A", 7)] < g
    va = [g for g, gp in enumerate(body) for x in gp.valu if x.t.startswith("v_add_u32")]
    assert len(va) == 2 and max(va) < NB - 12, va
    u0 = 2 * (ref + 1)
    entry = (ref - 1) * NB
    pendset = {(x.key[0] - u0,) + x.key[1:] for gp in G[entry:] for x in gp.valu if hasattr(x, "key") and T.qk[x.key[:2]] < entry}
    sys.stderr.write("pending blocks: %s\n" % sorted({k[:2] for k in pendset}))
    if cfg.stamps and cfg.stamps != 5:
        body[NB - 4].valu.append(I("v_cmp_eq_u32 vcc, s%d, v%d" % (sIt, vLane)))
        for t in ("v_mov_b32 v%d, s50" % vX[0], "v_mov_b32 v%d, s52" % vX[1], "v_cndmask_b32 v%d, v%d, v%d, vcc" % (vStLo, vStLo, vX[0]),
                  "v_cndmask_b32 v%d, v%d, v%d, vcc" % (vStRt, vStRt, vX[1])): body[NB - 2].valu.append(I(t))
    if cfg.tail == 99: return ""

    def pour2(G, streams, at):
        g = 0
        dead = [next((x.dead for x in st_ if hasattr(x, "dead")), None) for st_ in streams]
        def rem(i):
            c = 0
            for x in streams[i]:
                c += x.c
                if hasattr(x, "dead"): return c
            return 0
        while any(streams):
            if g >= len(G): G.append(Gap(None))
            gp = G[g]
            while True:
                ready = [i for i, st_ in enumerate(streams) if st_ and st_[0].lo(at) <= g]
                if not ready: break
                need = {}
                for i in ready:
                    if dead[i] is not None and rem(i):
                        assert dead[i] >= g, "deadline missed"
                        w = sum(rem(j) for j in range(len(streams)) if dead[j] is not None and dead[j] <= dead[i])
                        need[i] = w / float(dead[i] - g - 1) if dead[i] - g - 1 >= 1 else 999
                vc = sum(x.c for x in gp.valu if hasattr(x, "key") and len(x.key) == 4)
                urgent = [i for i in sorted(need, key=lambda i: dead[i]) if need[i] >= cfg.urg and vc < need[i]]
                pick = None
                if urgent: pick = urgent[0]
                elif gp.cost() < (8 if gp.m else 16): pick = ready[0]
                else:
                    ep = [i for i in ready if dead[i] is None]
                    if ep and gp.cost() < cfg.elevel: pick = ep[0]
                if pick is None: break
                if getattr(streams[pick][0], "burst", False) and gp.cost() < 16:
                    oth = [i for i in ready if i != pick and not getattr(streams[i][0], "burst", False)]
                    if oth: pick = oth[0]
                x = streams[pick].pop(0)
                gp.valu.append(x)
                if hasattr(x, "key"): at[x.key] = g
                if hasattr(x, "after"): x.after(g)
            g += 1

    def sm_queue(u, b, qk, pv, skip=lambda k: False):
        out = []
        seq = []
        for j in range(6):
            for h in range(2):
                if j < 4: seq.append(("E", 2 * j + h))
                if j >= 1 and j <= 4 and b not in Z: seq.append(("A", 2 * (j - 1) + h))
            if 1 <= j <= 4: seq.append(("C", j - 1))
        for kind, e in seq:
            if skip((b, kind, e)): continue
            x = sm_ins(kind, u, b, e)
            if kind == "E":
                rel = qk[(u, b)] + (3 if e < 4 else 7) + 3 if (u, b) in qk else 0
                x.lo = lambda at, rel=rel: rel
            elif kind == "A": x.lo = lambda at, k=(u, b, "E", e): at.get(k, -9) + 1
            else:
                x.lo = lambda at, k=(u, b, "E", 2 * e + 1): at.get(k, -9) + 1
                if e == 3 and (u, b) in pv: x.dead = pv[(u, b)] - 2
            out.append(x)
        return out

    def make_first():
        out = []
        for gp in body:
            n = Gap(gp.m); n.salu = [x for x in gp.salu if not (x.k == "wait" and "lgkm" in x.t)]
            n.valu = list(gp.valu); n.mem = [x for x in gp.mem if x.k != "ds"]
            out.append(n)
        if cfg.dmag0 != cfg.dmag:
            dm = [x for n in out for x in n.mem]
            mv = {}
            for n in out:
                n.mem = []
                for x in list(n.salu):
                    if x.t.startswith("s_add_u32 m0, m0"): mv["mV"] = x; n.salu.remove(x)
                    elif x.t.startswith("s_add_u32 m0, s"): mv["mK"] = x; n.salu.remove(x)
                    elif x.t.startswith("s_add_u32 s%d, s%d, 16384" % (sOff, sOff)): mv["off"] = x; n.salu.remove(x)
            for x, g in zip(dm, cfg.dmag0): out[g].mem.append(x)
            assert cfg.dmag0[3] + 1 < cfg.dmag0[4] - 1 < NB - 13
            out[cfg.dmag0[0] - 1].salu.append(mv["mV"]); out[cfg.dmag0[3] + 1].salu.append(mv["off"]); out[cfg.dmag0[4] - 1].salu.append(mv["mK"])
        if cfg.clus:
            import re as _re
            def rs(x): return set(sum((CK.regs(t) for t in _re.findall(r"v\[\d+:\d+\]|v\d+", x.t)), []))
            g = 1; n = 0; acc = 0
            while g < NB - 6:
                a_, b_ = out[g], out[g + 1]
                ok = a_.valu and b_.valu and not a_.mem and not b_.mem and \
                     not (set().union(*[rs(x) for x in a_.valu if x.k == "trans"] or [set()]) & set().union(*[rs(x) for x in b_.valu]))
                if ok:
                    acc += cfg.clus
                    if acc >= 100:
                        acc -= 100
                        b_.valu = a_.valu + b_.valu; a_.valu = []; n += 1
                    g += 2
                else: g += 1
            sys.stderr.write("clustered pairs: %d\n" % n)
        addr = {}
        for g, gp in enumerate(out):
            for x in gp.valu:
                if x.t.startswith("v_add_u32 v%d," % vK): addr["K"] = g
                if x.t.startswith("v_add_u32 v%d," % vV): addr["V"] = g
        use = {}
        for g, gp in enumerate(body):
            for t in gp.m.need: use.setdefault(t, g)
        moved = []; lastg = 0
        for g, gp in enumerate(body):
            for x in gp.mem:
                if x.k != "ds": continue
                h0 = h = max(g, lastg)
                assert x.w[0] == "V" or h > cfg.kgap
                if cfg.lazy:
                    lim = use[x.w] - 4
                    while h <= lim and (not out[h].valu or out[h].mem): h += 1
                    if h > lim:
                        h = h0
                        while out[h].mem and out[h].mem[0].k != "ds": h += 1
                while out[h].mem and out[h].mem[0].k != "ds": h += 1
                out[h].mem.append(x); lastg = h
                if x.last: moved.append((x.last, h))
        for kind, h in moved:
            g = addr[kind]
            if g <= h:
                y = [x for x in out[g].valu if x.t.startswith("v_add_u32 v%d," % (vK if kind == "K" else vV))][0]
                out[g].valu.remove(y); out[h + 1].valu.append(y)
                assert h + 1 < NB - 12
        if cfg.kgap:
            out[0].salu[0] = I("s_waitcnt vmcnt(12)", 4, "wait")
            nk = sum(1 for g in cfg.dmag0 if g < cfg.kgap)
            out[cfg.kgap].salu += [I("s_waitcnt vmcnt(%d)" % (8 + nk), 4, "wait"), I("s_barrier", 12, "bar")]
        c2 = Cfg(); c2.lat = 2
        add_waits(c2, out, {x.w for x in vt_reads(ref) + kt_reads(ref + 1)})
        return out

    p0 = len(L)
    KOV.update({0: 128, 1: 160}); VOV.update({0: 192, 1: 224})
    W0 = "s_waitcnt lgkmcnt(0)"
    def q_read(b): return ["ds_read_b128 %s, v%d offset:%d" % (vr(O(b, s), 4), vQrd, SLOT * b + 16 * s) for s in range(4)]
    def q_scale(b):
        out = []; raw = O(b, 0); tmp = O(b, 4)
        for h in range(2):
            for r in range(8):
                out.append("v_lshlrev_b32 v%d, 16, v%d" % (tmp + 2 * r, raw + 8 * h + r))
                out.append("v_and_b32 v%d, 0xffff0000, v%d" % (tmp + 2 * r + 1, raw + 8 * h + r))
            for r in range(8): out.append("v_pk_mul_f32 %s, %s, s[%d:%d]" % (vr(tmp + 2 * r, 2), vr(tmp + 2 * r, 2), sC, sC + 1))
            for r in range(8): out.append("v_cvt_pk_bf16_f32 v%d, v%d, v%d" % (raw + 8 * h + r, tmp + 2 * r, tmp + 2 * r + 1))
            for r in range(8): out.append("v_accvgpr_write_b32 a%d, v%d" % (Qa(b, 0) + 8 * h + r, raw + 8 * h + r))
        return out
    def grab(fn, *a):
        k = len(L); fn(*a); out = [t for t in L[k:] if t != "s_nop 0"]; del L[k:]
        return out
    def mix(ms, fill=(), lead=0, mem=()):
        fill = list(fill); n = len(ms) - lead; k = 0; mem = list(mem); km = 0
        for j, m in enumerate(ms):
            A(m.t)
            em = (len(mem) * (j + 1)) // len(ms)
            L.extend(mem[km:em]); km = em
            if j >= lead:
                e = (len(fill) * (j - lead + 1)) // n
                L.extend(fill[k:e]); k = e
    def qk(u, b): return [mfma_qk(u, b, kb2, s, u < 2) for kb2 in range(2) for s in range(4)]
    def pv(u, b): return [mfma_pv(u, b, D, u == 0) for D in range(8)] + ([mfma_sum(u, b, u == 0)] if b in Z else [])
    def pv2(u, b): return [m for pair in zip(pv(u, b), pv(u + 1, b)) for m in pair]
    def sm(u, b): return sm_plain(u, b, b not in Z, u < 2, {k[1:] for k in pendset if k[0] + 4 == u})
    def rowmax(b):
        s0, s1 = S(0, b), S(1, b)
        v = [s0 + e for e in range(8)] + [s1 + e for e in range(8)]
        out = ["v_max3_f32 v%d, v%d, v%d, v%d" % (t0, v[0], v[1], v[2])]
        for e in range(3, 15, 2): out.append("v_max3_f32 v%d, v%d, v%d, v%d" % (t0, t0, v[e], v[e + 1]))
        out.append("v_max_f32 v%d, v%d, v%d" % (t0, t0, v[15]))
        out += xlane("v_max_f32", t0, t1)
        return out + ["v_sub_f32 v%d, 0, v%d" % (N(b) + r, t0) for r in range(4)]
    def ev(name, reads, unlock=None):
        d = wait_for(name)
        if unlock: st["max"] = order.index(unlock) if unlock in order else len(order)
        L.extend(reads[:16]); top_up(d); L.extend(reads[16:])
    def tx(xs): return [x.t for x in xs]
    ev("Q0", q_read(0))
    L += stamp(cfg, 3)
    A(W0); L += q_scale(0)
    ev("K0", tx(kt_reads(0, vKl, 0)), "K3")
    A("s_waitcnt lgkmcnt(8)"); mix(qk(0, 0)); A(W0); mix(qk(1, 0))
    L += rowmax(0) + sm(0, 0) + sm(1, 0)
    ev("V0", tx(vt_reads(0, vVl, SLOT)))
    A(W0); mix(pv2(0, 0))
    ev("Q1", q_read(1))
    A(W0); L += q_scale(1); mix(qk(0, 1) + qk(1, 1)); L += rowmax(1) + sm(0, 1); mix(pv(0, 1), sm(1, 1))
    ev("Q2", q_read(2))
    mix(pv(1, 1))
    A(W0); L += q_scale(2); mix(qk(0, 2) + qk(1, 2)); L += rowmax(2) + sm(0, 2); mix(pv(0, 2), sm(1, 2))
    if cfg.dense & 4:
        d = wait_for("K1"); st["max"] = len(order)
        mix(pv(1, 2), mem=tx(kt_reads(1, vKl, STAGE)))
        A("s_waitcnt lgkmcnt(8)"); mix(qk(2, 0), mem=grab(top_up, d)); A(W0)
    else:
        ev("K1", tx(kt_reads(1, vKl, STAGE)), "end")
        mix(pv(1, 2))
        A("s_waitcnt lgkmcnt(8)"); mix(qk(2, 0)); A(W0)
    mix(qk(3, 0) + qk(2, 1) + qk(3, 1), sm(2, 0) + sm(3, 0), 2)
    mix(qk(2, 2) + qk(3, 2), sm(2, 1) + sm(3, 1))
    ev("Q3", q_read(3))
    L += sm(2, 2)
    A(W0); L += q_scale(3); mix(qk(0, 3) + qk(1, 3), sm(3, 2)); L += rowmax(3) + sm(0, 3)
    mix(pv(0, 3), sm(1, 3))
    if cfg.dense & 2:
        d = wait_for("V1")
        mix(pv(1, 3) + qk(2, 3), mem=tx(vt_reads(1, vVl, STAGE + SLOT)))
        mix(qk(3, 3), mem=grab(top_up, d))
    else:
        ev("V1", tx(vt_reads(1, vVl, STAGE + SLOT)))
        mix(pv(1, 3)); mix(qk(2, 3) + qk(3, 3))
    A(W0)
    mix(pv2(2, 0), sm(2, 3))
    ev("K2", tx(kt_reads(2)))
    A("v_add_u32 v%d, %d, v%d" % (vK, 3 * STAGE, vKl))
    if cfg.loose >= 2: L += sm(3, 3); mix(pv2(2, 1))
    else: mix(pv2(2, 1), sm(3, 3))
    A(W0)
    if cfg.loose:
        mix(qk(4, 0) + qk(5, 0)); L += sm(4, 0); mix(pv2(2, 2)); L += sm(5, 0)
        top_up(99)
        mix(qk(4, 1) + qk(5, 1)); L += sm(4, 1) + sm(5, 1)
    else:
        mix(qk(4, 0))
        mix(qk(5, 0) + pv2(2, 2) + qk(4, 1), sm(4, 0) + sm(5, 0), 2, mem=grab(top_up, 99) if cfg.dense & 1 else [])
        top_up(99)
        mix(qk(5, 1), sm(4, 1), 2)
        L += sm(5, 1)
    assert st["n"] == len(order)
    L += stamp(cfg, 4)
    if cfg.stamps: A(W0)
    A("s_nop 1")
    fixed, nfix = CK.fix(L[p0:], True)
    L[p0:] = fixed
    sys.stderr.write("start: %d lines, %d nops added\n" % (len(fixed), nfix))
    KOV.clear(); VOV.clear()
    def emit_loop(label, gaps, lazy, last_i):
        A(label + ":")
        k = len(L)
        for gp in gaps:
            for t in gp.text(lazy):
                A(t.replace("LIMIT", str((last_i + 4) * 16384)).replace("LOOP", label))
        L[k:] = CK.fix(L[k:], True)[0]
    if cfg.ramp: emit_loop("L_loop0", make_first(), cfg.lazy, cfg.ramp)
    if cfg.stamps == 5: L += xstamp(cfg)
    if cfg.align: A(".p2align %d" % cfg.align)
    emit_loop("L_loop", body, False, 13)

    VOV.update({30: 192, 31: 224})
    E = TL()
    orders = [
        "Pa Q2 P0 Q3 P1 P2 P3 | s1 s2 e0 s3 e1 e2 e3",
        "Pa P0 Q2 P1 Q3 P2 P3 | s1 e0 s2 e1 s3 e2 e3",
        "Q2 P0 Pa Q3 P1 P2 P3 | s1 s2 e0 s3 e1 e2 e3",
        "Pa Q2 P0 P1 Q3 P2 P3 | s1 s2 e0 e1 s3 e2 e3",
        "Q2 P0 Pa P1 Q3 P2 P3 | s1 e0 s2 e1 s3 e2 e3",
        "Pa P0 Q2 Q3 P1 P2 P3 | s1 e0 s2 s3 e1 e2 e3",
        "Q2 P0 P1 Q3 P2 Pa P3 | s1 e0 s2 e1 e2 s3 e3",
        "Q2 P0 Q3 P1 P2 Pa P3 | s1 e0 s2 e1 e2 s3 e3",
        "Q2 P0 P1 Q3 P2 Pa P3 | s1 e0 s2 e1 s3 e2 e3",
        "Q2 P0 Q3 P1 P2 Pa P3 | s1 s2 e0 e1 s3 e2 e3",
        "Q2 P0 P1 P2 Q3 Pa P3 | s1 s2 e0 e1 e2 s3 e3",
    ]
    mo, vo = [x.split() for x in orders[cfg.tail].split("|")]
    if mo.index("Pa") > mo.index("Q3"):
        assert mo.index("P0") < mo.index("Q3")
        SOV.update({(30, 3): S(0, 0), (31, 3): S(1, 0)})
    for w in mo:
        if w == "Pa": E.pvt(14, 3)
        elif w[0] == "Q": E.qkt(15, int(w[1]))
        else: E.pvt(15, int(w[1]))
    done_at = E.done
    G = E.G
    nm = len(G)
    G[0].salu.append(I("s_waitcnt vmcnt(0)", 4, "wait")); G[0].salu.append(I("s_barrier", 12, "bar"))
    need0 = E.pv[(30, 0)]
    span = max(16, min(32, need0 + 8))
    for j, x in enumerate(vt_reads(15)): G[1 + (j * span) // 32].mem.append(x)
    def side(g, x):
        while True:
            while g >= len(G): G.append(Gap(None))
            kinds = {y.k == "st" for y in G[g].mem}
            if G[g].m and kinds and kinds != {x.k == "st"} and x.k == "st": g += 1
            else: break
        G[g].mem.append(x)
    q = []
    for w in vo:
        b = int(w[1])
        if w[0] == "s":
            for u in (30, 31):
                q.append(sm_queue(u, b, E.qk, E.pv, skip=(lambda k, u=u: (u - 30,) + k not in pendset) if b < 2 else (lambda k: False)))
        else:
            pvg = E.pv[(31, b)]
            inv = epi_inv(cfg, b, b in Z)
            ks = [(uu, b, "A", 7) for uu in (30, 31) if b >= 2 or (uu - 30, b, "A", 7) in pendset]
            for x in inv: x.lo = (lambda at, r=done_at[(b, 8)] + 3: r) if b in Z else (lambda at, r=pvg - 4, ks=ks: max([r] + [at.get(k, 999) + 1 for k in ks]))
            inv[-1].key = ("inv", b)
            q.append(list(inv))
            prog = (w == vo[-1])
            if not prog:
                pk = I("\n".join(x.t for D in range(8) for x in epi_conv(b, D, True)[:2]), 64)
                pk.lo = lambda at, r=done_at[(b, 7)] + 3, k=("inv", b): max(r, at[k] + 1)
                pk.burst = True
                q[-1].append(pk)
            for D in range(8):
                pk_ = prog and D >= cfg.progpk
                cv = epi_conv(b, D, pk_)
                if not prog: cv = cv[4:]
                rel = max(min(done_at[(b, D)] + 3, nm + 1), nm + 1 if pk_ else 0)
                for x in cv: x.lo = lambda at, r=rel, k=("inv", b): max(r, at[k] + 1)
                def aft(g, b=b, D=D, prog=prog):
                    side(g + 1, epi_write(b, D))
                    if D == 7:
                        for j in range(4): side(g + 1 + (j + 1) // 2, epi_read(b, j))
                        for j in range(4): side(g + 9 + (1 if prog else cfg.stsp) * j, epi_store(cfg, b, j))
                cv[-1].after = aft
                q[-1] += cv
    assert {k[:2] for k in pendset} <= {(0, 1), (1, 1)}
    at2 = {}
    pour2(G, q, at2)
    add_waits(cfg, G, {x.w for x in vt_reads(14) + kt_reads(15)})
    sys.stderr.write("tail costs: %s  est %d\n" % ("".join("%x" % min(15, gp.cost() // 4) if gp.m else "(%x)" % (gp.cost() // 4) for gp in G),
                      sum(8 + max(8, gp.cost()) if gp.m else gp.cost() for gp in G)))
    sys.stderr.write("stores at gaps: %s of %d/%d\n" % ([g for g, gp in enumerate(G) for x in gp.mem if x.k == "st"][::4], nm, len(G)))
    if cfg.stamps == 4:
        sys.stderr.write("est segs: %s\n" % [sum(8 + max(8, gp.cost()) if gp.m else gp.cost() for gp in G[a_:b_]) for a_, b_ in zip(cfg.tst, cfg.tst[1:])])
    A("; ---- last tile, block by block, with the epilogue woven in ----")
    p1 = len(L)
    for g, gp in enumerate(G):
        if cfg.stamps == 5 and g == 0: L += xstamp(cfg)
        if cfg.stamps == 4 and g in cfg.tst: L += xstamp(cfg)
        if g == nm:
            L += stamp(cfg, 5)
            if cfg.stamps: A("s_waitcnt lgkmcnt(0)")
            A("s_nop 3")
        for t in "\n".join(gp.text()).split("\n"):
            if not t: continue
            pv_ = L[-1]
            if pv_.startswith("v_rcp_f32") or (pv_.startswith("v_exp_f32") and not gp.m): A("s_nop 0")
            A(t)
    L[p1:] = CK.fix(L[p1:], True)[0]
    ls = [Lz(b) if b in Z else vL[b] for b in range(4)]
    L += ["v_add_f32 v%d, v%d, v%d" % (t0, ls[0], ls[1]), "v_add_f32 v%d, v%d, v%d" % (t1, ls[2], ls[3]), "v_add_f32 v%d, v%d, v%d" % (t0, t0, t1),
          "v_cmp_nge_f32 vcc, s%d, v%d" % (sThr, t0), "s_cbranch_vccnz L_fallback"]
    if cfg.stamps:
        A("s_waitcnt vmcnt(0)")
        L += stamp(cfg, 6) + stamp(cfg, 1)
        A("s_waitcnt lgkmcnt(0)")
        A("s_lshl_b32 s%d, s2, 2" % sTmp)
        A("s_add_u32 s%d, s%d, s%d" % (sTmp, sTmp, sW))
        A("s_lshl_b32 s%d, s%d, 8" % (sTmp, sTmp))
        A("v_mov_b32 v%d, s%d" % (t0, sTmp))
        for kk in range(7):
            A("v_mov_b32 v%d, s%d" % (t2, sStamp + 2 * kk))
            A("v_mov_b32 v%d, s%d" % (t3, sStamp + 2 * kk + 1))
            A("global_store_dwordx2 v%d, v[%d:%d], s[44:45] offset:%d" % (t0, t2, t3, 8 * kk))
            A("s_nop 1")
        for kk in range(XS[0]):
            A("v_mov_b32 v%d, s%d" % (t2, 72 + 2 * kk))
            A("v_mov_b32 v%d, s%d" % (t3, 72 + 2 * kk + 1))
            A("global_store_dwordx2 v%d, v[%d:%d], s[44:45] offset:%d" % (t0, t2, t3, 192 + 8 * kk))
            A("s_nop 1")
        A("v_lshl_add_u32 v%d, v%d, 3, v%d" % (t0, vLane, t0))
        A("v_cmp_gt_u32 vcc, 16, v%d" % vLane)
        A("s_and_saveexec_b64 s[48:49], vcc")
        A("global_store_dwordx2 v%d, v[%d:%d], s[44:45] offset:64" % (t0, vStLo, vStRt))
    A("L_end:")
    A("s_endpgm")
    L += fallback(cfg)
    A('.section .rodata,"a"'); A(".p2align 6")
    A(".amdhsa_kernel %s_kernel" % NAME)
    A("  .amdhsa_next_free_vgpr 512"); A("  .amdhsa_next_free_sgpr 102"); A("  .amdhsa_accum_offset 256")
    A("  .amdhsa_group_segment_fixed_size 0"); A("  .amdhsa_kernarg_size 48"); A("  .amdhsa_user_sgpr_count 2")
    A("  .amdhsa_user_sgpr_kernarg_segment_ptr 1"); A("  .amdhsa_system_sgpr_workgroup_id_x 1")
    A(".end_amdhsa_kernel")
    return "\n".join(L) + "\n"

if __name__ == "__main__":
    ap = argparse.ArgumentParser()
    ap.add_argument("-o", default="cdna_kernels/%s.s" % NAME)
    ap.add_argument("opts", nargs="*")
    a = ap.parse_args()
    cfg = Cfg()
    for o in a.opts:
        k, v = o.split("=")
        cur = getattr(cfg, k)
        if isinstance(cur, str): v = (" " + v.replace("+", " ")) if v else ""
        elif isinstance(cur, tuple): v = tuple(int(x) for x in v.split(",")) if v else ()
        elif isinstance(cur, float): v = float(v)
        else: v = int(v)
        setattr(cfg, k, v)
    open(a.o, "w").write(build(cfg))
```

```python
import sys, struct, argparse
import check as CK

NAME = "standalone__gqa_softmax__near_ridge"
SLOT = 16640
BLK = 1040
STAGE = 2 * SLOT
LDS_BYTES = 9 * SLOT
OPITCH = 272
OREG = 64 * OPITCH

def f2u(x): return struct.unpack("<I", struct.pack("<f", x))[0]

class Cfg:
    stamps = 0
    ld_pol = " nt"
    st_pol = " sc0 sc1"
    thresh = 2.0 ** 60
    dmag = (10, 22, 34, 46, 58, 70, 82, 94)
    dmag0 = (46, 58, 70, 82, 93, 101, 109, 117)
    lat = 6
    pf = 17
    align = 5
    zset = (0, 2)
    ramp = 2
    lazy = 1
    clus = 0
    kgap = 0
    wins = (2,)
    order = " Q0 K0 V0 Q1 Q2 K1 Q3 V1 K2 V2 K3 V3 K4"
    tail = 7
    urg = 6.0
    elevel = 20
    stsp = 4
    progpk = 6
    xs = " K0 V0 Q1"
    tst = (0, 13, 23, 40, 78, 90, 100, 110)
    dist = 2
    loose = 0
    dense = 1
    snake = 0
    bl2 = 3
    bl1 = 1

class I:
    def __init__(self, t, c=4, k="valu", w=None, need=None):
        self.t = t; self.c = c; self.k = k; self.w = w; self.need = need or []

def O(b, D): return 128 + 32 * b + 4 * D
def N(b): return 96 + 4 * b
def Qa(b, s): return 16 * b + 4 * s
KOV, VOV, SOV, POV = {}, {}, {}, {}
def Ka(u, kb2, s): return KOV.get(u, 64 + 32 * (u & 1)) + 16 * kb2 + 4 * s
def Va(u, D): return VOV.get(u, 128 + 32 * (u & 1)) + 4 * D
def S(u, b): return SOV.get((u, b), (44, 52, 112, 120)[b] if u & 1 else 64 + 8 * b)
def Pr(u, b): return POV.get((u, b), S(u, b))
vLane = 1
vK, vKl, vV, vVl = 2, 3, 4, 5
vDma = (6, 7, 8, 9)
vL = (10, 11, 12, 13)
vQrd, vOw, vOr = 14, 15, 16
vInv = (18, 20, 22, 24)
vT = (26, 27, 28, 29)
vStLo, vStRt = 30, 31
vOnes = 32
ZL = []
def Lz(b): return 36 + 4 * ZL.index(b)
vX = (17, 19)
vQd = (60, 61, 62, 63)
sW = 3
sSrdQ, sSrdK, sSrdV, sSrdO = 8, 12, 16, 20
sC, sThr, sWoff, sOff, sCur, sPrev = 24, 26, 27, 28, 29, 30
sOreg = 31
sK16 = (None, 32, 33, 34)
sPrev2 = 35
sTmp = 36
sWslot = 46
sIt = 47
sStamp = 56
sP, sK4 = 54, 55
sA, sB, sD = 29, 30, 35

def vr(a, n): return "v[%d:%d]" % (a, a + n - 1)
def ar(a, n): return "a[%d:%d]" % (a, a + n - 1)
def srd(a): return "s[%d:%d]" % (a, a + 3)
MF = "v_mfma_f32_16x16x32_bf16"

SNAKE = [0]
def mfma_qk(u, b, kb2, s, zero=False):
    d = vr(S(u, b) + 4 * kb2, 4)
    c = d if s else ("0" if zero else vr(N(b), 4))
    if SNAKE[0] and kb2: s = 3 - s
    return I("%s %s, %s, %s, %s" % (MF, d, ar(Ka(u, kb2, s), 4), ar(Qa(b, s), 4), c), 8, "mfma", need=[("K", u, kb2, s)])

def mfma_pv(u, b, D, zero=False):
    d = vr(O(b, D), 4)
    x = I("%s %s, %s, %s, %s" % (MF, d, ar(Va(u, D), 4), vr(Pr(u, b), 4), "0" if zero else d), 8, "mfma", need=[("V", u, D, 0), ("V", u, D, 1)])
    x.pneed = (u, b)
    return x

def mfma_sum(u, b, zero=False):
    d = vr(Lz(b), 4)
    x = I("%s %s, %s, %s, %s" % (MF, d, vr(vOnes, 4), vr(Pr(u, b), 4), "0" if zero else d), 8, "mfma")
    x.pneed = (u, b)
    return x

def k_reads(u, areg=vK, base=0):
    return [I("ds_read_b128 %s, v%d offset:%d" % (ar(Ka(u, kb2, s), 4), areg, base + 256 * (2 * (u & 1) + kb2) + 16 * s), 4, "ds", w=("K", u, kb2, s))
            for kb2 in range(2) for s in (range(3, -1, -1) if SNAKE[0] and kb2 else range(4))]

def v_reads(u, areg=vV, base=SLOT):
    return [I("ds_read_b64_tr_b16 %s, v%d offset:%d" % (ar(Va(u, D) + 2 * e, 2), areg, base + 256 * (2 * (u & 1) + e) + 16 * D), 4, "ds", w=("V", u, D, e))
            for D in range(8) for e in range(2)]

def dma_ins(cfg, srdreg, j, soff, regs=vDma):
    return I("buffer_load_dwordx4 v%d, %s, %s offen offset:%d%s lds" % (regs[j], srd(srdreg), soff, BLK * j, cfg.ld_pol), 8, "dma")

def sm_ins(kind, u, b, e):
    s = S(u, b)
    if kind == "F": x = I("v_add_f32 v%d, v%d, v%d" % (s + e, s + e, N(b)), 4)
    elif kind == "E": x = I("v_exp_f32 v%d, v%d" % (s + e, s + e), 8, "trans")
    elif kind == "A": x = I("v_add_f32 v%d, v%d, v%d" % (vL[b], vL[b], s + e), 4)
    else: x = I("v_cvt_pk_bf16_f32 v%d, v%d, v%d" % (Pr(u, b) + e, s + 2 * e, s + 2 * e + 1), 4)
    x.key = (u, b, kind, e)
    return x

def sm_plain(u, b, adds, withF=True, skip=()):
    out = []
    for j in range(6):
        for h in range(2):
            if j < 4 and withF: out.append(sm_ins("F", u, b, 2 * j + h))
            if 1 <= j <= 4: out.append(sm_ins("E", u, b, 2 * (j - 1) + h))
            if j >= 2 and adds: out.append(sm_ins("A", u, b, 2 * (j - 2) + h))
        if j >= 2: out.append(sm_ins("C", u, b, j - 2))
    return [x.t for x in out if x.key[1:] not in skip]

def xlane(op, r, t):
    return ["v_mov_b32 v%d, v%d" % (t, r), "s_nop 1", "v_permlane32_swap_b32 v%d, v%d" % (r, t), "%s v%d, v%d, v%d" % (op, r, r, t),
            "v_mov_b32 v%d, v%d" % (t, r), "s_nop 1", "v_permlane16_swap_b32 v%d, v%d" % (r, t), "%s v%d, v%d, v%d" % (op, r, r, t)]

def max_chain(u, b, dst, t):
    s = S(u, b)
    out = ["v_max3_f32 v%d, v%d, v%d, v%d" % (dst, s, s + 1, s + 2), "v_max3_f32 v%d, v%d, v%d, v%d" % (dst, dst, s + 3, s + 4),
           "v_max3_f32 v%d, v%d, v%d, v%d" % (dst, dst, s + 5, s + 6), "v_max_f32 v%d, v%d, v%d" % (dst, dst, s + 7)]
    return out + xlane("v_max_f32", dst, t)

class Gap:
    def __init__(self, m):
        self.m = m; self.salu = []; self.mem = []; self.valu = []; self.closed = False
    def cost(self):
        c = 0
        for i, x in enumerate(self.salu): c += x.c - (4 if i == 0 and self.m else 0)
        return c + sum(x.c for x in self.mem) + sum(x.c for x in self.valu)
    def text(self, lazy=False):
        body = self.salu + (self.valu + self.mem if lazy else self.mem + self.valu)
        return ([self.m.t] if self.m else []) + [x.t for x in body]

def add_waits(cfg, gaps, have):
    issued = []; covered = -1; idx = {}
    for g, gp in enumerate(gaps):
        for x in gp.salu:
            if x.k == "wait0": covered = len(issued) - 1
        nd = []
        if g + 1 < len(gaps) and gaps[g + 1].m: nd += gaps[g + 1].m.need
        for x in gp.mem: nd += x.need
        missing = [t for t in nd if t not in idx and t not in have]
        if missing: raise SystemExit("read not issued before use: %s gap %d" % (missing, g + 1))
        need = [idx[t] for t in nd if t in idx]
        if need and max(need) > covered:
            tgt = max(need)
            if issued[tgt][1] > g - cfg.lat: sys.stderr.write("warn: short ds latency at gap %d (issued %d)\n" % (g, issued[tgt][1]))
            for j in range(len(issued)):
                if issued[j][1] <= g - cfg.lat: tgt = max(tgt, j)
            n = min(15, len(issued) - 1 - tgt)
            gp.salu.insert(0, I("s_waitcnt lgkmcnt(%d)" % n, 4, "wait"))
            covered = len(issued) - 1 - n
        for x in gp.mem:
            if x.k in ("ds", "dsw"): idx[x.w] = len(issued); issued.append((x.w, g))

def epi_inv(cfg, b, z):
    if z: return [I("v_rcp_f32 v%d, v%d" % (vInv[b], Lz(b)), 8, "trans")]
    out = [I(t, 8 if t.startswith("s_nop") else 4) for t in xlane("v_add_f32", vL[b], vInv[b])]
    return out + [I("v_rcp_f32 v%d, v%d" % (vInv[b], vL[b]), 8, "trans")]

def epi_conv(b, D, packed):
    o = O(b, D); out = []
    if packed:
        for r in (0, 2): out.append(I("v_pk_mul_f32 %s, %s, %s op_sel_hi:[1,0]" % (vr(o + r, 2), vr(o + r, 2), vr(vInv[b], 2))))
    else:
        for r in range(4): out.append(I("v_mul_f32 v%d, v%d, v%d" % (o + r, o + r, vInv[b])))
    for k in range(2): out.append(I("v_cvt_pk_bf16_f32 v%d, v%d, v%d" % (o + k, o + 2 * k, o + 2 * k + 1)))
    return out

def epi_write(b, D): return I("ds_write_b64 v%d, %s offset:%d" % (vOw, vr(O(b, D), 2), 16 * OPITCH * b + 16 * D), 12, "dsw", w=("W", b, D))
def epi_read(b, j): return I("ds_read_b128 %s, v%d offset:%d" % (vr(O(b, j), 4), vOr, OPITCH * (16 * b + 4 * j)), 4, "ds", w=("R", b, j))
def epi_store(cfg, b, j):
    return I("buffer_store_dwordx4 %s, v%d, %s, %s offen offset:%d%s" % (vr(O(b, j), 4), vDma[j], srd(sSrdO),
             "s%d" % sK16[b] if b else "0", BLK * j, cfg.st_pol), 16, "st", need=[("R", b, j)])

def fallback(cfg):
    L = []; A = L.append
    KOV.clear(); VOV.clear(); SOV.clear(); POV.clear()
    A("; ---- exact fallback: online softmax with the true running maximum, one wave alone in its own LDS region ----")
    A("L_fallback:")
    A("s_waitcnt vmcnt(0) lgkmcnt(0)")
    fd = vQd
    A("v_lshlrev_b32 v%d, 4, v%d" % (fd[0], vLane))
    for j in range(1, 4): A("v_add_u32 v%d, %d, v%d" % (fd[j], 3056 * j, fd[0]))
    A("v_add_u32 v%d, s%d, v%d" % (vK, sOreg, vKl))
    A("v_add_u32 v%d, s%d, v%d" % (vV, sOreg, vVl))
    for r in range(128): A("v_mov_b32 v%d, 0" % (128 + r))
    for b in range(4):
        A("v_mov_b32 v%d, 0" % vL[b]); A("v_mov_b32 v%d, 0x7f7fffff" % N(b))
    A("s_mov_b32 s%d, 0" % sOff)
    A("L_fb_loop:")
    for sr in (sSrdK, sSrdV):
        for jj in range(4):
            A("s_add_u32 m0, s%d, %d" % (sOreg, 4 * BLK * jj))
            A("s_add_u32 s49, s%d, %d" % (sOff, 1024 * jj))
            for j in range(4): A(dma_ins(cfg, sr, j, "s49", fd).t)
        A("s_waitcnt vmcnt(0)")
        for u in range(2):
            for x in (k_reads(u, vK, 0) if sr == sSrdK else v_reads(u, vV, 0)): A(x.t)
            A("s_waitcnt lgkmcnt(0)")
    for u in range(2):
        for b in range(4):
            for kb2 in range(2):
                for s in range(4): A(mfma_qk(u, b, kb2, s, True).t)
        A("s_nop 15")
        for b in range(4):
            L += max_chain(u, b, vT[0], vT[1])
            A("v_sub_f32 v%d, 0, v%d" % (vT[0], vT[0]))
            A("v_min_f32 v%d, v%d, v%d" % (vT[0], vT[0], N(b)))
            A("v_sub_f32 v%d, v%d, v%d" % (vT[1], vT[0], N(b)))
            A("v_exp_f32 v%d, v%d" % (vT[1], vT[1]))
            A("v_mov_b32 v%d, v%d" % (N(b), vT[0]))
            A("v_mul_f32 v%d, v%d, v%d" % (vL[b], vL[b], vT[1]))
            for r in range(32): A("v_mul_f32 v%d, v%d, v%d" % (O(b, 0) + r, O(b, 0) + r, vT[1]))
            L += sm_plain(u, b, True)
        A("s_nop 1")
        for b in range(4):
            for D in range(8): A(mfma_pv(u, b, D).t)
        A("s_nop 15")
    A("s_add_u32 s%d, s%d, 16384" % (sOff, sOff))
    A("s_cmp_lt_u32 s%d, 262144" % sOff)
    A("s_cbranch_scc1 L_fb_loop")
    for b in range(4):
        L += [x.t for x in epi_inv(cfg, b, False)] + ["s_nop 0"]
        for D in range(8): L += [x.t for x in epi_conv(b, D, False)] + [epi_write(b, D).t]
        A("s_waitcnt lgkmcnt(0)")
        L += [epi_read(b, j).t for j in range(4)]
        A("s_waitcnt lgkmcnt(0)")
        L += [epi_store(cfg, b, j).t for j in range(4)]
    A("s_endpgm")
    return L

def stamp(cfg, idx):
    if not cfg.stamps: return []
    r = sStamp + 2 * idx
    return ["%s s[%d:%d]" % ("s_memrealtime" if idx < 2 else "s_memtime", r, r + 1)]

HEADER = """
Attention forward  out = softmax(q k^T / sqrt(128)) v,  B*H = 256 heads, Sq 256, Sk 1024, D 128, bf16 in / bf16 out.
Written with my own generator script (dev/gen7.py); every instruction and its placement comes from that script.
Kernarg: q @0, k @8, v @16, out @24, debug @32 (unused), ws @40 (unused).

One workgroup per head, 4 waves, one per SIMD; a wave owns 64 query rows = 4 blocks of 16.
K / V / Q reach LDS through LDS-DMA (1 KiB blocks, pitch 1040 B, 4-stage ring of 64-key K and V tiles).
S^T = K Q^T and O^T = V^T P^T use v_mfma_f32_16x16x32_bf16, so a lane always works on one query row:
  a[0:63] Q (pre-multiplied by log2(e)/sqrt(D)), a[64:127] K fragments, a[128:191] V fragments (transposing LDS reads),
  v[128:255] O accumulators, v[44:59] v[64:95] v[112:127] scores / packed probabilities, v[96:111] minus the row reference.
Softmax guard: the reference subtracted from a row is the true maximum of its first 64 scores (it enters through the
MFMA C operand).  Every probability is bounded by the row sum, so one check of the sums at the end proves that nothing
came near overflow; a wave that fails it redoes its rows in L_fallback with the true running maximum.
Row sums: VALU adds for two of the blocks, extra MFMAs against a ones matrix for the other two.
Layout of the code: tiles 0-1 in data-arrival order, L_loop0 (next two tiles, looser instruction order: the chip
throttles memory for the rest of the launch if the load rises too fast), L_loop (one tile per trip), then the end of
the last tile, where finished blocks are normalised, transposed through LDS and stored while the others still compute.
"""
XS = [0]
def xstamp(cfg):
    if cfg.stamps < 2 or XS[0] >= 8: return []
    r = 72 + 2 * XS[0]; XS[0] += 1
    if cfg.stamps == 3:
        return ["s_memtime s[%d:%d]" % (r, r + 1), "s_memrealtime s[90:91]", "s_waitcnt lgkmcnt(0)", "s_mov_b32 s%d, s90" % (r + 1)]
    return ["s_memtime s[%d:%d]" % (r, r + 1), "s_waitcnt lgkmcnt(0)"]

def build(cfg):
    Z = set(cfg.zset)
    ZL[:] = sorted(Z)
    SNAKE[0] = cfg.snake
    assert len(Z) <= 2
    L = []; A = L.append
    for t in HEADER.strip("\n").split("\n"): A(("; " + t).rstrip())
    A("; @launch grid=(256,1,1) block=(256,1,1) lds=%d" % LDS_BYTES)
    A('.amdgcn_target "amdgcn-amd-amdhsa--gfx950"')
    A(".text"); A(".globl %s_kernel" % NAME); A(".p2align 8"); A(".type %s_kernel,@function" % NAME)
    A("%s_kernel:" % NAME)
    t0, t1, t2, t3 = vT
    A("s_load_dwordx4 s[4:7], s[0:1], 0")
    A("s_load_dwordx4 s[40:43], s[0:1], 16")
    A("s_lshr_b32 s%d, s2, 8" % sTmp)
    A("s_cbranch_scc1 L_end")
    L += stamp(cfg, 0) + stamp(cfg, 2)
    if cfg.stamps: A("s_load_dwordx2 s[44:45], s[0:1], 40")
    if cfg.pf:
        A("s_getpc_b64 s[48:49]")
        A("v_lshlrev_b32 v%d, 7, v0" % t1)
        A("v_min_u32 v%d, %d, v%d" % (t1, cfg.pf * 1024, t1))
        A("global_load_dword v192, v%d, s[48:49]" % t1)
    A("v_lshrrev_b32 v%d, 6, v0" % t0)
    A("v_lshlrev_b32 v%d, 4, v0" % vDma[0])
    A("v_readfirstlane_b32 s%d, v%d" % (sW, t0))
    A("v_lshlrev_b32 v%d, 2, v0" % t0)
    A("v_and_b32 v%d, 0xc0, v%d" % (t0, t0))
    A("v_xor_b32 v%d, v%d, v%d" % (vQd[0], t0, vDma[0]))
    A("s_movk_i32 s%d, 3056" % (sTmp + 2))
    for j in range(1, 4): A("v_add_u32 v%d, s%d, v%d" % (vQd[j], sTmp + 2, vQd[j - 1]))
    A("s_mul_i32 s%d, s%d, %d" % (sWoff, sW, 4 * BLK))
    A("s_lshl_b32 s%d, s2, 16" % sTmp)
    A("s_mov_b32 s%d, 65536" % (sSrdQ + 2)); A("s_mov_b32 s%d, 0x20000" % (sSrdQ + 3))
    for j in range(1, 4): A("v_add_u32 v%d, s%d, v%d" % (vDma[j], sTmp + 2, vDma[j - 1]))
    A("s_lshl_b32 s%d, s2, 18" % (sTmp + 1))
    A("s_lshl_b32 s%d, s%d, 2" % (sSrdK + 2, sSrdQ + 2)); A("s_mov_b32 s%d, s%d" % (sSrdK + 3, sSrdQ + 3))
    def mk(sr, p, t):
        A("s_add_u32 s%d, s%d, s%d" % (sr, p, t))
        A("s_addc_u32 s%d, s%d, 0" % (sr + 1, p + 1))
    def grp(name):
        so = lambda j: "0" if j == 0 else ("s%d" % sK16[j] if j < 4 else "s%d" % (sOff if j == 2 + cfg.dist else sK4))
        j = int(name[1])
        if name[0] == "Q":
            return ["s_add_u32 m0, s%d, %d" % (sWoff, (5 + j) * SLOT), "s_nop 0"] + [dma_ins(cfg, sSrdQ, x, so(j), vQd).t for x in range(4)]
        sr, slot = (sSrdK, 2 * (j % 4)) if name[0] == "K" else (sSrdV, 2 * (j % 4) + 1)
        return ["s_add_u32 m0, s%d, %d" % (sWoff, slot * SLOT), "s_nop 0"] + [dma_ins(cfg, sr, x, so(j)).t for x in range(4)]
    order = cfg.order.split() + (["V4", "K5"] if cfg.dist == 3 else [])
    st = {"n": 0, "max": order.index("V2")}
    def top_up(done):
        w_ = cfg.wins[min(done, len(cfg.wins) - 1)]
        while st["n"] < min(st["max"], done + w_):
            L.extend(grp(order[st["n"]])); st["n"] += 1
    def wait_for(name):
        k = order.index(name)
        if name in cfg.xs.split() and cfg.stamps == 2: L.extend(xstamp(cfg))
        A("s_waitcnt vmcnt(%d)" % (4 * (st["n"] - k - 1)))
        if name[0] != "Q": A("s_barrier")
        if name in cfg.xs.split() and cfg.stamps < 4: L.extend(xstamp(cfg))
        return k + 1
    g0 = grp(order[0])
    A(g0[0])
    A("s_waitcnt lgkmcnt(0)")
    mk(sSrdQ, 4, sTmp)
    L.extend(g0[2:])
    g1 = grp(order[1])
    A(g1[0]); mk(sSrdK, 6, sTmp + 1); L.extend(g1[2:]); st["n"] = 2
    L.extend(["v_and_b32 v%d, 63, v0" % vLane, "s_mul_i32 s%d, s%d, %d" % (sOreg, sW, OREG),
              "s_mov_b32 s%d, s%d" % (sSrdV + 2, sSrdK + 2), "s_mov_b32 s%d, s%d" % (sSrdV + 3, sSrdQ + 3),
              "s_mov_b32 s%d, s%d" % (sSrdO + 2, sSrdQ + 2), "s_mov_b32 s%d, s%d" % (sSrdO + 3, sSrdQ + 3)])
    L.extend(["s_mov_b32 s%d, %d" % (sK16[j], 16384 * j) for j in range(1, 4)])
    mk(sSrdV, 40, sTmp + 1)
    top_up(0)
    mk(sSrdO, 42, sTmp)
    A("v_bfe_u32 v%d, v%d, 2, 2" % (t0, vLane))
    A("v_lshrrev_b32 v%d, 1, v%d" % (t1, t0))
    A("v_xor_b32 v%d, v%d, v%d" % (t1, t0, t1))
    A("v_and_b32 v%d, 3, v%d" % (t2, vLane))
    A("v_lshrrev_b32 v%d, 4, v%d" % (t3, vLane))
    A("v_and_b32 v%d, 1, v%d" % (vX[0], t3))
    A("v_lshrrev_b32 v%d, 1, v%d" % (vX[1], t3))
    A("v_lshl_add_u32 v%d, v%d, 1, v%d" % (vX[0], vX[0], vX[1]))
    A("v_lshl_add_u32 v%d, v%d, 2, v%d" % (vKl, t1, t2))
    A("v_mul_u32_u24 v%d, %d, v%d" % (vKl, BLK, vKl))
    A("v_lshl_add_u32 v%d, v%d, 6, v%d" % (vKl, vX[0], vKl))
    A("v_mul_u32_u24 v%d, %d, v%d" % (vQrd, BLK, t2))
    A("v_lshl_add_u32 v%d, v%d, 8, v%d" % (vQrd, t1, vQrd))
    A("v_xor_b32 v%d, v%d, v%d" % (vX[0], vX[0], t1))
    A("v_lshl_add_u32 v%d, v%d, 6, v%d" % (vQrd, vX[0], vQrd))
    A("v_add_u32 v%d, s%d, v%d" % (vQrd, sWoff, vQrd))
    A("v_add_u32 v%d, %d, v%d" % (vQrd, 5 * SLOT, vQrd))
    A("v_lshl_add_u32 v%d, v%d, 2, v%d" % (vOw, t2, t1))
    A("v_mul_u32_u24 v%d, %d, v%d" % (vOw, OPITCH, vOw))
    A("v_lshl_add_u32 v%d, v%d, 7, v%d" % (vOw, vX[1], vOw))
    A("v_and_b32 v%d, 1, v%d" % (vX[0], t3))
    A("v_lshl_add_u32 v%d, v%d, 3, v%d" % (vOw, vX[0], vOw))
    A("v_add_u32 v%d, s%d, v%d" % (vOw, sOreg, vOw))
    A("v_mul_u32_u24 v%d, %d, v%d" % (vOr, OPITCH, t3))
    A("v_and_b32 v%d, 15, v%d" % (vX[0], vLane))
    A("v_lshl_add_u32 v%d, v%d, 4, v%d" % (vOr, vX[0], vOr))
    A("v_add_u32 v%d, s%d, v%d" % (vOr, sOreg, vOr))
    A("v_xor_b32 v%d, v%d, v%d" % (vX[1], t3, vX[1]))
    A("v_lshl_add_u32 v%d, v%d, 2, v%d" % (vVl, vX[1], t0))
    A("v_mul_u32_u24 v%d, %d, v%d" % (vVl, BLK, vVl))
    A("v_lshrrev_b32 v%d, 1, v%d" % (vX[0], t2))
    A("v_lshl_add_u32 v%d, v%d, 7, v%d" % (vVl, vX[0], vVl))
    A("v_and_b32 v%d, 1, v%d" % (vX[0], t2))
    A("v_lshl_add_u32 v%d, v%d, 3, v%d" % (vVl, vX[0], vVl))
    A("v_add_u32 v%d, %d, v%d" % (vK, 2 * STAGE, vKl))
    A("v_add_u32 v%d, %d, v%d" % (vV, 2 * STAGE, vVl))
    cbits = f2u(1.4426950408889634 * 128 ** -0.5)
    A("s_mov_b32 s%d, 0x%08x" % (sC, cbits)); A("s_mov_b32 s%d, 0x%08x" % (sC + 1, cbits))
    A("s_mov_b32 s%d, 0x%08x" % (sThr, f2u(cfg.thresh)))
    A("s_mov_b32 s%d, %d" % (sOff, (2 + cfg.dist) * 16384))
    if cfg.dist == 3: A("s_mov_b32 s%d, %d" % (sK4, 4 * 16384)); A("s_mov_b32 s%d, %d" % (sP, 2 * STAGE))
    A("s_mov_b32 s%d, %d" % (sA, 3 * STAGE)); A("s_mov_b32 s%d, 0" % sB); A("s_mov_b32 s%d, %d" % (sD, STAGE))
    if cfg.stamps: A("s_mov_b32 s%d, -1" % sIt)
    for b in range(4): A("v_mov_b32 v%d, 0" % vL[b])
    for r in range(4): A("v_mov_b32 v%d, 0x3f803f80" % (vOnes + r))
    if cfg.stamps: A("v_mov_b32 v%d, 0" % vStLo); A("v_mov_b32 v%d, 0" % vStRt)

    class TL:
        def __init__(self): self.G = []; self.qk = {}; self.pv = {}; self.done = {}
        def qkt(self, T, b):
            for u in (2 * T, 2 * T + 1):
                self.qk[(u, b)] = len(self.G)
                self.G += [Gap(mfma_qk(u, b, kb2, s)) for kb2 in range(2) for s in range(4)]
        def pvt(self, T, b):
            us = (2 * T, 2 * T + 1)
            for u in us: self.pv[(u, b)] = len(self.G)
            if b in Z:
                for u in us: self.G.append(Gap(mfma_sum(u, b)))
                self.done[(b, 8)] = len(self.G) - 1
            for D in range(8):
                for u in us: self.G.append(Gap(mfma_pv(u, b, D)))
                self.done[(b, D)] = len(self.G) - 1
        def body(self, T):
            self.pvt(T, 3); self.qkt(T + 1, 2); self.pvt(T + 1, 0); self.qkt(T + 1, 3)
            self.pvt(T + 1, 1); self.qkt(T + 2, 0); self.pvt(T + 1, 2); self.qkt(T + 2, 1)
    NB = 128 + 2 * len(Z)
    def vt_reads(T, areg=vV, base=SLOT):
        return sorted(v_reads(2 * T, areg, base) + v_reads(2 * T + 1, areg, base), key=lambda x: (x.w[2], x.w[1], x.w[3]))
    def kt_reads(T, areg=vK, base=0): return k_reads(2 * T, areg, base) + k_reads(2 * T + 1, areg, base)

    def body_fixed(G):
        G[0].salu.append(I("s_waitcnt vmcnt(%d)" % (8 * (cfg.dist - 1)), 4, "wait"))
        G[0].salu.append(I("s_barrier", 12, "bar")); G[0].closed = True
        vd, kd = cfg.dmag[:4], cfg.dmag[4:]
        G[vd[0] - 1].salu.append(I("s_add_u32 m0, m0, %d" % SLOT, 4, "salu"))
        for j, g in enumerate(vd): G[g].mem.append(dma_ins(cfg, sSrdV, j, "s%d" % sOff)); G[g].closed = True
        G[vd[3] + 1].salu.append(I("s_add_u32 s%d, s%d, 16384" % (sOff, sOff), 4, "salu"))
        assert kd[0] - 1 > vd[3] + 1
        G[kd[0] - 1].salu.append(I("s_add_u32 m0, s%d, s%d" % (sD if cfg.dist == 2 else sP, sWoff), 4, "salu"))
        for j, g in enumerate(kd): G[g].mem.append(dma_ins(cfg, sSrdK, j, "s%d" % sOff)); G[g].closed = True
        seq = ["s_mov_b32 s%d, s%d" % (sA, sB), "s_mov_b32 s%d, s%d" % (sB, sD), "s_add_u32 s%d, s%d, %d" % (sD, sD, STAGE),
               "s_cmp_eq_u32 s%d, %d" % (sD, 4 * STAGE), "s_cselect_b32 s%d, 0, s%d" % (sD, sD)]
        assert kd[0] < NB - 13
        if cfg.dist == 3: G[NB - 13].salu.append(I("s_mov_b32 s%d, s%d" % (sP, sA), 4, "salu"))
        for j, t in enumerate(seq): G[NB - 12 + j].salu.append(I(t, 4, "salu"))
        G[NB - 3].salu.append(I("s_cmp_lt_u32 s%d, LIMIT" % sOff, 4, "salu"))
        if cfg.stamps and cfg.stamps != 5:
            G[NB - 6].salu.append(I("s_memtime s[50:51]", 4, "salu"))
            G[NB - 5].salu.append(I("s_memrealtime s[52:53]", 4, "salu"))
            G[NB - 14].salu.append(I("s_add_u32 s%d, s%d, 1" % (sIt, sIt), 4, "salu"))
        G[NB - 2].salu.append(I("s_waitcnt lgkmcnt(0)", 4, "wait0"))
        G[NB - 1].salu.append(I("s_cbranch_scc1 LOOP", 28, "br")); G[NB - 1].closed = True

    NSIM = 14
    T = TL()
    for i in range(1, NSIM + 1): T.body(i)
    G = T.G
    for i in range(NSIM): body_fixed(G[i * NB:(i + 1) * NB])
    lastuse = {}; firstuse = {}
    for g, gp in enumerate(G):
        for t in gp.m.need: lastuse[t] = g; firstuse.setdefault(t, g)
    blocks = sorted(T.qk, key=lambda k: T.qk[k])
    el = [(u, b, e) for (u, b) in blocks for e in range(8)]
    Dq = []
    for i in range(1, NSIM + 1):
        base = (i - 1) * NB
        rd = vt_reads(i + 1) + kt_reads(i + 2)
        for j, x in enumerate(rd):
            old = (x.w[0], x.w[1] - 2) + x.w[2:]
            dflt = base + 1 if x.w[0] == "V" else T.qk[(2 * i + 2, 3)] + j - 32
            x.rel = max(base + 1, lastuse.get(old, dflt))
            x.dead = min(firstuse.get(x.w, 1 << 30) - cfg.lat - 1, base + NB - 16)
            x.last = None
        rd[31].last = "V"; rd[47].last = "K"
        Dq += rd
    for j in range(len(Dq) - 2, -1, -1): Dq[j].dead = min(Dq[j].dead, Dq[j + 1].dead - 1)
    at = {}
    pE = 0; Aq = []; Cq = []; Xq = []; pD = 0
    def readyX(g):
        out = []
        if Cq:
            u, b, k = Cq[0]
            okA = (b in Z) or all((u, b, "A", e) in at for e in range(k + 1))
            if at.get((u, b, "E", 2 * k + 1), 1 << 30) < g and okA: out.append("C")
        if Xq and Xq[0][0] <= g: out.append("X")
        if Aq and at[Aq[0][:2] + ("E", Aq[0][2])] < g: out.append("A")
        return out
    def takeX(kind, g):
        if kind == "C": u, b, k = Cq.pop(0); x = sm_ins("C", u, b, k)
        elif kind == "A": u, b, e = Aq.pop(0); x = sm_ins("A", u, b, e)
        else: return Xq.pop(0)[1]
        at[x.key] = g
        return x
    prevE = False
    for g, gp in enumerate(G):
        if gp.closed: prevE = False; continue
        eok = False
        if pE < len(el):
            u, b, e = el[pE]
            eok = g >= T.qk[(u, b)] + (3 if e < 4 else 7) + 4
        nD = sum(1 for j in (pD, pD + 1) if j < len(Dq) and Dq[j].rel <= g)
        backlog = len(Aq) + len(Cq) + len([1 for x in Xq if x[0] <= g])
        urgent = nD and Dq[pD].dead <= g
        prevD = g > 0 and any(x.k == "ds" for x in G[g - 1].mem)
        have4 = (0 if (prevD and not urgent) else nD) + backlog
        if eok and not urgent and (have4 < 2 or not prevE):
            x = sm_ins("E", u, b, e); at[x.key] = g; gp.valu.append(x); pE += 1
            if b not in Z: Aq.append((u, b, e))
            if e & 1: Cq.append((u, b, e // 2))
            prevE = True
            continue
        prevE = False
        slots = 2
        while slots:
            rx = readyX(g)
            dok = pD < len(Dq) and Dq[pD].rel <= g and not gp.valu
            backlog = len(Aq) + len(Cq) + len(Xq)
            urg2 = dok and Dq[pD].dead <= g + 2
            if dok and (urg2 or not rx or (slots == 2 and backlog <= cfg.bl2) or (slots == 1 and backlog <= cfg.bl1)):
                x = Dq[pD]; pD += 1; gp.mem.append(x); x.at = g
                if x.last == "K": Xq.append((g + 1, I("v_add_u32 v%d, s%d, v%d" % (vK, sB, vKl))))
                if x.last == "V": Xq.append((g + 1, I("v_add_u32 v%d, s%d, v%d" % (vV, sA, vVl))))
            elif rx: gp.valu.append(takeX(rx[0], g))
            else: break
            slots -= 1
    ref = NSIM - 2
    add_waits(cfg, G, {x.w for x in vt_reads(1) + kt_reads(2)})
    body = G[(ref - 1) * NB:ref * NB]
    prev = G[(ref - 2) * NB:(ref - 1) * NB]
    costs = [gp.cost() for gp in body]
    sys.stderr.write("gap costs: %s\n           %s\n est cycles/tile %d\n" % ("".join("%x" % min(15, c // 4) for c in costs),
        "".join("E" if gp.valu and gp.valu[0].k == "trans" else ("m" if gp.mem and gp.mem[0].k == "dma" else str(len(gp.mem))) for gp in body), sum(8 + max(8, c) for c in costs)))
    assert [x.text() for x in body] == [x.text() for x in prev], "schedule not periodic"
    slack = 999
    for g, gp in enumerate(G[:NB * (NSIM - 1)]):
        if hasattr(gp.m, "pneed") and gp.m.pneed in T.qk:
            u, b = gp.m.pneed
            slack = min(slack, g - 1 - at[(u, b, "C", 3)])
    sys.stderr.write("P slack %d\n" % slack)
    assert slack > 0, "P late"
    for (u, b), g in T.qk.items():
        if (u - 2, b) in T.qk and b not in Z and g < NB * (NSIM - 1): assert at[(u - 2, b, "A", 7)] < g
    va = [g for g, gp in enumerate(body) for x in gp.valu if x.t.startswith("v_add_u32")]
    assert len(va) == 2 and max(va) < NB - 12, va
    u0 = 2 * (ref + 1)
    entry = (ref - 1) * NB
    pendset = {(x.key[0] - u0,) + x.key[1:] for gp in G[entry:] for x in gp.valu if hasattr(x, "key") and T.qk[x.key[:2]] < entry}
    sys.stderr.write("pending blocks: %s\n" % sorted({k[:2] for k in pendset}))
    if cfg.stamps and cfg.stamps != 5:
        body[NB - 4].valu.append(I("v_cmp_eq_u32 vcc, s%d, v%d" % (sIt, vLane)))
        for t in ("v_mov_b32 v%d, s50" % vX[0], "v_mov_b32 v%d, s52" % vX[1], "v_cndmask_b32 v%d, v%d, v%d, vcc" % (vStLo, vStLo, vX[0]),
                  "v_cndmask_b32 v%d, v%d, v%d, vcc" % (vStRt, vStRt, vX[1])): body[NB - 2].valu.append(I(t))
    if cfg.tail == 99: return ""

    def pour2(G, streams, at):
        g = 0
        dead = [next((x.dead for x in st_ if hasattr(x, "dead")), None) for st_ in streams]
        def rem(i):
            c = 0
            for x in streams[i]:
                c += x.c
                if hasattr(x, "dead"): return c
            return 0
        while any(streams):
            if g >= len(G): G.append(Gap(None))
            gp = G[g]
            while True:
                ready = [i for i, st_ in enumerate(streams) if st_ and st_[0].lo(at) <= g]
                if not ready: break
                need = {}
                for i in ready:
                    if dead[i] is not None and rem(i):
                        assert dead[i] >= g, "deadline missed"
                        w = sum(rem(j) for j in range(len(streams)) if dead[j] is not None and dead[j] <= dead[i])
                        need[i] = w / float(dead[i] - g - 1) if dead[i] - g - 1 >= 1 else 999
                vc = sum(x.c for x in gp.valu if hasattr(x, "key") and len(x.key) == 4)
                urgent = [i for i in sorted(need, key=lambda i: dead[i]) if need[i] >= cfg.urg and vc < need[i]]
                pick = None
                if urgent: pick = urgent[0]
                elif gp.cost() < (8 if gp.m else 16): pick = ready[0]
                else:
                    ep = [i for i in ready if dead[i] is None]
                    if ep and gp.cost() < cfg.elevel: pick = ep[0]
                if pick is None: break
                if getattr(streams[pick][0], "burst", False) and gp.cost() < 16:
                    oth = [i for i in ready if i != pick and not getattr(streams[i][0], "burst", False)]
                    if oth: pick = oth[0]
                x = streams[pick].pop(0)
                gp.valu.append(x)
                if hasattr(x, "key"): at[x.key] = g
                if hasattr(x, "after"): x.after(g)
            g += 1

    def sm_queue(u, b, qk, pv, skip=lambda k: False):
        out = []
        seq = []
        for j in range(6):
            for h in range(2):
                if j < 4: seq.append(("E", 2 * j + h))
                if j >= 1 and j <= 4 and b not in Z: seq.append(("A", 2 * (j - 1) + h))
            if 1 <= j <= 4: seq.append(("C", j - 1))
        for kind, e in seq:
            if skip((b, kind, e)): continue
            x = sm_ins(kind, u, b, e)
            if kind == "E":
                rel = qk[(u, b)] + (3 if e < 4 else 7) + 3 if (u, b) in qk else 0
                x.lo = lambda at, rel=rel: rel
            elif kind == "A": x.lo = lambda at, k=(u, b, "E", e): at.get(k, -9) + 1
            else:
                x.lo = lambda at, k=(u, b, "E", 2 * e + 1): at.get(k, -9) + 1
                if e == 3 and (u, b) in pv: x.dead = pv[(u, b)] - 2
            out.append(x)
        return out

    def make_first():
        out = []
        for gp in body:
            n = Gap(gp.m); n.salu = [x for x in gp.salu if not (x.k == "wait" and "lgkm" in x.t)]
            n.valu = list(gp.valu); n.mem = [x for x in gp.mem if x.k != "ds"]
            out.append(n)
        if cfg.dmag0 != cfg.dmag:
            dm = [x for n in out for x in n.mem]
            mv = {}
            for n in out:
                n.mem = []
                for x in list(n.salu):
                    if x.t.startswith("s_add_u32 m0, m0"): mv["mV"] = x; n.salu.remove(x)
                    elif x.t.startswith("s_add_u32 m0, s"): mv["mK"] = x; n.salu.remove(x)
                    elif x.t.startswith("s_add_u32 s%d, s%d, 16384" % (sOff, sOff)): mv["off"] = x; n.salu.remove(x)
            for x, g in zip(dm, cfg.dmag0): out[g].mem.append(x)
            assert cfg.dmag0[3] + 1 < cfg.dmag0[4] - 1 < NB - 13
            out[cfg.dmag0[0] - 1].salu.append(mv["mV"]); out[cfg.dmag0[3] + 1].salu.append(mv["off"]); out[cfg.dmag0[4] - 1].salu.append(mv["mK"])
        if cfg.clus:
            import re as _re
            def rs(x): return set(sum((CK.regs(t) for t in _re.findall(r"v\[\d+:\d+\]|v\d+", x.t)), []))
            g = 1; n = 0; acc = 0
            while g < NB - 6:
                a_, b_ = out[g], out[g + 1]
                ok = a_.valu and b_.valu and not a_.mem and not b_.mem and \
                     not (set().union(*[rs(x) for x in a_.valu if x.k == "trans"] or [set()]) & set().union(*[rs(x) for x in b_.valu]))
                if ok:
                    acc += cfg.clus
                    if acc >= 100:
                        acc -= 100
                        b_.valu = a_.valu + b_.valu; a_.valu = []; n += 1
                    g += 2
                else: g += 1
            sys.stderr.write("clustered pairs: %d\n" % n)
        addr = {}
        for g, gp in enumerate(out):
            for x in gp.valu:
                if x.t.startswith("v_add_u32 v%d," % vK): addr["K"] = g
                if x.t.startswith("v_add_u32 v%d," % vV): addr["V"] = g
        use = {}
        for g, gp in enumerate(body):
            for t in gp.m.need: use.setdefault(t, g)
        moved = []; lastg = 0
        for g, gp in enumerate(body):
            for x in gp.mem:
                if x.k != "ds": continue
                h0 = h = max(g, lastg)
                assert x.w[0] == "V" or h > cfg.kgap
                if cfg.lazy:
                    lim = use[x.w] - 4
                    while h <= lim and (not out[h].valu or out[h].mem): h += 1
                    if h > lim:
                        h = h0
                        while out[h].mem and out[h].mem[0].k != "ds": h += 1
                while out[h].mem and out[h].mem[0].k != "ds": h += 1
                out[h].mem.append(x); lastg = h
                if x.last: moved.append((x.last, h))
        for kind, h in moved:
            g = addr[kind]
            if g <= h:
                y = [x for x in out[g].valu if x.t.startswith("v_add_u32 v%d," % (vK if kind == "K" else vV))][0]
                out[g].valu.remove(y); out[h + 1].valu.append(y)
                assert h + 1 < NB - 12
        if cfg.kgap:
            out[0].salu[0] = I("s_waitcnt vmcnt(%d)" % (8 * cfg.dist - 4), 4, "wait")
            nk = sum(1 for g in cfg.dmag0 if g < cfg.kgap)
            out[cfg.kgap].salu += [I("s_waitcnt vmcnt(%d)" % (8 * (cfg.dist - 1) + nk), 4, "wait"), I("s_barrier", 12, "bar")]
        c2 = Cfg(); c2.lat = 2
        add_waits(c2, out, {x.w for x in vt_reads(ref) + kt_reads(ref + 1)})
        return out

    p0 = len(L)
    KOV.update({0: 128, 1: 160}); VOV.update({0: 192, 1: 224})
    W0 = "s_waitcnt lgkmcnt(0)"
    def q_read(b): return ["ds_read_b128 %s, v%d offset:%d" % (vr(O(b, s), 4), vQrd, SLOT * b + 16 * s) for s in range(4)]
    def q_scale(b):
        out = []; raw = O(b, 0); tmp = O(b, 4)
        for h in range(2):
            for r in range(8):
                out.append("v_lshlrev_b32 v%d, 16, v%d" % (tmp + 2 * r, raw + 8 * h + r))
                out.append("v_and_b32 v%d, 0xffff0000, v%d" % (tmp + 2 * r + 1, raw + 8 * h + r))
            for r in range(8): out.append("v_pk_mul_f32 %s, %s, s[%d:%d]" % (vr(tmp + 2 * r, 2), vr(tmp + 2 * r, 2), sC, sC + 1))
            for r in range(8): out.append("v_cvt_pk_bf16_f32 v%d, v%d, v%d" % (raw + 8 * h + r, tmp + 2 * r, tmp + 2 * r + 1))
            for r in range(8): out.append("v_accvgpr_write_b32 a%d, v%d" % (Qa(b, 0) + 8 * h + r, raw + 8 * h + r))
        return out
    def grab(fn, *a):
        k = len(L); fn(*a); out = [t for t in L[k:] if t != "s_nop 0"]; del L[k:]
        return out
    def mix(ms, fill=(), lead=0, mem=()):
        fill = list(fill); n = len(ms) - lead; k = 0; mem = list(mem); km = 0
        for j, m in enumerate(ms):
            A(m.t)
            em = (len(mem) * (j + 1)) // len(ms)
            L.extend(mem[km:em]); km = em
            if j >= lead:
                e = (len(fill) * (j - lead + 1)) // n
                L.extend(fill[k:e]); k = e
    def qk(u, b): return [mfma_qk(u, b, kb2, s, u < 2) for kb2 in range(2) for s in range(4)]
    def pv(u, b): return [mfma_pv(u, b, D, u == 0) for D in range(8)] + ([mfma_sum(u, b, u == 0)] if b in Z else [])
    def pv2(u, b): return [m for pair in zip(pv(u, b), pv(u + 1, b)) for m in pair]
    def sm(u, b): return sm_plain(u, b, b not in Z, u < 2, {k[1:] for k in pendset if k[0] + 4 == u})
    def rowmax(b):
        s0, s1 = S(0, b), S(1, b)
        v = [s0 + e for e in range(8)] + [s1 + e for e in range(8)]
        out = ["v_max3_f32 v%d, v%d, v%d, v%d" % (t0, v[0], v[1], v[2])]
        for e in range(3, 15, 2): out.append("v_max3_f32 v%d, v%d, v%d, v%d" % (t0, t0, v[e], v[e + 1]))
        out.append("v_max_f32 v%d, v%d, v%d" % (t0, t0, v[15]))
        out += xlane("v_max_f32", t0, t1)
        return out + ["v_sub_f32 v%d, 0, v%d" % (N(b) + r, t0) for r in range(4)]
    def ev(name, reads, unlock=None):
        d = wait_for(name)
        if unlock: st["max"] = order.index(unlock) if unlock in order else len(order)
        L.extend(reads[:16]); top_up(d); L.extend(reads[16:])
    def tx(xs): return [x.t for x in xs]
    ev("Q0", q_read(0))
    L += stamp(cfg, 3)
    A(W0); L += q_scale(0)
    ev("K0", tx(kt_reads(0, vKl, 0)), "K3")
    A("s_waitcnt lgkmcnt(8)"); mix(qk(0, 0)); A(W0); mix(qk(1, 0))
    L += rowmax(0) + sm(0, 0) + sm(1, 0)
    ev("V0", tx(vt_reads(0, vVl, SLOT)))
    A(W0); mix(pv2(0, 0))
    ev("Q1", q_read(1))
    A(W0); L += q_scale(1); mix(qk(0, 1) + qk(1, 1)); L += rowmax(1) + sm(0, 1); mix(pv(0, 1), sm(1, 1))
    ev("Q2", q_read(2))
    mix(pv(1, 1))
    A(W0); L += q_scale(2); mix(qk(0, 2) + qk(1, 2)); L += rowmax(2) + sm(0, 2); mix(pv(0, 2), sm(1, 2))
    if cfg.dense & 4:
        d = wait_for("K1"); st["max"] = len(order)
        mix(pv(1, 2), mem=tx(kt_reads(1, vKl, STAGE)))
        A("s_waitcnt lgkmcnt(8)"); mix(qk(2, 0), mem=grab(top_up, d)); A(W0)
    else:
        ev("K1", tx(kt_reads(1, vKl, STAGE)), "end")
        mix(pv(1, 2))
        A("s_waitcnt lgkmcnt(8)"); mix(qk(2, 0)); A(W0)
    mix(qk(3, 0) + qk(2, 1) + qk(3, 1), sm(2, 0) + sm(3, 0), 2)
    mix(qk(2, 2) + qk(3, 2), sm(2, 1) + sm(3, 1))
    ev("Q3", q_read(3))
    L += sm(2, 2)
    A(W0); L += q_scale(3); mix(qk(0, 3) + qk(1, 3), sm(3, 2)); L += rowmax(3) + sm(0, 3)
    mix(pv(0, 3), sm(1, 3))
    if cfg.dense & 2:
        d = wait_for("V1")
        mix(pv(1, 3) + qk(2, 3), mem=tx(vt_reads(1, vVl, STAGE + SLOT)))
        mix(qk(3, 3), mem=grab(top_up, d))
    else:
        ev("V1", tx(vt_reads(1, vVl, STAGE + SLOT)))
        mix(pv(1, 3)); mix(qk(2, 3) + qk(3, 3))
    A(W0)
    mix(pv2(2, 0), sm(2, 3))
    ev("K2", tx(kt_reads(2)))
    A("v_add_u32 v%d, %d, v%d" % (vK, 3 * STAGE, vKl))
    if cfg.loose >= 2: L += sm(3, 3); mix(pv2(2, 1))
    else: mix(pv2(2, 1), sm(3, 3))
    A(W0)
    if cfg.loose:
        mix(qk(4, 0) + qk(5, 0)); L += sm(4, 0); mix(pv2(2, 2)); L += sm(5, 0)
        top_up(99)
        mix(qk(4, 1) + qk(5, 1)); L += sm(4, 1) + sm(5, 1)
    else:
        mix(qk(4, 0))
        mix(qk(5, 0) + pv2(2, 2) + qk(4, 1), sm(4, 0) + sm(5, 0), 2, mem=grab(top_up, 99) if cfg.dense & 1 else [])
        top_up(99)
        mix(qk(5, 1), sm(4, 1), 2)
        L += sm(5, 1)
    assert st["n"] == len(order)
    L += stamp(cfg, 4)
    if cfg.stamps: A(W0)
    A("s_nop 1")
    fixed, nfix = CK.fix(L[p0:], True)
    L[p0:] = fixed
    sys.stderr.write("start: %d lines, %d nops added\n" % (len(fixed), nfix))
    KOV.clear(); VOV.clear()
    def emit_loop(label, gaps, lazy, last_i):
        A(label + ":")
        k = len(L)
        for gp in gaps:
            for t in gp.text(lazy):
                A(t.replace("LIMIT", str((last_i + 2 + cfg.dist) * 16384)).replace("LOOP", label))
        L[k:] = CK.fix(L[k:], True)[0]
    if cfg.ramp: emit_loop("L_loop0", make_first(), cfg.lazy, cfg.ramp)
    if cfg.stamps == 5: L += xstamp(cfg)
    if cfg.align: A(".p2align %d" % cfg.align)
    emit_loop("L_loop", body, False, 13)

    VOV.update({30: 192, 31: 224})
    E = TL()
    orders = [
        "Pa Q2 P0 Q3 P1 P2 P3 | s1 s2 e0 s3 e1 e2 e3",
        "Pa P0 Q2 P1 Q3 P2 P3 | s1 e0 s2 e1 s3 e2 e3",
        "Q2 P0 Pa Q3 P1 P2 P3 | s1 s2 e0 s3 e1 e2 e3",
        "Pa Q2 P0 P1 Q3 P2 P3 | s1 s2 e0 e1 s3 e2 e3",
        "Q2 P0 Pa P1 Q3 P2 P3 | s1 e0 s2 e1 s3 e2 e3",
        "Pa P0 Q2 Q3 P1 P2 P3 | s1 e0 s2 s3 e1 e2 e3",
        "Q2 P0 P1 Q3 P2 Pa P3 | s1 e0 s2 e1 e2 s3 e3",
        "Q2 P0 Q3 P1 P2 Pa P3 | s1 e0 s2 e1 e2 s3 e3",
        "Q2 P0 P1 Q3 P2 Pa P3 | s1 e0 s2 e1 s3 e2 e3",
        "Q2 P0 Q3 P1 P2 Pa P3 | s1 s2 e0 e1 s3 e2 e3",
        "Q2 P0 P1 P2 Q3 Pa P3 | s1 s2 e0 e1 e2 s3 e3",
    ]
    mo, vo = [x.split() for x in orders[cfg.tail].split("|")]
    if mo.index("Pa") > mo.index("Q3"):
        assert mo.index("P0") < mo.index("Q3")
        SOV.update({(30, 3): S(0, 0), (31, 3): S(1, 0)})
    for w in mo:
        if w == "Pa": E.pvt(14, 3)
        elif w[0] == "Q": E.qkt(15, int(w[1]))
        else: E.pvt(15, int(w[1]))
    done_at = E.done
    G = E.G
    nm = len(G)
    G[0].salu.append(I("s_waitcnt vmcnt(0)", 4, "wait")); G[0].salu.append(I("s_barrier", 12, "bar"))
    need0 = E.pv[(30, 0)]
    span = max(16, min(32, need0 + 8))
    for j, x in enumerate(vt_reads(15)): G[1 + (j * span) // 32].mem.append(x)
    def side(g, x):
        while True:
            while g >= len(G): G.append(Gap(None))
            kinds = {y.k == "st" for y in G[g].mem}
            if G[g].m and kinds and kinds != {x.k == "st"} and x.k == "st": g += 1
            else: break
        G[g].mem.append(x)
    q = []
    for w in vo:
        b = int(w[1])
        if w[0] == "s":
            for u in (30, 31):
                q.append(sm_queue(u, b, E.qk, E.pv, skip=(lambda k, u=u: (u - 30,) + k not in pendset) if b < 2 else (lambda k: False)))
        else:
            pvg = E.pv[(31, b)]
            inv = epi_inv(cfg, b, b in Z)
            ks = [(uu, b, "A", 7) for uu in (30, 31) if b >= 2 or (uu - 30, b, "A", 7) in pendset]
            for x in inv: x.lo = (lambda at, r=done_at[(b, 8)] + 3: r) if b in Z else (lambda at, r=pvg - 4, ks=ks: max([r] + [at.get(k, 999) + 1 for k in ks]))
            inv[-1].key = ("inv", b)
            q.append(list(inv))
            prog = (w == vo[-1])
            if not prog:
                pk = I("\n".join(x.t for D in range(8) for x in epi_conv(b, D, True)[:2]), 64)
                pk.lo = lambda at, r=done_at[(b, 7)] + 3, k=("inv", b): max(r, at[k] + 1)
                pk.burst = True
                q[-1].append(pk)
            for D in range(8):
                pk_ = prog and D >= cfg.progpk
                cv = epi_conv(b, D, pk_)
                if not prog: cv = cv[4:]
                rel = max(min(done_at[(b, D)] + 3, nm + 1), nm + 1 if pk_ else 0)
                for x in cv: x.lo = lambda at, r=rel, k=("inv", b): max(r, at[k] + 1)
                def aft(g, b=b, D=D, prog=prog):
                    side(g + 1, epi_write(b, D))
                    if D == 7:
                        for j in range(4): side(g + 1 + (j + 1) // 2, epi_read(b, j))
                        for j in range(4): side(g + 9 + (1 if prog else cfg.stsp) * j, epi_store(cfg, b, j))
                cv[-1].after = aft
                q[-1] += cv
    assert {k[:2] for k in pendset} <= {(0, 1), (1, 1)}
    at2 = {}
    pour2(G, q, at2)
    add_waits(cfg, G, {x.w for x in vt_reads(14) + kt_reads(15)})
    sys.stderr.write("tail costs: %s  est %d\n" % ("".join("%x" % min(15, gp.cost() // 4) if gp.m else "(%x)" % (gp.cost() // 4) for gp in G),
                      sum(8 + max(8, gp.cost()) if gp.m else gp.cost() for gp in G)))
    sys.stderr.write("stores at gaps: %s of %d/%d\n" % ([g for g, gp in enumerate(G) for x in gp.mem if x.k == "st"][::4], nm, len(G)))
    if cfg.stamps == 4:
        sys.stderr.write("est segs: %s\n" % [sum(8 + max(8, gp.cost()) if gp.m else gp.cost() for gp in G[a_:b_]) for a_, b_ in zip(cfg.tst, cfg.tst[1:])])
    A("; ---- last tile, block by block, with the epilogue woven in ----")
    p1 = len(L)
    for g, gp in enumerate(G):
        if cfg.stamps == 5 and g == 0: L += xstamp(cfg)
        if cfg.stamps == 4 and g in cfg.tst: L += xstamp(cfg)
        if g == nm:
            L += stamp(cfg, 5)
            if cfg.stamps: A("s_waitcnt lgkmcnt(0)")
            A("s_nop 3")
        for t in "\n".join(gp.text()).split("\n"):
            if not t: continue
            pv_ = L[-1]
            if pv_.startswith("v_rcp_f32") or (pv_.startswith("v_exp_f32") and not gp.m): A("s_nop 0")
            A(t)
    L[p1:] = CK.fix(L[p1:], True)[0]
    ls = [Lz(b) if b in Z else vL[b] for b in range(4)]
    L += ["v_add_f32 v%d, v%d, v%d" % (t0, ls[0], ls[1]), "v_add_f32 v%d, v%d, v%d" % (t1, ls[2], ls[3]), "v_add_f32 v%d, v%d, v%d" % (t0, t0, t1),
          "v_cmp_nge_f32 vcc, s%d, v%d" % (sThr, t0), "s_cbranch_vccnz L_fallback"]
    if cfg.stamps:
        A("s_waitcnt vmcnt(0)")
        L += stamp(cfg, 6) + stamp(cfg, 1)
        A("s_waitcnt lgkmcnt(0)")
        A("s_lshl_b32 s%d, s2, 2" % sTmp)
        A("s_add_u32 s%d, s%d, s%d" % (sTmp, sTmp, sW))
        A("s_lshl_b32 s%d, s%d, 8" % (sTmp, sTmp))
        A("v_mov_b32 v%d, s%d" % (t0, sTmp))
        for kk in range(7):
            A("v_mov_b32 v%d, s%d" % (t2, sStamp + 2 * kk))
            A("v_mov_b32 v%d, s%d" % (t3, sStamp + 2 * kk + 1))
            A("global_store_dwordx2 v%d, v[%d:%d], s[44:45] offset:%d" % (t0, t2, t3, 8 * kk))
            A("s_nop 1")
        for kk in range(XS[0]):
            A("v_mov_b32 v%d, s%d" % (t2, 72 + 2 * kk))
            A("v_mov_b32 v%d, s%d" % (t3, 72 + 2 * kk + 1))
            A("global_store_dwordx2 v%d, v[%d:%d], s[44:45] offset:%d" % (t0, t2, t3, 192 + 8 * kk))
            A("s_nop 1")
        A("v_lshl_add_u32 v%d, v%d, 3, v%d" % (t0, vLane, t0))
        A("v_cmp_gt_u32 vcc, 16, v%d" % vLane)
        A("s_and_saveexec_b64 s[48:49], vcc")
        A("global_store_dwordx2 v%d, v[%d:%d], s[44:45] offset:64" % (t0, vStLo, vStRt))
    A("L_end:")
    A("s_endpgm")
    L += fallback(cfg)
    A('.section .rodata,"a"'); A(".p2align 6")
    A(".amdhsa_kernel %s_kernel" % NAME)
    A("  .amdhsa_next_free_vgpr 512"); A("  .amdhsa_next_free_sgpr 102"); A("  .amdhsa_accum_offset 256")
    A("  .amdhsa_group_segment_fixed_size 0"); A("  .amdhsa_kernarg_size 48"); A("  .amdhsa_user_sgpr_count 2")
    A("  .amdhsa_user_sgpr_kernarg_segment_ptr 1"); A("  .amdhsa_system_sgpr_workgroup_id_x 1")
    A(".end_amdhsa_kernel")
    return "\n".join(L) + "\n"

if __name__ == "__main__":
    ap = argparse.ArgumentParser()
    ap.add_argument("-o", default="cdna_kernels/%s.s" % NAME)
    ap.add_argument("opts", nargs="*")
    a = ap.parse_args()
    cfg = Cfg()
    for o in a.opts:
        k, v = o.split("=")
        cur = getattr(cfg, k)
        if isinstance(cur, str): v = (" " + v.replace("+", " ")) if v else ""
        elif isinstance(cur, tuple): v = tuple(int(x) for x in v.split(",")) if v else ()
        elif isinstance(cur, float): v = float(v)
        else: v = int(v)
        setattr(cfg, k, v)
    open(a.o, "w").write(build(cfg))
```

```python
import sys, struct, argparse
import check as CK

NAME = "standalone__gqa_softmax__near_ridge"
SLOT = 16640
BLK = 1040
STAGE = 2 * SLOT
LDS_BYTES = 9 * SLOT
OPITCH = 272
OREG = 64 * OPITCH

def f2u(x): return struct.unpack("<I", struct.pack("<f", x))[0]

class Cfg:
    stamps = 0
    ld_pol = " nt"
    st_pol = " sc0 sc1"
    thresh = 2.0 ** 60
    dmag = (10, 22, 34, 46, 58, 70, 82, 94)
    dmag0 = (46, 58, 70, 82, 93, 101, 109, 117)
    lat = 6
    pf = 17
    align = 5
    zset = (0, 2)
    ramp = 2
    lazy = 1
    clus = 50
    kgap = 0
    wins = (2,)
    order = " Q0 K0 V0 Q1 Q2 K1 Q3 V1 K2 V2 K3 V3 K4"
    tail = 7
    urg = 6.0
    elevel = 20
    stsp = 4
    progpk = 6
    xs = " K0 V0 Q1"
    tst = (0, 13, 23, 40, 78, 90, 100, 110)
    dist = 2
    levels = ()
    startv = 0
    pre = 6
    xr = (1, 2)
    winse = ()
    loose = 0
    dense = 1
    snake = 0
    bl2 = 3
    bl1 = 1

class I:
    def __init__(self, t, c=4, k="valu", w=None, need=None):
        self.t = t; self.c = c; self.k = k; self.w = w; self.need = need or []

def O(b, D): return 128 + 32 * b + 4 * D
def N(b): return 96 + 4 * b
def Qa(b, s): return 16 * b + 4 * s
KOV, VOV, SOV, POV = {}, {}, {}, {}
def Ka(u, kb2, s): return KOV.get(u, 64 + 32 * (u & 1)) + 16 * kb2 + 4 * s
def Va(u, D): return VOV.get(u, 128 + 32 * (u & 1)) + 4 * D
def S(u, b): return SOV.get((u, b), (44, 52, 112, 120)[b] if u & 1 else 64 + 8 * b)
def Pr(u, b): return POV.get((u, b), S(u, b))
vLane = 1
vK, vKl, vV, vVl = 2, 3, 4, 5
vDma = (6, 7, 8, 9)
vL = (10, 11, 12, 13)
vQrd, vOw, vOr = 14, 15, 16
vInv = (18, 20, 22, 24)
vT = (26, 27, 28, 29)
vStLo, vStRt = 30, 31
vOnes = 32
ZL = []
def Lz(b): return 36 + 4 * ZL.index(b)
vX = (17, 19)
vQd = (60, 61, 62, 63)
sW = 3
sSrdQ, sSrdK, sSrdV, sSrdO = 8, 12, 16, 20
sC, sThr, sWoff, sOff, sCur, sPrev = 24, 26, 27, 28, 29, 30
sOreg = 31
sK16 = (None, 32, 33, 34)
sPrev2 = 35
sTmp = 36
sWslot = 46
sIt = 47
sStamp = 56
sP, sK4, sLim = 54, 55, 39
sA, sB, sD = 29, 30, 35

def vr(a, n): return "v[%d:%d]" % (a, a + n - 1)
def ar(a, n): return "a[%d:%d]" % (a, a + n - 1)
def srd(a): return "s[%d:%d]" % (a, a + 3)
MF = "v_mfma_f32_16x16x32_bf16"

SNAKE = [0]
def mfma_qk(u, b, kb2, s, zero=False):
    d = vr(S(u, b) + 4 * kb2, 4)
    c = d if s else ("0" if zero else vr(N(b), 4))
    if SNAKE[0] and kb2: s = 3 - s
    return I("%s %s, %s, %s, %s" % (MF, d, ar(Ka(u, kb2, s), 4), ar(Qa(b, s), 4), c), 8, "mfma", need=[("K", u, kb2, s)])

def mfma_pv(u, b, D, zero=False):
    d = vr(O(b, D), 4)
    x = I("%s %s, %s, %s, %s" % (MF, d, ar(Va(u, D), 4), vr(Pr(u, b), 4), "0" if zero else d), 8, "mfma", need=[("V", u, D, 0), ("V", u, D, 1)])
    x.pneed = (u, b)
    return x

def mfma_sum(u, b, zero=False):
    d = vr(Lz(b), 4)
    x = I("%s %s, %s, %s, %s" % (MF, d, vr(vOnes, 4), vr(Pr(u, b), 4), "0" if zero else d), 8, "mfma")
    x.pneed = (u, b)
    return x

def k_reads(u, areg=vK, base=0):
    return [I("ds_read_b128 %s, v%d offset:%d" % (ar(Ka(u, kb2, s), 4), areg, base + 256 * (2 * (u & 1) + kb2) + 16 * s), 4, "ds", w=("K", u, kb2, s))
            for kb2 in range(2) for s in (range(3, -1, -1) if SNAKE[0] and kb2 else range(4))]

def v_reads(u, areg=vV, base=SLOT):
    return [I("ds_read_b64_tr_b16 %s, v%d offset:%d" % (ar(Va(u, D) + 2 * e, 2), areg, base + 256 * (2 * (u & 1) + e) + 16 * D), 4, "ds", w=("V", u, D, e))
            for D in range(8) for e in range(2)]

def dma_ins(cfg, srdreg, j, soff, regs=vDma):
    return I("buffer_load_dwordx4 v%d, %s, %s offen offset:%d%s lds" % (regs[j], srd(srdreg), soff, BLK * j, cfg.ld_pol), 8, "dma")

def sm_ins(kind, u, b, e):
    s = S(u, b)
    if kind == "F": x = I("v_add_f32 v%d, v%d, v%d" % (s + e, s + e, N(b)), 4)
    elif kind == "E": x = I("v_exp_f32 v%d, v%d" % (s + e, s + e), 8, "trans")
    elif kind == "A": x = I("v_add_f32 v%d, v%d, v%d" % (vL[b], vL[b], s + e), 4)
    else: x = I("v_cvt_pk_bf16_f32 v%d, v%d, v%d" % (Pr(u, b) + e, s + 2 * e, s + 2 * e + 1), 4)
    x.key = (u, b, kind, e)
    return x

def sm_plain(u, b, adds, withF=True, skip=()):
    out = []
    for j in range(6):
        for h in range(2):
            if j < 4 and withF: out.append(sm_ins("F", u, b, 2 * j + h))
            if 1 <= j <= 4: out.append(sm_ins("E", u, b, 2 * (j - 1) + h))
            if j >= 2 and adds: out.append(sm_ins("A", u, b, 2 * (j - 2) + h))
        if j >= 2: out.append(sm_ins("C", u, b, j - 2))
    return [x.t for x in out if x.key[1:] not in skip]

def xlane(op, r, t):
    return ["v_mov_b32 v%d, v%d" % (t, r), "s_nop 1", "v_permlane32_swap_b32 v%d, v%d" % (r, t), "%s v%d, v%d, v%d" % (op, r, r, t),
            "v_mov_b32 v%d, v%d" % (t, r), "s_nop 1", "v_permlane16_swap_b32 v%d, v%d" % (r, t), "%s v%d, v%d, v%d" % (op, r, r, t)]

def max_chain(u, b, dst, t):
    s = S(u, b)
    out = ["v_max3_f32 v%d, v%d, v%d, v%d" % (dst, s, s + 1, s + 2), "v_max3_f32 v%d, v%d, v%d, v%d" % (dst, dst, s + 3, s + 4),
           "v_max3_f32 v%d, v%d, v%d, v%d" % (dst, dst, s + 5, s + 6), "v_max_f32 v%d, v%d, v%d" % (dst, dst, s + 7)]
    return out + xlane("v_max_f32", dst, t)

class Gap:
    def __init__(self, m):
        self.m = m; self.salu = []; self.mem = []; self.valu = []; self.closed = False
    def cost(self):
        c = 0
        for i, x in enumerate(self.salu): c += x.c - (4 if i == 0 and self.m else 0)
        return c + sum(x.c for x in self.mem) + sum(x.c for x in self.valu)
    def text(self, lazy=False):
        body = self.salu + (self.valu + self.mem if lazy else self.mem + self.valu)
        return ([self.m.t] if self.m else []) + [x.t for x in body]

def add_waits(cfg, gaps, have):
    issued = []; covered = -1; idx = {}
    for g, gp in enumerate(gaps):
        for x in gp.salu:
            if x.k == "wait0": covered = len(issued) - 1
        nd = []
        if g + 1 < len(gaps) and gaps[g + 1].m: nd += gaps[g + 1].m.need
        for x in gp.mem: nd += x.need
        missing = [t for t in nd if t not in idx and t not in have]
        if missing: raise SystemExit("read not issued before use: %s gap %d" % (missing, g + 1))
        need = [idx[t] for t in nd if t in idx]
        if need and max(need) > covered:
            tgt = max(need)
            if issued[tgt][1] > g - cfg.lat: sys.stderr.write("warn: short ds latency at gap %d (issued %d)\n" % (g, issued[tgt][1]))
            for j in range(len(issued)):
                if issued[j][1] <= g - cfg.lat: tgt = max(tgt, j)
            n = min(15, len(issued) - 1 - tgt)
            gp.salu.insert(0, I("s_waitcnt lgkmcnt(%d)" % n, 4, "wait"))
            covered = len(issued) - 1 - n
        for x in gp.mem:
            if x.k in ("ds", "dsw"): idx[x.w] = len(issued); issued.append((x.w, g))

def epi_inv(cfg, b, z):
    if z: return [I("v_rcp_f32 v%d, v%d" % (vInv[b], Lz(b)), 8, "trans")]
    out = [I(t, 8 if t.startswith("s_nop") else 4) for t in xlane("v_add_f32", vL[b], vInv[b])]
    return out + [I("v_rcp_f32 v%d, v%d" % (vInv[b], vL[b]), 8, "trans")]

def epi_conv(b, D, packed):
    o = O(b, D); out = []
    if packed:
        for r in (0, 2): out.append(I("v_pk_mul_f32 %s, %s, %s op_sel_hi:[1,0]" % (vr(o + r, 2), vr(o + r, 2), vr(vInv[b], 2))))
    else:
        for r in range(4): out.append(I("v_mul_f32 v%d, v%d, v%d" % (o + r, o + r, vInv[b])))
    for k in range(2): out.append(I("v_cvt_pk_bf16_f32 v%d, v%d, v%d" % (o + k, o + 2 * k, o + 2 * k + 1)))
    return out

def epi_write(b, D): return I("ds_write_b64 v%d, %s offset:%d" % (vOw, vr(O(b, D), 2), 16 * OPITCH * b + 16 * D), 12, "dsw", w=("W", b, D))
def epi_read(b, j): return I("ds_read_b128 %s, v%d offset:%d" % (vr(O(b, j), 4), vOr, OPITCH * (16 * b + 4 * j)), 4, "ds", w=("R", b, j))
def epi_store(cfg, b, j):
    return I("buffer_store_dwordx4 %s, v%d, %s, %s offen offset:%d%s" % (vr(O(b, j), 4), vDma[j], srd(sSrdO),
             "s%d" % sK16[b] if b else "0", BLK * j, cfg.st_pol), 16, "st", need=[("R", b, j)])

def fallback(cfg):
    L = []; A = L.append
    KOV.clear(); VOV.clear(); SOV.clear(); POV.clear()
    A("; ---- exact fallback: online softmax with the true running maximum, one wave alone in its own LDS region ----")
    A("L_fallback:")
    A("s_waitcnt vmcnt(0) lgkmcnt(0)")
    fd = vQd
    A("v_lshlrev_b32 v%d, 4, v%d" % (fd[0], vLane))
    for j in range(1, 4): A("v_add_u32 v%d, %d, v%d" % (fd[j], 3056 * j, fd[0]))
    A("v_add_u32 v%d, s%d, v%d" % (vK, sOreg, vKl))
    A("v_add_u32 v%d, s%d, v%d" % (vV, sOreg, vVl))
    for r in range(128): A("v_mov_b32 v%d, 0" % (128 + r))
    for b in range(4):
        A("v_mov_b32 v%d, 0" % vL[b]); A("v_mov_b32 v%d, 0x7f7fffff" % N(b))
    A("s_mov_b32 s%d, 0" % sOff)
    A("L_fb_loop:")
    for sr in (sSrdK, sSrdV):
        for jj in range(4):
            A("s_add_u32 m0, s%d, %d" % (sOreg, 4 * BLK * jj))
            A("s_add_u32 s49, s%d, %d" % (sOff, 1024 * jj))
            for j in range(4): A(dma_ins(cfg, sr, j, "s49", fd).t)
        A("s_waitcnt vmcnt(0)")
        for u in range(2):
            for x in (k_reads(u, vK, 0) if sr == sSrdK else v_reads(u, vV, 0)): A(x.t)
            A("s_waitcnt lgkmcnt(0)")
    for u in range(2):
        for b in range(4):
            for kb2 in range(2):
                for s in range(4): A(mfma_qk(u, b, kb2, s, True).t)
        A("s_nop 15")
        for b in range(4):
            L += max_chain(u, b, vT[0], vT[1])
            A("v_sub_f32 v%d, 0, v%d" % (vT[0], vT[0]))
            A("v_min_f32 v%d, v%d, v%d" % (vT[0], vT[0], N(b)))
            A("v_sub_f32 v%d, v%d, v%d" % (vT[1], vT[0], N(b)))
            A("v_exp_f32 v%d, v%d" % (vT[1], vT[1]))
            A("v_mov_b32 v%d, v%d" % (N(b), vT[0]))
            A("v_mul_f32 v%d, v%d, v%d" % (vL[b], vL[b], vT[1]))
            for r in range(32): A("v_mul_f32 v%d, v%d, v%d" % (O(b, 0) + r, O(b, 0) + r, vT[1]))
            L += sm_plain(u, b, True)
        A("s_nop 1")
        for b in range(4):
            for D in range(8): A(mfma_pv(u, b, D).t)
        A("s_nop 15")
    A("s_add_u32 s%d, s%d, 16384" % (sOff, sOff))
    A("s_cmp_lt_u32 s%d, 262144" % sOff)
    A("s_cbranch_scc1 L_fb_loop")
    for b in range(4):
        L += [x.t for x in epi_inv(cfg, b, False)] + ["s_nop 0"]
        for D in range(8): L += [x.t for x in epi_conv(b, D, False)] + [epi_write(b, D).t]
        A("s_waitcnt lgkmcnt(0)")
        L += [epi_read(b, j).t for j in range(4)]
        A("s_waitcnt lgkmcnt(0)")
        L += [epi_store(cfg, b, j).t for j in range(4)]
    A("s_endpgm")
    return L

def stamp(cfg, idx):
    if not cfg.stamps: return []
    r = sStamp + 2 * idx
    return ["%s s[%d:%d]" % ("s_memrealtime" if idx < 2 else "s_memtime", r, r + 1)]

HEADER = """
Attention forward  out = softmax(q k^T / sqrt(128)) v,  B*H = 256 heads, Sq 256, Sk 1024, D 128, bf16 in / bf16 out.
Written with my own generator script (dev/gen7.py); every instruction and its placement comes from that script.
Kernarg: q @0, k @8, v @16, out @24, debug @32 (unused), ws @40 (unused).

One workgroup per head, 4 waves, one per SIMD; a wave owns 64 query rows = 4 blocks of 16.
K / V / Q reach LDS through LDS-DMA (1 KiB blocks, pitch 1040 B, 4-stage ring of 64-key K and V tiles).
S^T = K Q^T and O^T = V^T P^T use v_mfma_f32_16x16x32_bf16, so a lane always works on one query row:
  a[0:63] Q (pre-multiplied by log2(e)/sqrt(D)), a[64:127] K fragments, a[128:191] V fragments (transposing LDS reads),
  v[128:255] O accumulators, v[44:59] v[64:95] v[112:127] scores / packed probabilities, v[96:111] minus the row reference.
Softmax guard: the reference subtracted from a row is the true maximum of its first 64 scores (it enters through the
MFMA C operand).  Every probability is bounded by the row sum, so one check of the sums at the end proves that nothing
came near overflow; a wave that fails it redoes its rows in L_fallback with the true running maximum.
Row sums: VALU adds for two of the blocks, extra MFMAs against a ones matrix for the other two.
Layout of the code: tiles 0-1 in data-arrival order; L_loop0 = the instructions of L_loop in a looser order, for the
first trips (the chip throttles memory for the rest of the launch if the load rises too fast; the trip count follows
the die's parity because the odd dies clock lower - speed only, both loops give identical results); L_loop, one tile
per trip; then the end of the last tile, where finished blocks are normalised, transposed through LDS and stored
while the others still compute.
"""
XS = [0]
def xstamp(cfg):
    if cfg.stamps < 2 or XS[0] >= 8: return []
    r = 72 + 2 * XS[0]; XS[0] += 1
    if cfg.stamps == 3:
        return ["s_memtime s[%d:%d]" % (r, r + 1), "s_memrealtime s[90:91]", "s_waitcnt lgkmcnt(0)", "s_mov_b32 s%d, s90" % (r + 1)]
    return ["s_memtime s[%d:%d]" % (r, r + 1), "s_waitcnt lgkmcnt(0)"]

def build(cfg):
    Z = set(cfg.zset)
    ZL[:] = sorted(Z)
    SNAKE[0] = cfg.snake
    assert len(Z) <= 2
    L = []; A = L.append
    for t in HEADER.strip("\n").split("\n"): A(("; " + t).rstrip())
    A("; @launch grid=(256,1,1) block=(256,1,1) lds=%d" % LDS_BYTES)
    A('.amdgcn_target "amdgcn-amd-amdhsa--gfx950"')
    A(".text"); A(".globl %s_kernel" % NAME); A(".p2align 8"); A(".type %s_kernel,@function" % NAME)
    A("%s_kernel:" % NAME)
    t0, t1, t2, t3 = vT
    A("s_load_dwordx4 s[4:7], s[0:1], 0")
    A("s_load_dwordx4 s[40:43], s[0:1], 16")
    A("s_lshr_b32 s%d, s2, 8" % sTmp)
    A("s_cbranch_scc1 L_end")
    L += stamp(cfg, 0) + stamp(cfg, 2)
    if cfg.stamps: A("s_load_dwordx2 s[44:45], s[0:1], 40")
    if cfg.pf:
        A("s_getpc_b64 s[48:49]")
        A("v_lshlrev_b32 v%d, 7, v0" % t1)
        A("v_min_u32 v%d, %d, v%d" % (t1, cfg.pf * 1024, t1))
        A("global_load_dword v192, v%d, s[48:49]" % t1)
    A("v_lshrrev_b32 v%d, 6, v0" % t0)
    A("v_lshlrev_b32 v%d, 4, v0" % vDma[0])
    A("v_readfirstlane_b32 s%d, v%d" % (sW, t0))
    A("v_lshlrev_b32 v%d, 2, v0" % t0)
    A("v_and_b32 v%d, 0xc0, v%d" % (t0, t0))
    A("v_xor_b32 v%d, v%d, v%d" % (vQd[0], t0, vDma[0]))
    A("s_movk_i32 s%d, 3056" % (sTmp + 2))
    for j in range(1, 4): A("v_add_u32 v%d, s%d, v%d" % (vQd[j], sTmp + 2, vQd[j - 1]))
    A("s_mul_i32 s%d, s%d, %d" % (sWoff, sW, 4 * BLK))
    A("s_lshl_b32 s%d, s2, 16" % sTmp)
    A("s_mov_b32 s%d, 65536" % (sSrdQ + 2)); A("s_mov_b32 s%d, 0x20000" % (sSrdQ + 3))
    for j in range(1, 4): A("v_add_u32 v%d, s%d, v%d" % (vDma[j], sTmp + 2, vDma[j - 1]))
    A("s_lshl_b32 s%d, s2, 18" % (sTmp + 1))
    A("s_lshl_b32 s%d, s%d, 2" % (sSrdK + 2, sSrdQ + 2)); A("s_mov_b32 s%d, s%d" % (sSrdK + 3, sSrdQ + 3))
    def mk(sr, p, t):
        A("s_add_u32 s%d, s%d, s%d" % (sr, p, t))
        A("s_addc_u32 s%d, s%d, 0" % (sr + 1, p + 1))
    def grp(name):
        so = lambda j: "0" if j == 0 else ("s%d" % sK16[j] if j < 4 else "s%d" % (sOff if j == 2 + cfg.dist else sK4))
        j = int(name[1])
        if name[0] == "Q":
            return ["s_add_u32 m0, s%d, %d" % (sWoff, (5 + j) * SLOT), "s_nop 0"] + [dma_ins(cfg, sSrdQ, x, so(j), vQd).t for x in range(4)]
        sr, slot = (sSrdK, 2 * (j % 4)) if name[0] == "K" else (sSrdV, 2 * (j % 4) + 1)
        return ["s_add_u32 m0, s%d, %d" % (sWoff, slot * SLOT), "s_nop 0"] + [dma_ins(cfg, sr, x, so(j)).t for x in range(4)]
    order = cfg.order.split() + (["V4", "K5"] if cfg.dist == 3 else [])
    if cfg.startv == 1: order[5], order[6] = order[6], order[5]
    st = {"n": 0, "max": order.index("V2")}
    def top_up(done):
        w_ = cfg.wins[min(done, len(cfg.wins) - 1)]
        while st["n"] < min(st["max"], done + w_):
            L.extend(grp(order[st["n"]])); st["n"] += 1
    def wait_for(name):
        k = order.index(name)
        if name in cfg.xs.split() and cfg.stamps == 2: L.extend(xstamp(cfg))
        A("s_waitcnt vmcnt(%d)" % (4 * (st["n"] - k - 1)))
        if name[0] != "Q": A("s_barrier")
        if name in cfg.xs.split() and cfg.stamps < 4: L.extend(xstamp(cfg))
        return k + 1
    sPar = 53
    pe = {"n": 0, "lab": 0}
    def par_branch(odd_lines, even_lines):
        if odd_lines == even_lines: L.extend(odd_lines); return
        k = pe["lab"]; pe["lab"] += 1
        A("s_cmp_lg_u32 s%d, 0" % sPar)
        A("s_cbranch_scc1 L_po%d" % k)
        L.extend(even_lines)
        if odd_lines:
            A("s_branch L_pj%d" % k)
        A("L_po%d:" % k)
        L.extend(odd_lines)
        if odd_lines: A("L_pj%d:" % k)
    if cfg.winse: A("s_getreg_b32 s%d, hwreg(HW_REG_XCC_ID, 0, 1)" % sPar)
    g0 = grp(order[0])
    A(g0[0])
    A("s_waitcnt lgkmcnt(0)")
    mk(sSrdQ, 4, sTmp)
    L.extend(g0[2:])
    g1 = grp(order[1])
    if cfg.winse and cfg.winse[0] == 1:
        mk(sSrdK, 6, sTmp + 1); par_branch(g1, []); st["n"] = 2; pe["n"] = 1
    else:
        A(g1[0]); mk(sSrdK, 6, sTmp + 1); L.extend(g1[2:]); st["n"] = 2; pe["n"] = 2
    L.extend(["v_and_b32 v%d, 63, v0" % vLane, "s_mul_i32 s%d, s%d, %d" % (sOreg, sW, OREG),
              "s_mov_b32 s%d, s%d" % (sSrdV + 2, sSrdK + 2), "s_mov_b32 s%d, s%d" % (sSrdV + 3, sSrdQ + 3),
              "s_mov_b32 s%d, s%d" % (sSrdO + 2, sSrdQ + 2), "s_mov_b32 s%d, s%d" % (sSrdO + 3, sSrdQ + 3)])
    L.extend(["s_mov_b32 s%d, %d" % (sK16[j], 16384 * j) for j in range(1, 4)])
    mk(sSrdV, 40, sTmp + 1)
    if cfg.winse:
        k_ = len(L); top_up(0); odd_ = L[k_:]; del L[k_:]
        par_branch(odd_, [])
    else: top_up(0)
    mk(sSrdO, 42, sTmp)
    A("v_bfe_u32 v%d, v%d, 2, 2" % (t0, vLane))
    A("v_lshrrev_b32 v%d, 1, v%d" % (t1, t0))
    A("v_xor_b32 v%d, v%d, v%d" % (t1, t0, t1))
    A("v_and_b32 v%d, 3, v%d" % (t2, vLane))
    A("v_lshrrev_b32 v%d, 4, v%d" % (t3, vLane))
    A("v_and_b32 v%d, 1, v%d" % (vX[0], t3))
    A("v_lshrrev_b32 v%d, 1, v%d" % (vX[1], t3))
    A("v_lshl_add_u32 v%d, v%d, 1, v%d" % (vX[0], vX[0], vX[1]))
    A("v_lshl_add_u32 v%d, v%d, 2, v%d" % (vKl, t1, t2))
    A("v_mul_u32_u24 v%d, %d, v%d" % (vKl, BLK, vKl))
    A("v_lshl_add_u32 v%d, v%d, 6, v%d" % (vKl, vX[0], vKl))
    A("v_mul_u32_u24 v%d, %d, v%d" % (vQrd, BLK, t2))
    A("v_lshl_add_u32 v%d, v%d, 8, v%d" % (vQrd, t1, vQrd))
    A("v_xor_b32 v%d, v%d, v%d" % (vX[0], vX[0], t1))
    A("v_lshl_add_u32 v%d, v%d, 6, v%d" % (vQrd, vX[0], vQrd))
    A("v_add_u32 v%d, s%d, v%d" % (vQrd, sWoff, vQrd))
    A("v_add_u32 v%d, %d, v%d" % (vQrd, 5 * SLOT, vQrd))
    A("v_lshl_add_u32 v%d, v%d, 2, v%d" % (vOw, t2, t1))
    A("v_mul_u32_u24 v%d, %d, v%d" % (vOw, OPITCH, vOw))
    A("v_lshl_add_u32 v%d, v%d, 7, v%d" % (vOw, vX[1], vOw))
    A("v_and_b32 v%d, 1, v%d" % (vX[0], t3))
    A("v_lshl_add_u32 v%d, v%d, 3, v%d" % (vOw, vX[0], vOw))
    A("v_add_u32 v%d, s%d, v%d" % (vOw, sOreg, vOw))
    A("v_mul_u32_u24 v%d, %d, v%d" % (vOr, OPITCH, t3))
    A("v_and_b32 v%d, 15, v%d" % (vX[0], vLane))
    A("v_lshl_add_u32 v%d, v%d, 4, v%d" % (vOr, vX[0], vOr))
    A("v_add_u32 v%d, s%d, v%d" % (vOr, sOreg, vOr))
    A("v_xor_b32 v%d, v%d, v%d" % (vX[1], t3, vX[1]))
    A("v_lshl_add_u32 v%d, v%d, 2, v%d" % (vVl, vX[1], t0))
    A("v_mul_u32_u24 v%d, %d, v%d" % (vVl, BLK, vVl))
    A("v_lshrrev_b32 v%d, 1, v%d" % (vX[0], t2))
    A("v_lshl_add_u32 v%d, v%d, 7, v%d" % (vVl, vX[0], vVl))
    A("v_and_b32 v%d, 1, v%d" % (vX[0], t2))
    A("v_lshl_add_u32 v%d, v%d, 3, v%d" % (vVl, vX[0], vVl))
    A("v_add_u32 v%d, %d, v%d" % (vK, 2 * STAGE, vKl))
    A("v_add_u32 v%d, %d, v%d" % (vV, 2 * STAGE, vVl))
    cbits = f2u(1.4426950408889634 * 128 ** -0.5)
    A("s_mov_b32 s%d, 0x%08x" % (sC, cbits)); A("s_mov_b32 s%d, 0x%08x" % (sC + 1, cbits))
    A("s_mov_b32 s%d, 0x%08x" % (sThr, f2u(cfg.thresh)))
    A("s_mov_b32 s%d, %d" % (sOff, (2 + cfg.dist) * 16384))
    if cfg.dist == 3: A("s_mov_b32 s%d, %d" % (sK4, 4 * 16384)); A("s_mov_b32 s%d, %d" % (sP, 2 * STAGE))
    A("s_mov_b32 s%d, %d" % (sA, 3 * STAGE)); A("s_mov_b32 s%d, 0" % sB); A("s_mov_b32 s%d, %d" % (sD, STAGE))
    if cfg.xr:
        A("s_getreg_b32 s%d, hwreg(HW_REG_XCC_ID, 0, 1)" % sLim)
        A("s_cmp_lg_u32 s%d, 0" % sLim)
        A("s_mov_b32 s%d, %d" % (sLim, (cfg.xr[0] + 2 + cfg.dist) * 16384))
        A("s_cselect_b32 s%d, s%d, %d" % (sLim, sLim, (cfg.xr[1] + 2 + cfg.dist) * 16384))
    if cfg.stamps: A("s_mov_b32 s%d, -1" % sIt)
    for b in range(4): A("v_mov_b32 v%d, 0" % vL[b])
    for r in range(4): A("v_mov_b32 v%d, 0x3f803f80" % (vOnes + r))
    if cfg.stamps: A("v_mov_b32 v%d, 0" % vStLo); A("v_mov_b32 v%d, 0" % vStRt)

    class TL:
        def __init__(self): self.G = []; self.qk = {}; self.pv = {}; self.done = {}
        def qkt(self, T, b):
            for u in (2 * T, 2 * T + 1):
                self.qk[(u, b)] = len(self.G)
                self.G += [Gap(mfma_qk(u, b, kb2, s)) for kb2 in range(2) for s in range(4)]
        def pvt(self, T, b):
            us = (2 * T, 2 * T + 1)
            for u in us: self.pv[(u, b)] = len(self.G)
            if b in Z:
                for u in us: self.G.append(Gap(mfma_sum(u, b)))
                self.done[(b, 8)] = len(self.G) - 1
            for D in range(8):
                for u in us: self.G.append(Gap(mfma_pv(u, b, D)))
                self.done[(b, D)] = len(self.G) - 1
        def body(self, T):
            self.pvt(T, 3); self.qkt(T + 1, 2); self.pvt(T + 1, 0); self.qkt(T + 1, 3)
            self.pvt(T + 1, 1); self.qkt(T + 2, 0); self.pvt(T + 1, 2); self.qkt(T + 2, 1)
    NB = 128 + 2 * len(Z)
    def vt_reads(T, areg=vV, base=SLOT):
        return sorted(v_reads(2 * T, areg, base) + v_reads(2 * T + 1, areg, base), key=lambda x: (x.w[2], x.w[1], x.w[3]))
    def kt_reads(T, areg=vK, base=0): return k_reads(2 * T, areg, base) + k_reads(2 * T + 1, areg, base)

    def body_fixed(G):
        G[0].salu.append(I("s_waitcnt vmcnt(%d)" % (8 * (cfg.dist - 1)), 4, "wait"))
        G[0].salu.append(I("s_barrier", 12, "bar")); G[0].closed = True
        vd, kd = cfg.dmag[:4], cfg.dmag[4:]
        G[vd[0] - 1].salu.append(I("s_add_u32 m0, m0, %d" % SLOT, 4, "salu"))
        for j, g in enumerate(vd): G[g].mem.append(dma_ins(cfg, sSrdV, j, "s%d" % sOff)); G[g].closed = True
        G[vd[3] + 1].salu.append(I("s_add_u32 s%d, s%d, 16384" % (sOff, sOff), 4, "salu"))
        assert kd[0] - 1 > vd[3] + 1
        G[kd[0] - 1].salu.append(I("s_add_u32 m0, s%d, s%d" % (sD if cfg.dist == 2 else sP, sWoff), 4, "salu"))
        for j, g in enumerate(kd): G[g].mem.append(dma_ins(cfg, sSrdK, j, "s%d" % sOff)); G[g].closed = True
        seq = ["s_mov_b32 s%d, s%d" % (sA, sB), "s_mov_b32 s%d, s%d" % (sB, sD), "s_add_u32 s%d, s%d, %d" % (sD, sD, STAGE),
               "s_cmp_eq_u32 s%d, %d" % (sD, 4 * STAGE), "s_cselect_b32 s%d, 0, s%d" % (sD, sD)]
        assert kd[0] < NB - 13
        if cfg.dist == 3: G[NB - 13].salu.append(I("s_mov_b32 s%d, s%d" % (sP, sA), 4, "salu"))
        for j, t in enumerate(seq): G[NB - 12 + j].salu.append(I(t, 4, "salu"))
        G[NB - 3].salu.append(I("s_cmp_lt_u32 s%d, LIMIT" % sOff, 4, "salu"))
        if cfg.stamps and cfg.stamps != 5:
            G[NB - 6].salu.append(I("s_memtime s[50:51]", 4, "salu"))
            G[NB - 5].salu.append(I("s_memrealtime s[52:53]", 4, "salu"))
            G[NB - 14].salu.append(I("s_add_u32 s%d, s%d, 1" % (sIt, sIt), 4, "salu"))
        G[NB - 2].salu.append(I("s_waitcnt lgkmcnt(0)", 4, "wait0"))
        G[NB - 1].salu.append(I("s_cbranch_scc1 LOOP", 28, "br")); G[NB - 1].closed = True

    NSIM = 14
    T = TL()
    for i in range(1, NSIM + 1): T.body(i)
    G = T.G
    for i in range(NSIM): body_fixed(G[i * NB:(i + 1) * NB])
    lastuse = {}; firstuse = {}
    for g, gp in enumerate(G):
        for t in gp.m.need: lastuse[t] = g; firstuse.setdefault(t, g)
    blocks = sorted(T.qk, key=lambda k: T.qk[k])
    el = [(u, b, e) for (u, b) in blocks for e in range(8)]
    Dq = []
    for i in range(1, NSIM + 1):
        base = (i - 1) * NB
        rd = vt_reads(i + 1) + kt_reads(i + 2)
        for j, x in enumerate(rd):
            old = (x.w[0], x.w[1] - 2) + x.w[2:]
            dflt = base + 1 if x.w[0] == "V" else T.qk[(2 * i + 2, 3)] + j - 32
            x.rel = max(base + 1, lastuse.get(old, dflt))
            x.dead = min(firstuse.get(x.w, 1 << 30) - cfg.lat - 1, base + NB - 16)
            x.last = None
        rd[31].last = "V"; rd[47].last = "K"
        Dq += rd
    for j in range(len(Dq) - 2, -1, -1): Dq[j].dead = min(Dq[j].dead, Dq[j + 1].dead - 1)
    at = {}
    pE = 0; Aq = []; Cq = []; Xq = []; pD = 0
    def readyX(g):
        out = []
        if Cq:
            u, b, k = Cq[0]
            okA = (b in Z) or all((u, b, "A", e) in at for e in range(k + 1))
            if at.get((u, b, "E", 2 * k + 1), 1 << 30) < g and okA: out.append("C")
        if Xq and Xq[0][0] <= g: out.append("X")
        if Aq and at[Aq[0][:2] + ("E", Aq[0][2])] < g: out.append("A")
        return out
    def takeX(kind, g):
        if kind == "C": u, b, k = Cq.pop(0); x = sm_ins("C", u, b, k)
        elif kind == "A": u, b, e = Aq.pop(0); x = sm_ins("A", u, b, e)
        else: return Xq.pop(0)[1]
        at[x.key] = g
        return x
    prevE = False
    for g, gp in enumerate(G):
        if gp.closed: prevE = False; continue
        eok = False
        if pE < len(el):
            u, b, e = el[pE]
            eok = g >= T.qk[(u, b)] + (3 if e < 4 else 7) + 4
        nD = sum(1 for j in (pD, pD + 1) if j < len(Dq) and Dq[j].rel <= g)
        backlog = len(Aq) + len(Cq) + len([1 for x in Xq if x[0] <= g])
        urgent = nD and Dq[pD].dead <= g
        prevD = g > 0 and any(x.k == "ds" for x in G[g - 1].mem)
        have4 = (0 if (prevD and not urgent) else nD) + backlog
        if eok and not urgent and (have4 < 2 or not prevE):
            x = sm_ins("E", u, b, e); at[x.key] = g; gp.valu.append(x); pE += 1
            if b not in Z: Aq.append((u, b, e))
            if e & 1: Cq.append((u, b, e // 2))
            prevE = True
            continue
        prevE = False
        slots = 2
        while slots:
            rx = readyX(g)
            dok = pD < len(Dq) and Dq[pD].rel <= g and not gp.valu
            backlog = len(Aq) + len(Cq) + len(Xq)
            urg2 = dok and Dq[pD].dead <= g + 2
            if dok and (urg2 or not rx or (slots == 2 and backlog <= cfg.bl2) or (slots == 1 and backlog <= cfg.bl1)):
                x = Dq[pD]; pD += 1; gp.mem.append(x); x.at = g
                if x.last == "K": Xq.append((g + 1, I("v_add_u32 v%d, s%d, v%d" % (vK, sB, vKl))))
                if x.last == "V": Xq.append((g + 1, I("v_add_u32 v%d, s%d, v%d" % (vV, sA, vVl))))
            elif rx: gp.valu.append(takeX(rx[0], g))
            else: break
            slots -= 1
    ref = NSIM - 2
    add_waits(cfg, G, {x.w for x in vt_reads(1) + kt_reads(2)})
    body = G[(ref - 1) * NB:ref * NB]
    prev = G[(ref - 2) * NB:(ref - 1) * NB]
    costs = [gp.cost() for gp in body]
    sys.stderr.write("gap costs: %s\n           %s\n est cycles/tile %d\n" % ("".join("%x" % min(15, c // 4) for c in costs),
        "".join("E" if gp.valu and gp.valu[0].k == "trans" else ("m" if gp.mem and gp.mem[0].k == "dma" else str(len(gp.mem))) for gp in body), sum(8 + max(8, c) for c in costs)))
    assert [x.text() for x in body] == [x.text() for x in prev], "schedule not periodic"
    slack = 999
    for g, gp in enumerate(G[:NB * (NSIM - 1)]):
        if hasattr(gp.m, "pneed") and gp.m.pneed in T.qk:
            u, b = gp.m.pneed
            slack = min(slack, g - 1 - at[(u, b, "C", 3)])
    sys.stderr.write("P slack %d\n" % slack)
    assert slack > 0, "P late"
    for (u, b), g in T.qk.items():
        if (u - 2, b) in T.qk and b not in Z and g < NB * (NSIM - 1): assert at[(u - 2, b, "A", 7)] < g
    va = [g for g, gp in enumerate(body) for x in gp.valu if x.t.startswith("v_add_u32")]
    assert len(va) == 2 and max(va) < NB - 12, va
    u0 = 2 * (ref + 1)
    entry = (ref - 1) * NB
    pendset = {(x.key[0] - u0,) + x.key[1:] for gp in G[entry:] for x in gp.valu if hasattr(x, "key") and T.qk[x.key[:2]] < entry}
    sys.stderr.write("pending blocks: %s\n" % sorted({k[:2] for k in pendset}))
    if cfg.stamps and cfg.stamps != 5:
        body[NB - 4].valu.append(I("v_cmp_eq_u32 vcc, s%d, v%d" % (sIt, vLane)))
        for t in ("v_mov_b32 v%d, s50" % vX[0], "v_mov_b32 v%d, s52" % vX[1], "v_cndmask_b32 v%d, v%d, v%d, vcc" % (vStLo, vStLo, vX[0]),
                  "v_cndmask_b32 v%d, v%d, v%d, vcc" % (vStRt, vStRt, vX[1])): body[NB - 2].valu.append(I(t))
    if cfg.tail == 99: return ""

    def pour2(G, streams, at):
        g = 0
        dead = [next((x.dead for x in st_ if hasattr(x, "dead")), None) for st_ in streams]
        def rem(i):
            c = 0
            for x in streams[i]:
                c += x.c
                if hasattr(x, "dead"): return c
            return 0
        while any(streams):
            if g >= len(G): G.append(Gap(None))
            gp = G[g]
            while True:
                ready = [i for i, st_ in enumerate(streams) if st_ and st_[0].lo(at) <= g]
                if not ready: break
                need = {}
                for i in ready:
                    if dead[i] is not None and rem(i):
                        assert dead[i] >= g, "deadline missed"
                        w = sum(rem(j) for j in range(len(streams)) if dead[j] is not None and dead[j] <= dead[i])
                        need[i] = w / float(dead[i] - g - 1) if dead[i] - g - 1 >= 1 else 999
                vc = sum(x.c for x in gp.valu if hasattr(x, "key") and len(x.key) == 4)
                urgent = [i for i in sorted(need, key=lambda i: dead[i]) if need[i] >= cfg.urg and vc < need[i]]
                pick = None
                if urgent: pick = urgent[0]
                elif gp.cost() < (8 if gp.m else 16): pick = ready[0]
                else:
                    ep = [i for i in ready if dead[i] is None]
                    if ep and gp.cost() < cfg.elevel: pick = ep[0]
                if pick is None: break
                if getattr(streams[pick][0], "burst", False) and gp.cost() < 16:
                    oth = [i for i in ready if i != pick and not getattr(streams[i][0], "burst", False)]
                    if oth: pick = oth[0]
                x = streams[pick].pop(0)
                gp.valu.append(x)
                if hasattr(x, "key"): at[x.key] = g
                if hasattr(x, "after"): x.after(g)
            g += 1

    def sm_queue(u, b, qk, pv, skip=lambda k: False):
        out = []
        seq = []
        for j in range(6):
            for h in range(2):
                if j < 4: seq.append(("E", 2 * j + h))
                if j >= 1 and j <= 4 and b not in Z: seq.append(("A", 2 * (j - 1) + h))
            if 1 <= j <= 4: seq.append(("C", j - 1))
        for kind, e in seq:
            if skip((b, kind, e)): continue
            x = sm_ins(kind, u, b, e)
            if kind == "E":
                rel = qk[(u, b)] + (3 if e < 4 else 7) + 3 if (u, b) in qk else 0
                x.lo = lambda at, rel=rel: rel
            elif kind == "A": x.lo = lambda at, k=(u, b, "E", e): at.get(k, -9) + 1
            else:
                x.lo = lambda at, k=(u, b, "E", 2 * e + 1): at.get(k, -9) + 1
                if e == 3 and (u, b) in pv: x.dead = pv[(u, b)] - 2
            out.append(x)
        return out

    def make_first():
        out = []
        for gp in body:
            n = Gap(gp.m); n.salu = [x for x in gp.salu if not (x.k == "wait" and "lgkm" in x.t)]
            n.valu = list(gp.valu); n.mem = [x for x in gp.mem if x.k != "ds"]
            out.append(n)
        if cfg.dmag0 != cfg.dmag:
            dm = [x for n in out for x in n.mem]
            mv = {}
            for n in out:
                n.mem = []
                for x in list(n.salu):
                    if x.t.startswith("s_add_u32 m0, m0"): mv["mV"] = x; n.salu.remove(x)
                    elif x.t.startswith("s_add_u32 m0, s"): mv["mK"] = x; n.salu.remove(x)
                    elif x.t.startswith("s_add_u32 s%d, s%d, 16384" % (sOff, sOff)): mv["off"] = x; n.salu.remove(x)
            for x, g in zip(dm, cfg.dmag0): out[g].mem.append(x)
            assert cfg.dmag0[3] + 1 < cfg.dmag0[4] - 1 < NB - 13
            out[cfg.dmag0[0] - 1].salu.append(mv["mV"]); out[cfg.dmag0[3] + 1].salu.append(mv["off"]); out[cfg.dmag0[4] - 1].salu.append(mv["mK"])
        if cfg.clus:
            import re as _re
            def rs(x): return set(sum((CK.regs(t) for t in _re.findall(r"v\[\d+:\d+\]|v\d+", x.t)), []))
            g = 1; n = 0; acc = 0
            while g < NB - 6:
                a_, b_ = out[g], out[g + 1]
                ok = a_.valu and b_.valu and not a_.mem and not b_.mem and \
                     not (set().union(*[rs(x) for x in a_.valu if x.k == "trans"] or [set()]) & set().union(*[rs(x) for x in b_.valu]))
                if ok:
                    acc += cfg.clus
                    if acc >= 100:
                        acc -= 100
                        b_.valu = a_.valu + b_.valu; a_.valu = []; n += 1
                    g += 2
                else: g += 1
            sys.stderr.write("clustered pairs: %d\n" % n)
        addr = {}
        for g, gp in enumerate(out):
            for x in gp.valu:
                if x.t.startswith("v_add_u32 v%d," % vK): addr["K"] = g
                if x.t.startswith("v_add_u32 v%d," % vV): addr["V"] = g
        use = {}
        for g, gp in enumerate(body):
            for t in gp.m.need: use.setdefault(t, g)
        moved = []; lastg = 0
        for g, gp in enumerate(body):
            for x in gp.mem:
                if x.k != "ds": continue
                h0 = h = max(g, lastg)
                assert x.w[0] == "V" or h > cfg.kgap
                if cfg.lazy:
                    lim = use[x.w] - 4
                    while h <= lim and (not out[h].valu or out[h].mem): h += 1
                    if h > lim:
                        h = h0
                        while out[h].mem and out[h].mem[0].k != "ds": h += 1
                while out[h].mem and out[h].mem[0].k != "ds": h += 1
                out[h].mem.append(x); lastg = h
                if x.last: moved.append((x.last, h))
        for kind, h in moved:
            g = addr[kind]
            if g <= h:
                y = [x for x in out[g].valu if x.t.startswith("v_add_u32 v%d," % (vK if kind == "K" else vV))][0]
                out[g].valu.remove(y); out[h + 1].valu.append(y)
                assert h + 1 < NB - 12
        if cfg.kgap:
            out[0].salu[0] = I("s_waitcnt vmcnt(%d)" % (8 * cfg.dist - 4), 4, "wait")
            nk = sum(1 for g in cfg.dmag0 if g < cfg.kgap)
            out[cfg.kgap].salu += [I("s_waitcnt vmcnt(%d)" % (8 * (cfg.dist - 1) + nk), 4, "wait"), I("s_barrier", 12, "bar")]
        c2 = Cfg(); c2.lat = 2
        add_waits(c2, out, {x.w for x in vt_reads(ref) + kt_reads(ref + 1)})
        return out

    p0 = len(L)
    KOV.update({0: 128, 1: 160}); VOV.update({0: 192, 1: 224})
    W0 = "s_waitcnt lgkmcnt(0)"
    def q_read(b): return ["ds_read_b128 %s, v%d offset:%d" % (vr(O(b, s), 4), vQrd, SLOT * b + 16 * s) for s in range(4)]
    def q_scale(b):
        out = []; raw = O(b, 0); tmp = O(b, 4)
        for h in range(2):
            for r in range(8):
                out.append("v_lshlrev_b32 v%d, 16, v%d" % (tmp + 2 * r, raw + 8 * h + r))
                out.append("v_and_b32 v%d, 0xffff0000, v%d" % (tmp + 2 * r + 1, raw + 8 * h + r))
            for r in range(8): out.append("v_pk_mul_f32 %s, %s, s[%d:%d]" % (vr(tmp + 2 * r, 2), vr(tmp + 2 * r, 2), sC, sC + 1))
            for r in range(8): out.append("v_cvt_pk_bf16_f32 v%d, v%d, v%d" % (raw + 8 * h + r, tmp + 2 * r, tmp + 2 * r + 1))
            for r in range(8): out.append("v_accvgpr_write_b32 a%d, v%d" % (Qa(b, 0) + 8 * h + r, raw + 8 * h + r))
        return out
    def grab(fn, *a):
        k = len(L); fn(*a); out = [t for t in L[k:] if t != "s_nop 0"]; del L[k:]
        return out
    def mix(ms, fill=(), lead=0, mem=()):
        fill = list(fill); n = len(ms) - lead; k = 0; mem = list(mem); km = 0
        for j, m in enumerate(ms):
            A(m.t)
            em = (len(mem) * (j + 1)) // len(ms)
            L.extend(mem[km:em]); km = em
            if j >= lead:
                e = (len(fill) * (j - lead + 1)) // n
                L.extend(fill[k:e]); k = e
    def qk(u, b): return [mfma_qk(u, b, kb2, s, u < 2) for kb2 in range(2) for s in range(4)]
    def pv(u, b): return [mfma_pv(u, b, D, u == 0) for D in range(8)] + ([mfma_sum(u, b, u == 0)] if b in Z else [])
    def pv2(u, b): return [m for pair in zip(pv(u, b), pv(u + 1, b)) for m in pair]
    def sm(u, b): return sm_plain(u, b, b not in Z, u < 2, {k[1:] for k in pendset if k[0] + 4 == u})
    def rowmax(b):
        s0, s1 = S(0, b), S(1, b)
        v = [s0 + e for e in range(8)] + [s1 + e for e in range(8)]
        out = ["v_max3_f32 v%d, v%d, v%d, v%d" % (t0, v[0], v[1], v[2])]
        for e in range(3, 15, 2): out.append("v_max3_f32 v%d, v%d, v%d, v%d" % (t0, t0, v[e], v[e + 1]))
        out.append("v_max_f32 v%d, v%d, v%d" % (t0, t0, v[15]))
        out += xlane("v_max_f32", t0, t1)
        return out + ["v_sub_f32 v%d, 0, v%d" % (N(b) + r, t0) for r in range(4)]
    def ev(name, reads, unlock=None):
        k = order.index(name)
        if cfg.winse and k < len(cfg.winse):
            par_branch(["s_waitcnt vmcnt(%d)" % (4 * (st["n"] - k - 1))], ["s_waitcnt vmcnt(%d)" % (4 * (pe["n"] - k - 1))])
            if name[0] != "Q": A("s_barrier")
            if unlock: st["max"] = order.index(unlock)
            L.extend(reads[:16])
            k_ = len(L); top_up(k + 1); odd_ = L[k_:]; del L[k_:]
            tgt = k + 1 + cfg.winse[k + 1] if k + 1 < len(cfg.winse) else st["n"]
            ev_ = []
            while pe["n"] < tgt: ev_ += grp(order[pe["n"]]); pe["n"] += 1
            par_branch(odd_, ev_)
            L.extend(reads[16:])
            return
        if order.index(name) >= cfg.pre: top_up(order.index(name) + 1)
        d = wait_for(name)
        if unlock: st["max"] = order.index(unlock) if unlock in order else len(order)
        L.extend(reads[:16]); top_up(d); L.extend(reads[16:])
    def tx(xs): return [x.t for x in xs]
    ev("Q0", q_read(0))
    L += stamp(cfg, 3)
    A(W0); L += q_scale(0)
    ev("K0", tx(kt_reads(0, vKl, 0)), "K3")
    A("s_waitcnt lgkmcnt(8)"); mix(qk(0, 0)); A(W0); mix(qk(1, 0))
    L += rowmax(0) + sm(0, 0) + sm(1, 0)
    ev("V0", tx(vt_reads(0, vVl, SLOT)))
    A(W0); mix(pv2(0, 0))
    ev("Q1", q_read(1))
    A(W0); L += q_scale(1); mix(qk(0, 1) + qk(1, 1)); L += rowmax(1) + sm(0, 1); mix(pv(0, 1), sm(1, 1))
    ev("Q2", q_read(2))
    mix(pv(1, 1))
    A(W0); L += q_scale(2); mix(qk(0, 2) + qk(1, 2)); L += rowmax(2) + sm(0, 2); mix(pv(0, 2), sm(1, 2))
    if cfg.startv == 1:
        ev("Q3", q_read(3))
        mix(pv(1, 2))
        A(W0); L += q_scale(3); mix(qk(0, 3) + qk(1, 3)); L += rowmax(3) + sm(0, 3); mix(pv(0, 3), sm(1, 3))
        ev("K1", tx(kt_reads(1, vKl, STAGE)), "end")
        mix(pv(1, 3))
        A("s_waitcnt lgkmcnt(8)"); mix(qk(2, 0)); A(W0)
        mix(qk(3, 0) + qk(2, 1) + qk(3, 1), sm(2, 0) + sm(3, 0), 2)
        mix(qk(2, 2) + qk(3, 2), sm(2, 1) + sm(3, 1))
        ev("V1", tx(vt_reads(1, vVl, STAGE + SLOT)))
        mix(qk(2, 3) + qk(3, 3), sm(2, 2) + sm(3, 2))
    else:
        if cfg.dense & 4:
            d = wait_for("K1"); st["max"] = len(order)
            mix(pv(1, 2), mem=tx(kt_reads(1, vKl, STAGE)))
            A("s_waitcnt lgkmcnt(8)"); mix(qk(2, 0), mem=grab(top_up, d)); A(W0)
        else:
            ev("K1", tx(kt_reads(1, vKl, STAGE)), "end")
            mix(pv(1, 2))
            A("s_waitcnt lgkmcnt(8)"); mix(qk(2, 0)); A(W0)
        mix(qk(3, 0) + qk(2, 1) + qk(3, 1), sm(2, 0) + sm(3, 0), 2)
        mix(qk(2, 2) + qk(3, 2), sm(2, 1) + sm(3, 1))
        ev("Q3", q_read(3))
        L += sm(2, 2)
        A(W0); L += q_scale(3); mix(qk(0, 3) + qk(1, 3), sm(3, 2)); L += rowmax(3) + sm(0, 3)
        mix(pv(0, 3), sm(1, 3))
        if cfg.dense & 2:
            d = wait_for("V1")
            mix(pv(1, 3) + qk(2, 3), mem=tx(vt_reads(1, vVl, STAGE + SLOT)))
            mix(qk(3, 3), mem=grab(top_up, d))
        else:
            ev("V1", tx(vt_reads(1, vVl, STAGE + SLOT)))
            mix(pv(1, 3)); mix(qk(2, 3) + qk(3, 3))
    A(W0)
    mix(pv2(2, 0), sm(2, 3))
    ev("K2", tx(kt_reads(2)))
    A("v_add_u32 v%d, %d, v%d" % (vK, 3 * STAGE, vKl))
    if cfg.loose >= 2: L += sm(3, 3); mix(pv2(2, 1))
    else: mix(pv2(2, 1), sm(3, 3))
    A(W0)
    if cfg.loose:
        mix(qk(4, 0) + qk(5, 0)); L += sm(4, 0); mix(pv2(2, 2)); L += sm(5, 0)
        top_up(99)
        mix(qk(4, 1) + qk(5, 1)); L += sm(4, 1) + sm(5, 1)
    else:
        mix(qk(4, 0))
        mix(qk(5, 0) + pv2(2, 2) + qk(4, 1), sm(4, 0) + sm(5, 0), 2, mem=grab(top_up, 99) if cfg.dense & 1 else [])
        top_up(99)
        mix(qk(5, 1), sm(4, 1), 2)
        L += sm(5, 1)
    assert st["n"] == len(order)
    L += stamp(cfg, 4)
    if cfg.stamps: A(W0)
    A("s_nop 1")
    fixed, nfix = CK.fix(L[p0:], True)
    L[p0:] = fixed
    sys.stderr.write("start: %d lines, %d nops added\n" % (len(fixed), nfix))
    KOV.clear(); VOV.clear()
    def emit_loop(label, gaps, lazy, last_i):
        A(label + ":")
        k = len(L)
        for gp in gaps:
            for t in gp.text(lazy):
                A(t.replace("LIMIT", str((last_i + 2 + cfg.dist) * 16384)).replace("LOOP", label))
        L[k:] = CK.fix(L[k:], True)[0]
    if cfg.levels:
        for k in range(0, len(cfg.levels), 3):
            cfg.lazy, cfg.clus = cfg.levels[k], cfg.levels[k + 1]
            if cfg.levels[k + 2]: cfg.dmag0 = cfg.dmag
            k0 = len(L)
            emit_loop("L_first%d" % (k // 3), make_first(), cfg.lazy, 0)
            L[k0:] = [t for t in L[k0:] if not t.startswith("s_cbranch_scc1 L_first") and not t.startswith("s_cmp_lt_u32 s%d" % sOff)]
    elif cfg.xr:
        if 0 in cfg.xr:
            A("s_cmp_lt_u32 s%d, s%d" % (sOff, sLim))
            A("s_cbranch_scc0 L_loop")
        k0 = len(L)
        emit_loop("L_loop0", make_first(), cfg.lazy, 77)
        L[k0:] = [t.replace(str((77 + 2 + cfg.dist) * 16384), "s%d" % sLim) for t in L[k0:]]
    elif cfg.ramp: emit_loop("L_loop0", make_first(), cfg.lazy, cfg.ramp)
    if cfg.stamps == 5: L += xstamp(cfg)
    if cfg.align: A(".p2align %d" % cfg.align)
    emit_loop("L_loop", body, False, 13)

    VOV.update({30: 192, 31: 224})
    E = TL()
    orders = [
        "Pa Q2 P0 Q3 P1 P2 P3 | s1 s2 e0 s3 e1 e2 e3",
        "Pa P0 Q2 P1 Q3 P2 P3 | s1 e0 s2 e1 s3 e2 e3",
        "Q2 P0 Pa Q3 P1 P2 P3 | s1 s2 e0 s3 e1 e2 e3",
        "Pa Q2 P0 P1 Q3 P2 P3 | s1 s2 e0 e1 s3 e2 e3",
        "Q2 P0 Pa P1 Q3 P2 P3 | s1 e0 s2 e1 s3 e2 e3",
        "Pa P0 Q2 Q3 P1 P2 P3 | s1 e0 s2 s3 e1 e2 e3",
        "Q2 P0 P1 Q3 P2 Pa P3 | s1 e0 s2 e1 e2 s3 e3",
        "Q2 P0 Q3 P1 P2 Pa P3 | s1 e0 s2 e1 e2 s3 e3",
        "Q2 P0 P1 Q3 P2 Pa P3 | s1 e0 s2 e1 s3 e2 e3",
        "Q2 P0 Q3 P1 P2 Pa P3 | s1 s2 e0 e1 s3 e2 e3",
        "Q2 P0 P1 P2 Q3 Pa P3 | s1 s2 e0 e1 e2 s3 e3",
    ]
    mo, vo = [x.split() for x in orders[cfg.tail].split("|")]
    if mo.index("Pa") > mo.index("Q3"):
        assert mo.index("P0") < mo.index("Q3")
        SOV.update({(30, 3): S(0, 0), (31, 3): S(1, 0)})
    for w in mo:
        if w == "Pa": E.pvt(14, 3)
        elif w[0] == "Q": E.qkt(15, int(w[1]))
        else: E.pvt(15, int(w[1]))
    done_at = E.done
    G = E.G
    nm = len(G)
    G[0].salu.append(I("s_waitcnt vmcnt(0)", 4, "wait")); G[0].salu.append(I("s_barrier", 12, "bar"))
    need0 = E.pv[(30, 0)]
    span = max(16, min(32, need0 + 8))
    for j, x in enumerate(vt_reads(15)): G[1 + (j * span) // 32].mem.append(x)
    def side(g, x):
        while True:
            while g >= len(G): G.append(Gap(None))
            kinds = {y.k == "st" for y in G[g].mem}
            if G[g].m and kinds and kinds != {x.k == "st"} and x.k == "st": g += 1
            else: break
        G[g].mem.append(x)
    q = []
    for w in vo:
        b = int(w[1])
        if w[0] == "s":
            for u in (30, 31):
                q.append(sm_queue(u, b, E.qk, E.pv, skip=(lambda k, u=u: (u - 30,) + k not in pendset) if b < 2 else (lambda k: False)))
        else:
            pvg = E.pv[(31, b)]
            inv = epi_inv(cfg, b, b in Z)
            ks = [(uu, b, "A", 7) for uu in (30, 31) if b >= 2 or (uu - 30, b, "A", 7) in pendset]
            for x in inv: x.lo = (lambda at, r=done_at[(b, 8)] + 3: r) if b in Z else (lambda at, r=pvg - 4, ks=ks: max([r] + [at.get(k, 999) + 1 for k in ks]))
            inv[-1].key = ("inv", b)
            q.append(list(inv))
            prog = (w == vo[-1])
            if not prog:
                pk = I("\n".join(x.t for D in range(8) for x in epi_conv(b, D, True)[:2]), 64)
                pk.lo = lambda at, r=done_at[(b, 7)] + 3, k=("inv", b): max(r, at[k] + 1)
                pk.burst = True
                q[-1].append(pk)
            for D in range(8):
                pk_ = prog and D >= cfg.progpk
                cv = epi_conv(b, D, pk_)
                if not prog: cv = cv[4:]
                rel = max(min(done_at[(b, D)] + 3, nm + 1), nm + 1 if pk_ else 0)
                for x in cv: x.lo = lambda at, r=rel, k=("inv", b): max(r, at[k] + 1)
                def aft(g, b=b, D=D, prog=prog):
                    side(g + 1, epi_write(b, D))
                    if D == 7:
                        for j in range(4): side(g + 1 + (j + 1) // 2, epi_read(b, j))
                        for j in range(4): side(g + 9 + (1 if prog else cfg.stsp) * j, epi_store(cfg, b, j))
                cv[-1].after = aft
                q[-1] += cv
    assert {k[:2] for k in pendset} <= {(0, 1), (1, 1)}
    at2 = {}
    pour2(G, q, at2)
    add_waits(cfg, G, {x.w for x in vt_reads(14) + kt_reads(15)})
    sys.stderr.write("tail costs: %s  est %d\n" % ("".join("%x" % min(15, gp.cost() // 4) if gp.m else "(%x)" % (gp.cost() // 4) for gp in G),
                      sum(8 + max(8, gp.cost()) if gp.m else gp.cost() for gp in G)))
    sys.stderr.write("stores at gaps: %s of %d/%d\n" % ([g for g, gp in enumerate(G) for x in gp.mem if x.k == "st"][::4], nm, len(G)))
    if cfg.stamps == 4:
        sys.stderr.write("est segs: %s\n" % [sum(8 + max(8, gp.cost()) if gp.m else gp.cost() for gp in G[a_:b_]) for a_, b_ in zip(cfg.tst, cfg.tst[1:])])
    A("; ---- last tile, block by block, with the epilogue woven in ----")
    p1 = len(L)
    for g, gp in enumerate(G):
        if cfg.stamps == 5 and g == 0: L += xstamp(cfg)
        if cfg.stamps == 4 and g in cfg.tst: L += xstamp(cfg)
        if g == nm:
            L += stamp(cfg, 5)
            if cfg.stamps: A("s_waitcnt lgkmcnt(0)")
            A("s_nop 3")
        for t in "\n".join(gp.text()).split("\n"):
            if not t: continue
            pv_ = L[-1]
            if pv_.startswith("v_rcp_f32") or (pv_.startswith("v_exp_f32") and not gp.m): A("s_nop 0")
            A(t)
    L[p1:] = CK.fix(L[p1:], True)[0]
    ls = [Lz(b) if b in Z else vL[b] for b in range(4)]
    L += ["v_add_f32 v%d, v%d, v%d" % (t0, ls[0], ls[1]), "v_add_f32 v%d, v%d, v%d" % (t1, ls[2], ls[3]), "v_add_f32 v%d, v%d, v%d" % (t0, t0, t1),
          "v_cmp_nge_f32 vcc, s%d, v%d" % (sThr, t0), "s_cbranch_vccnz L_fallback"]
    if cfg.stamps:
        A("s_waitcnt vmcnt(0)")
        L += stamp(cfg, 6) + stamp(cfg, 1)
        A("s_waitcnt lgkmcnt(0)")
        A("s_lshl_b32 s%d, s2, 2" % sTmp)
        A("s_add_u32 s%d, s%d, s%d" % (sTmp, sTmp, sW))
        A("s_lshl_b32 s%d, s%d, 8" % (sTmp, sTmp))
        A("v_mov_b32 v%d, s%d" % (t0, sTmp))
        for kk in range(7):
            A("v_mov_b32 v%d, s%d" % (t2, sStamp + 2 * kk))
            A("v_mov_b32 v%d, s%d" % (t3, sStamp + 2 * kk + 1))
            A("global_store_dwordx2 v%d, v[%d:%d], s[44:45] offset:%d" % (t0, t2, t3, 8 * kk))
            A("s_nop 1")
        for kk in range(XS[0]):
            A("v_mov_b32 v%d, s%d" % (t2, 72 + 2 * kk))
            A("v_mov_b32 v%d, s%d" % (t3, 72 + 2 * kk + 1))
            A("global_store_dwordx2 v%d, v[%d:%d], s[44:45] offset:%d" % (t0, t2, t3, 192 + 8 * kk))
            A("s_nop 1")
        A("v_lshl_add_u32 v%d, v%d, 3, v%d" % (t0, vLane, t0))
        A("v_cmp_gt_u32 vcc, 16, v%d" % vLane)
        A("s_and_saveexec_b64 s[48:49], vcc")
        A("global_store_dwordx2 v%d, v[%d:%d], s[44:45] offset:64" % (t0, vStLo, vStRt))
    A("L_end:")
    A("s_endpgm")
    L += fallback(cfg)
    A('.section .rodata,"a"'); A(".p2align 6")
    A(".amdhsa_kernel %s_kernel" % NAME)
    A("  .amdhsa_next_free_vgpr 512"); A("  .amdhsa_next_free_sgpr 102"); A("  .amdhsa_accum_offset 256")
    A("  .amdhsa_group_segment_fixed_size 0"); A("  .amdhsa_kernarg_size 48"); A("  .amdhsa_user_sgpr_count 2")
    A("  .amdhsa_user_sgpr_kernarg_segment_ptr 1"); A("  .amdhsa_system_sgpr_workgroup_id_x 1")
    A(".end_amdhsa_kernel")
    return "\n".join(L) + "\n"

if __name__ == "__main__":
    ap = argparse.ArgumentParser()
    ap.add_argument("-o", default="cdna_kernels/%s.s" % NAME)
    ap.add_argument("opts", nargs="*")
    a = ap.parse_args()
    cfg = Cfg()
    for o in a.opts:
        k, v = o.split("=")
        cur = getattr(cfg, k)
        if isinstance(cur, str): v = (" " + v.replace("+", " ")) if v else ""
        elif isinstance(cur, tuple): v = tuple(int(x) for x in v.split(",")) if v else ()
        elif isinstance(cur, float): v = float(v)
        else: v = int(v)
        setattr(cfg, k, v)
    open(a.o, "w").write(build(cfg))
```
